```python
import torch

def _softmax(x, axis=-1):
    return torch.softmax(x, dim=axis)
def _gelu(x):
    return torch.nn.functional.gelu(x, approximate="tanh")
def _silu(x):
    return torch.nn.functional.silu(x)
def _sigmoid(x):
    return torch.sigmoid(x)
def _layernorm(x, axis=-1, eps=1e-5):
    m = x.mean(dim=axis, keepdim=True)
    v = x.var(dim=axis, keepdim=True, unbiased=False)
    return (x - m) / torch.sqrt(v + eps)
def _scatter_add(tgt, idx, src, axis=0):
    return tgt.clone().index_add_(axis, idx, src)
def _segment_sum(src, seg, n):
    out = torch.zeros((n,) + src.shape[1:], dtype=src.dtype)
    return out.index_add_(0, seg, src)
def _pad(x, pw):
    flat = tuple(v for pair in reversed(pw) for v in pair)
    return torch.nn.functional.pad(x, flat)

kernel_name = 'standalone__mha_block_cached__near_ridge'

def setup_inputs():

    _w = (lambda a: (lambda t: t.to(torch.bfloat16) if t.is_floating_point() else t)(torch.as_tensor(a)))
    B, Sq, D = 16, 128, 512
    H, Sk, Dh = 32, 512, 128
    return {
        "x": _w((lambda *s: torch.randn(*s, dtype=torch.bfloat16) * 0.8)(B, Sq, D)),
        "k_cache": _w((lambda *s: torch.randn(*s, dtype=torch.bfloat16) * 0.8)(B, H, Sk, Dh)),
        "v_cache": _w((lambda *s: torch.randn(*s, dtype=torch.bfloat16) * 0.05)(B, H, Sk, Dh)),
        "wq": _w((lambda *s: torch.randn(*s, dtype=torch.bfloat16) * 0.8)(D, H * Dh) * (D ** -0.5)),
        "wo": _w((lambda *s: torch.randn(*s, dtype=torch.bfloat16) * 0.05)(H * Dh, D) * ((H * Dh) ** -0.5)),
    }

def reference(x, k_cache, v_cache, wq, wo):
    B, Sq, D = x.shape
    H, Dh = 32, 128
    q = (lambda x, *d: x.permute(*d))((x @ wq).reshape(B, Sq, H, Dh), 0, 2, 1, 3)
    scores = torch.einsum("bhqd,bhkd->bhqk", q, k_cache) * (Dh ** -0.5)
    p = _softmax(scores, axis=-1)
    o = torch.einsum("bhqk,bhkd->bhqd", p, v_cache)
    return (lambda x, *d: x.permute(*d))(o, 0, 2, 1, 3).reshape(B, Sq, H * Dh) @ wo
```

```python
import re

_REG = re.compile(r"\b([vsa])\[(\d+):(\d+)\]|\b([vsa])(\d+)\b")


def regs_of(op):
    out = []
    for m in _REG.finditer(op):
        if m.group(1):
            out += [(m.group(1), i) for i in range(int(m.group(2)), int(m.group(3)) + 1)]
        else:
            out.append((m.group(4), int(m.group(5))))
    if re.search(r"\bvcc\b", op):
        out += [("s", 106), ("s", 107)]
    if re.search(r"\bvcc_lo\b", op):
        out.append(("s", 106))
    if re.search(r"\bvcc_hi\b", op):
        out.append(("s", 107))
    if re.search(r"\bm0\b", op):
        out.append(("s", 124))
    if re.search(r"\bexec\b", op):
        out += [("s", 126), ("s", 127)]
    return out


TRANS = ("v_exp_f32", "v_log_f32", "v_rcp_f32", "v_rsq_f32", "v_sqrt_f32", "v_sin_f32", "v_cos_f32")


def vr(base, n=1):
    return f"v{base}" if n == 1 else f"v[{base}:{base+n-1}]"


def sr(base, n=1):
    return f"s{base}" if n == 1 else f"s[{base}:{base+n-1}]"


class Prog:
    def __init__(self):
        self.lines = []
        self.reset_state()
        self.nops_inserted = 0

    def reset_state(self):
        self.t = 0
        self.valu_w = {}
        self.trans_w = {}
        self.mfma_w = {}
        self.mfma_c = {}
        self.valu_sw = {}
        self.m0_w = -100
        self.store_d = {}
        self.lgkm = []
        self.vm = []

    def raw(self, s):
        self.lines.append(s)

    def comment(self, s):
        self.lines.append("  ; " + s)

    def label(self, name):
        self.lines.append(name + ":")

    def nop(self, n):
        while n > 0:
            k = min(n, 16)
            self.lines.append(f"  s_nop {k-1}")
            self.t += k
            n -= k

    def flush_hazards(self):
        need = 0
        for r, (t, rng) in self.mfma_w.items():
            need = max(need, 12 - (self.t - t - 1))
        for r, t in self.mfma_c.items():
            need = max(need, 7 - (self.t - t - 1))
        for r, t in self.valu_w.items():
            need = max(need, 2 - (self.t - t - 1))
        for r, t in self.valu_sw.items():
            need = max(need, 5 - (self.t - t - 1))
        for r, t in self.store_d.items():
            need = max(need, 2 - (self.t - t - 1))
        need = max(need, 1 - (self.t - self.m0_w - 1))
        if need > 0:
            self.nop(need)

    def wait(self, vm=None, lgkm=None):
        parts = []
        if vm is not None:
            vm = min(vm, 63)
            parts.append(f"vmcnt({vm})")
            if len(self.vm) > vm:
                self.vm = self.vm[len(self.vm) - vm:] if vm else []
        if lgkm is not None:
            lgkm = min(lgkm, 15)
            parts.append(f"lgkmcnt({lgkm})")
            if len(self.lgkm) > lgkm:
                self.lgkm = self.lgkm[len(self.lgkm) - lgkm:] if lgkm else []
        self.lines.append("  s_waitcnt " + " ".join(parts))
        self.t += 1

    def _need_wait(self, q, regs):
        idx = -1
        for i, d in enumerate(q):
            if d & regs:
                idx = i
        if idx < 0:
            return None
        return len(q) - 1 - idx

    def I(self, text):
        text = text.strip()
        mn, _, rest = text.partition(" ")
        ops = [o.strip() for o in self._split(rest)]
        reads, writes = set(), set()
        kind = "other"
        srcC = set()
        ab = set()
        if mn.startswith("v_mfma"):
            kind = "mfma"
            writes = set(regs_of(ops[0]))
            ab = set(regs_of(ops[1])) | set(regs_of(ops[2]))
            srcC = set(regs_of(ops[3]))
            reads = ab | srcC
        elif mn.startswith("v_"):
            kind = "valu"
            if mn.startswith("v_permlane") and "swap" in mn:
                reads = set(regs_of(ops[0])) | set(regs_of(ops[1]))
                writes = set(reads)
            elif mn.startswith("v_cmp"):
                writes = set(regs_of(ops[0]))
                for o in ops[1:]:
                    reads |= set(regs_of(o))
            elif mn == "v_nop":
                pass
            else:
                writes = set(regs_of(ops[0]))
                for o in ops[1:]:
                    reads |= set(regs_of(o))
                if mn.startswith(("v_fmac", "v_pk_fmac", "v_writelane", "v_dot2c")):
                    reads |= writes
                if mn.startswith(("v_add_co", "v_sub_co", "v_addc_co", "v_subb_co")):
                    writes |= set(regs_of(ops[1]))
        elif mn.startswith("ds_"):
            kind = "ds"
            if mn.startswith(("ds_read", "ds_bpermute", "ds_permute", "ds_swizzle")):
                writes = set(regs_of(ops[0]))
                for o in ops[1:]:
                    reads |= set(regs_of(o))
            else:
                for o in ops:
                    reads |= set(regs_of(o))
        elif mn.startswith(("buffer_", "global_")):
            kind = "vmem"
            is_lds = bool(re.search(r"\blds\b", rest)) or "_lds_" in mn
            if mn.startswith(("buffer_wbl2", "buffer_inv")):
                pass
            elif "load" in mn and not is_lds:
                writes = set(regs_of(ops[0]))
                for o in ops[1:]:
                    reads |= set(regs_of(o))
            elif "atomic" in mn and re.search(r"\bsc0\b", rest):
                for o in ops:
                    reads |= set(regs_of(o))
                writes = set(regs_of(ops[0]))
            else:
                for o in ops:
                    reads |= set(regs_of(o))
            if is_lds:
                reads.add(("s", 124))
        elif mn.startswith("s_"):
            kind = "salu"
            if mn.startswith(("s_cmp", "s_cbranch", "s_branch", "s_barrier", "s_setprio", "s_sleep", "s_endpgm", "s_setpc", "s_bitcmp")):
                for o in ops:
                    reads |= set(regs_of(o))
            else:
                if ops:
                    writes = set(regs_of(ops[0]))
                for o in ops[1:]:
                    reads |= set(regs_of(o))
        touched = reads | writes
        wl = self._need_wait(self.lgkm, touched)
        wv = self._need_wait(self.vm, touched)
        if wl is not None or wv is not None:
            self.wait(vm=wv, lgkm=wl)
        need = 0

        def since(t):
            return self.t - t - 1

        if kind == "mfma":
            drange = (min(r[1] for r in writes), max(r[1] for r in writes))
            for r in reads:
                if r in self.valu_w:
                    need = max(need, 2 - since(self.valu_w[r]))
            for r in ab:
                if r in self.mfma_w:
                    need = max(need, 12 - since(self.mfma_w[r][0]))
            if srcC:
                crange = (min(r[1] for r in srcC), max(r[1] for r in srcC))
                for r in srcC:
                    if r in self.mfma_w and self.mfma_w[r][1] != crange:
                        need = max(need, 10 - since(self.mfma_w[r][0]))
            for r in writes:
                if r in self.mfma_w and r not in srcC:
                    need = max(need, 10 - since(self.mfma_w[r][0]))
        elif kind == "valu":
            for r in touched:
                if r in self.mfma_w:
                    need = max(need, 12 - since(self.mfma_w[r][0]))
            for r in writes:
                if r in self.mfma_c:
                    need = max(need, 7 - since(self.mfma_c[r]))
                if r in self.store_d:
                    need = max(need, 2 - since(self.store_d[r]))
            for r in reads:
                if r in self.trans_w:
                    need = max(need, 1 - since(self.trans_w[r]))
                if r[0] == "s" and r in self.valu_sw:
                    lane_sel = mn.startswith(("v_readlane", "v_writelane"))
                    need = max(need, (4 if lane_sel else 2) - since(self.valu_sw[r]))
                if r in self.valu_w:
                    if mn.startswith("v_permlane") or "dpp" in text:
                        need = max(need, 2 - since(self.valu_w[r]))
                    if mn.startswith(("v_readfirstlane", "v_readlane")):
                        need = max(need, 1 - since(self.valu_w[r]))
        elif kind in ("ds", "vmem"):
            for r in touched:
                if r in self.mfma_w:
                    need = max(need, 12 - since(self.mfma_w[r][0]))
                if r[0] == "s" and r in self.valu_sw:
                    need = max(need, 5 - since(self.valu_sw[r]))
            for r in writes:
                if r in self.store_d:
                    need = max(need, 1 - since(self.store_d[r]))
                if r in self.mfma_c:
                    need = max(need, 7 - since(self.mfma_c[r]))
            if ("s", 124) in reads and kind == "vmem":
                need = max(need, 1 - since(self.m0_w))
            for r in reads:
                if r in self.trans_w:
                    need = max(need, 1 - since(self.trans_w[r]))
        elif kind == "salu":
            for r in reads:
                if r in self.valu_sw:
                    need = max(need, 1 - since(self.valu_sw[r]))
        if need > 0:
            self.nops_inserted += need
            self.nop(need)
        self.lines.append("  " + text)
        t = self.t
        self.t += 1
        for r in writes:
            self.valu_w.pop(r, None)
            self.trans_w.pop(r, None)
            self.mfma_w.pop(r, None)
            self.valu_sw.pop(r, None)
        if kind == "mfma":
            for r in writes:
                self.mfma_w[r] = (t, drange)
            for r in srcC:
                self.mfma_c[r] = t
        elif kind == "valu":
            for r in writes:
                if r[0] == "s":
                    self.valu_sw[r] = t
                else:
                    self.valu_w[r] = t
                    if mn.startswith(TRANS):
                        self.trans_w[r] = t
        elif kind == "ds":
            self.lgkm.append(set(writes))
            assert len(self.lgkm) <= 15 or True
        elif kind == "vmem":
            if not mn.startswith(("buffer_inv",)):
                self.vm.append(set(writes))
            if "store" in mn and ("x4" in mn or "x3" in mn):
                for r in regs_of(ops[0] if mn.startswith("buffer") else ops[1]):
                    self.store_d[r] = t
        elif kind == "salu":
            if ("s", 124) in writes:
                self.m0_w = t

    @staticmethod
    def _split(rest):
        out, cur, depth = [], "", 0
        for ch in rest:
            if ch in "[(":
                depth += 1
            elif ch in "])":
                depth -= 1
            if ch == "," and depth == 0:
                out.append(cur)
                cur = ""
            else:
                cur += ch
        if cur.strip():
            out.append(cur)
        return out

    def text(self):
        return "\n".join(self.lines) + "\n"


def kernel_header(name):
    return f".globl {name}\n.p2align 8\n.type {name},@function\n{name}:\n"


def kernel_desc(name, vgpr, sgpr, accum):
    return f""".p2align 6
.amdhsa_kernel {name}
  .amdhsa_next_free_vgpr {vgpr}
  .amdhsa_next_free_sgpr {sgpr}
  .amdhsa_accum_offset {accum}
  .amdhsa_group_segment_fixed_size 0
  .amdhsa_kernarg_size 64
  .amdhsa_user_sgpr_count 2
  .amdhsa_user_sgpr_kernarg_segment_ptr 1
  .amdhsa_system_sgpr_workgroup_id_x 1
.end_amdhsa_kernel
"""
```

```python
import sys, math, struct
from asmlib import Prog, vr, sr, kernel_header, kernel_desc

D_AHEAD = int(sys.argv[2]) if len(sys.argv) > 2 else 4
KVFLAGS = sys.argv[3] if len(sys.argv) > 3 else "nt"
if KVFLAGS == "-":
    KVFLAGS = ""


def f32bits(x):
    return struct.unpack("<I", struct.pack("<f", x))[0]


S_WAVE = 3
SRD_X, SRD_K, SRD_V, SRD_WQ, SRD_WO, SRD_OUT, SRD_WS = 8, 12, 16, 20, 24, 28, 32
S_B, S_H, S_T0, S_T1, S_T2, S_T3 = 36, 37, 38, 39, 56, 57
S_HEADCNT = 58
S_XBASE, S_WQBASE, S_KVBASE, S_OBASE = 59, 60, 61, 62
S_RET = 64
S_SCALE, S_THR = 66, 67
S_M0B = 68


def prologue(p, nwg):
    p.I(f"s_cmp_ge_u32 s2, {nwg}")
    p.I("s_cbranch_scc1 L_exit%s" % p.tag)
    p.I("s_load_dwordx8 s[40:47], s[0:1], 0")
    p.I("s_load_dwordx8 s[48:55], s[0:1], 32")
    p.I("v_lshrrev_b32 v1, 6, v0")
    p.I(f"v_readfirstlane_b32 s{S_WAVE}, v1")
    p.I("v_and_b32 v0, 63, v0")
    p.raw("  s_waitcnt lgkmcnt(0)")
    for srd, src, size in ((SRD_X, 40, 2 << 20), (SRD_K, 42, 64 << 20), (SRD_V, 44, 64 << 20), (SRD_WQ, 46, 4 << 20),
                           (SRD_WO, 48, 4 << 20), (SRD_OUT, 50, 2 << 20), (SRD_WS, 54, 256 << 20)):
        p.I(f"s_mov_b32 s{srd}, s{src}")
        p.I(f"s_and_b32 s{srd+1}, s{src+1}, 0xffff")
        p.I(f"s_mov_b32 s{srd+2}, {size}")
        p.I(f"s_mov_b32 s{srd+3}, 0x20000")


V_AK, V_AW, V_AV, V_AX, V_ST, V_MX, V_T = 2, 6, 8, 10, 14, 15, 1
V_FR = 16
NFR = 6
V_NEGM = 40
V_S = [56, 72]
V_Q = 88
V_P = 120
V_L = 248
V_SEL = 252
V_QACC = 120
V_X = [184, 200]
V_RL = 40


class AddrSet:
    def __init__(self, p, regs):
        self.p, self.regs, self.hi = p, regs, 0

    def to(self, slot):
        hi = slot // 4
        if hi != self.hi:
            for r in self.regs:
                self.p.I(f"v_xor_b32 v{r}, 0x10000, v{r}")
            self.hi = hi
        return (slot % 4) * 16384


def lane_setup_A(p):
    t0, t1, t2, t3 = 16, 17, 18, 19
    p.I(f"v_lshrrev_b32 v{t0}, 5, v0")
    p.I(f"v_and_b32 v{t1}, 31, v0")
    p.I(f"v_bfe_u32 v{t2}, v0, 1, 3")
    p.I(f"v_xor_b32 v{t2}, v{t2}, v{t0}")
    p.I(f"v_lshlrev_b32 v{t2}, 4, v{t2}")
    p.I(f"v_lshrrev_b32 v{t3}, 2, v{t1}")
    p.I(f"v_lshlrev_b32 v{t3}, 10, v{t3}")
    p.I(f"v_and_b32 v20, 3, v{t1}")
    p.I(f"v_lshl_add_u32 v{t3}, v20, 7, v{t3}")
    p.I(f"v_add_u32 v{V_AK}, v{t3}, v{t2}")
    for i in range(1, 4):
        p.I(f"v_xor_b32 v{V_AK+i}, {i*32}, v{V_AK}")
    p.I(f"s_lshl_b32 s{S_T0}, s{S_WAVE}, 12")
    p.I(f"v_lshlrev_b32 v{t3}, 7, v{t1}")
    p.I(f"v_add3_u32 v{V_AX}, v{t3}, v{t2}, s{S_T0}")
    for i in range(1, 4):
        p.I(f"v_xor_b32 v{V_AX+i}, {i*32}, v{V_AX}")
    p.I(f"v_bfe_u32 v{t1}, v0, 2, 2")
    p.I(f"v_bfe_u32 v{t2}, v0, 3, 1")
    p.I(f"v_lshlrev_b32 v{t2}, 6, v{t2}")
    p.I(f"v_lshl_add_u32 v{t2}, v{t1}, 7, v{t2}")
    p.I(f"v_bfe_u32 v{t3}, v0, 4, 1")
    p.I(f"v_lshl_add_u32 v{t2}, v{t3}, 5, v{t2}")
    p.I(f"v_and_b32 v{t3}, 3, v0")
    p.I(f"v_lshl_add_u32 v20, v{t3}, 3, v{t2}")
    p.I(f"v_lshl_add_u32 v{V_AV}, v{t0}, 9, v20")
    p.I(f"v_xor_b32 v{V_AV+1}, 64, v{V_AV}")
    p.I(f"v_and_b32 v{t3}, 1, v0")
    p.I(f"v_lshl_add_u32 v20, v{t3}, 4, v{t2}")
    p.I(f"v_bfe_u32 v{t3}, v0, 1, 1")
    p.I(f"v_lshl_add_u32 v20, v{t3}, 3, v20")
    p.I(f"v_lshl_add_u32 v{V_AW}, v{t0}, 11, v20")
    p.I(f"v_xor_b32 v{V_AW+1}, 64, v{V_AW}")
    p.I(f"s_lshl_b32 s{S_T0}, s{S_WAVE}, 13")
    p.I(f"v_lshlrev_b32 v{V_ST}, 4, v0")
    p.I(f"v_add_u32 v{V_ST}, s{S_T0}, v{V_ST}")
    p.I(f"v_bfe_u32 v{t1}, v0, 2, 1")
    p.I(f"v_bfe_u32 v{t2}, v0, 4, 1")
    p.I(f"v_cmp_eq_u32 vcc, v{t1}, v{t2}")
    p.I(f"v_mov_b32 v{t3}, 0x3f803f80")
    p.I(f"v_cndmask_b32 v{V_SEL}, 0, v{t3}, vcc")
    for i in range(1, 4):
        p.I(f"v_mov_b32 v{V_SEL+i}, v{V_SEL}")


class FragRing:
    def __init__(self, p, items, base=V_FR, n=NFR):
        self.p, self.items, self.base, self.n = p, items, base, n
        self.issued = 0

    def reg(self, i):
        return self.base + 4 * (i % self.n)

    def issue_next(self):
        if self.issued >= len(self.items):
            return
        i = self.issued
        self.items[i](self.reg(i))
        self.issued += 1


def gen_A(p):
    lane_setup_A(p)
    p.I(f"s_mov_b32 s{S_SCALE}, {hex(f32bits(math.log2(math.e) / math.sqrt(128.0)))}")
    p.I(f"s_mov_b32 s{S_THR}, {hex(f32bits(20.0))}")
    p.I(f"s_mov_b32 s{S_HEADCNT}, 0")
    p.flush_hazards()
    p.label("L_A_head")
    p.reset_state()
    ak, aw, av, ax = AddrSet(p, [V_AK + i for i in range(4)]), AddrSet(p, [V_AW, V_AW + 1]), AddrSet(p, [V_AV, V_AV + 1]), AddrSet(p, [V_AX + i for i in range(4)])
    p.I(f"s_lshl_b32 s{S_T0}, s{S_B}, 5")
    p.I(f"s_add_u32 s{S_T0}, s{S_T0}, s{S_H}")
    p.I(f"s_lshl_b32 s{S_OBASE}, s{S_T0}, 15")

    items = []
    uses = []

    def bar():
        p.I("s_barrier")

    def mk_w(c, s, mb, first):
        def f(reg):
            if first:
                bar()
                off = ax.to((2 * c) % 8)
                for ss in range(4):
                    p.I(f"ds_read_b128 {vr(V_X[c % 2] + 4 * ss, 4)}, v{V_AX + ss} offset:{off}")
                bar()
            off = aw.to((2 * c + 1) % 8) + s * 4096 + (mb // 2) * 512
            p.I(f"ds_read_b64_tr_b16 {vr(reg, 2)}, v{V_AW + mb % 2} offset:{off}")
            p.I(f"ds_read_b64_tr_b16 {vr(reg + 2, 2)}, v{V_AW + mb % 2} offset:{off + 1024}")
        return f

    def mk_k(j, ks):
        def f(reg):
            t = j // 2
            if j % 2 == 0 and ks == 0:
                bar()
            off = ak.to((16 + t) % 8) + (j % 2) * 8192 + (ks // 4) * 512
            p.I(f"ds_read_b128 {vr(reg, 4)}, v{V_AK + ks % 4} offset:{off}")
        return f

    def mk_v(ph, kk, mb):
        def f(reg):
            t4, k8 = kk // 8, kk % 8
            if k8 == 0 and mb == 0:
                bar()
            off = av.to((24 + ph * 4 + t4) % 8) + k8 * 2048
            p.I(f"ds_read_b64_tr_b16 {vr(reg, 2)}, v{V_AV + mb} offset:{off}")
            p.I(f"ds_read_b64_tr_b16 {vr(reg + 2, 2)}, v{V_AV + mb} offset:{off + 1024}")
        return f

    for c in range(8):
        for s in range(4):
            for mb in range(4):
                items.append(mk_w(c, s, mb, s == 0 and mb == 0))
    for j in range(16):
        for ks in range(8):
            items.append(mk_k(j, ks))
    for ph in range(2):
        for kk in range(32):
            for mb in range(2):
                items.append(mk_v(ph, kk, mb))
    ring = FragRing(p, items)
    AHEAD = NFR - 1
    for _ in range(AHEAD):
        ring.issue_next()
    fi = 0

    for c in range(8):
        for s in range(4):
            for mb in range(4):
                acc = vr(V_QACC + 16 * mb, 16)
                cin = "0" if (c == 0 and s == 0) else acc
                p.I(f"v_mfma_f32_32x32x16_bf16 {acc}, {vr(ring.reg(fi), 4)}, {vr(V_X[c % 2] + 4 * s, 4)}, {cin}")
                fi += 1
                ring.issue_next()
    for mb in range(4):
        for i in range(16):
            r = V_QACC + 16 * mb + i
            p.I(f"v_mul_f32 v{r}, s{S_SCALE}, v{r}")
        for i in range(8):
            r = V_QACC + 16 * mb + 2 * i
            p.I(f"v_cvt_pk_bf16_f32 v{V_Q + 8 * mb + i}, v{r}, v{r+1}")
    for i in range(4):
        p.I(f"v_mov_b32 v{V_L+i}, 0")

    def softmax_ops(i):
        S = V_S[i % 2]
        ops = []
        ops.append(f"v_max3_f32 v{V_MX}, v{S}, v{S+1}, v{S+2}")
        ops.append(f"v_max3_f32 v{V_T}, v{S+3}, v{S+4}, v{S+5}")
        ops.append(f"v_max3_f32 v{V_MX}, v{V_MX}, v{S+6}, v{S+7}")
        ops.append(f"v_max3_f32 v{V_T}, v{V_T}, v{S+8}, v{S+9}")
        ops.append(f"v_max3_f32 v{V_MX}, v{V_MX}, v{S+10}, v{S+11}")
        ops.append(f"v_max3_f32 v{V_T}, v{V_T}, v{S+12}, v{S+13}")
        ops.append(f"v_max3_f32 v{V_MX}, v{V_MX}, v{S+14}, v{S+15}")
        ops.append(f"v_max_f32 v{V_MX}, v{V_MX}, v{V_T}")
        return ops

    def exp_ops(i):
        S = V_S[i % 2]
        ops = []
        for k in range(0, 16, 2):
            ops.append(f"v_exp_f32 v{S+k}, v{S+k}")
            ops.append(f"v_exp_f32 v{S+k+1}, v{S+k+1}")
            if k >= 2:
                ops.append(f"v_cvt_pk_bf16_f32 v{V_P + 8*i + (k-2)//2}, v{S+k-2}, v{S+k-1}")
        ops.append(f"v_cvt_pk_bf16_f32 v{V_P + 8*i + 7}, v{S+14}, v{S+15}")
        return ops

    def lsum(i):
        for h in range(2):
            p.I(f"v_mfma_f32_16x16x32_bf16 {vr(V_L,4)}, {vr(V_SEL,4)}, {vr(V_P + 8*i + 4*h, 4)}, {vr(V_L,4)}")

    def qk_mfma(j, ks):
        nonlocal fi
        S = vr(V_S[j % 2], 16)
        cin = S if ks else ("0" if j == 0 else vr(V_NEGM, 16))
        p.I(f"v_mfma_f32_32x32x16_bf16 {S}, {vr(ring.reg(fi), 4)}, {vr(V_Q + 4 * ks, 4)}, {cin}")
        fi += 1
        ring.issue_next()

    stubs = []
    for ks in range(8):
        qk_mfma(0, ks)
    for o in softmax_ops(0):
        p.I(o)
    p.I(f"v_mov_b32 v{V_T}, v{V_MX}")
    p.I(f"v_permlane32_swap_b32 v{V_T}, v{V_MX}")
    p.I(f"v_max_f32 v{V_MX}, v{V_MX}, v{V_T}")
    p.I(f"v_ceil_f32 v{V_MX}, v{V_MX}")
    for i in range(16):
        p.I(f"v_sub_f32 v{V_NEGM+i}, 0, v{V_MX}")
    for i in range(16):
        p.I(f"v_sub_f32 v{V_S[0]+i}, v{V_S[0]+i}, v{V_MX}")
    for j in range(1, 17):
        i = j - 1
        pre = softmax_ops(i) if i > 0 else []
        post = exp_ops(i)
        if j < 16:
            qk_mfma(j, 0)
            if i >= 1:
                lsum(i - 1)
            qk_mfma(j, 1)
            for o in pre[:4]:
                p.I(o)
            qk_mfma(j, 2)
            for o in pre[4:]:
                p.I(o)
            if pre:
                p.I(f"v_cmp_nle_f32 vcc, v{V_MX}, s{S_THR}" if False else f"v_cmp_nge_f32 vcc, s{S_THR}, v{V_MX}")
            n = len(post)
            start = 0
            if not pre:
                for o in post[:4]:
                    p.I(o)
                start = 4
            qk_mfma(j, 3)
            if pre:
                p.I(f"s_cbranch_vccnz L_A_stub{i}")
                p.label(f"L_A_back{i}")
                stubs.append(i)
            rest = post[start:]
            per = (len(rest) + 4) // 5
            for g in range(5):
                for o in rest[g * per:(g + 1) * per]:
                    p.I(o)
                if g < 4:
                    qk_mfma(j, 4 + g)
        else:
            lsum(i - 1)
            for o in pre:
                p.I(o)
            p.I(f"v_cmp_nge_f32 vcc, s{S_THR}, v{V_MX}")
            p.I(f"s_cbranch_vccnz L_A_stub{i}")
            p.label(f"L_A_back{i}")
            stubs.append(i)
            for o in post:
                p.I(o)
            lsum(i)

    OACC = [V_S[0], V_Q]
    for ph in range(2):
        for kk in range(32):
            for mb in range(2):
                acc = vr(OACC[ph] + 16 * mb, 16)
                cin = "0" if kk == 0 else acc
                p.I(f"v_mfma_f32_32x32x16_bf16 {acc}, {vr(ring.reg(fi), 4)}, {vr(V_P + 4 * kk, 4)}, {cin}")
                fi += 1
                ring.issue_next()
            if ph == 0 and kk == 3:
                p.I(f"v_rcp_f32 v{V_RL}, v{V_L}")
        a = OACC[ph]
        for i in range(32):
            p.I(f"v_mul_f32 v{a+i}, v{V_RL}, v{a+i}")
        for i in range(16):
            p.I(f"v_cvt_pk_bf16_f32 v{a+i}, v{a+2*i}, v{a+2*i+1}")
        p.I(f"s_add_u32 s{S_T0}, s{S_OBASE}, {ph*4096}")
        for f in range(4):
            p.I(f"buffer_store_dwordx4 {vr(a+4*f,4)}, v{V_ST}, {sr(SRD_WS,4)}, s{S_T0} offen offset:{f*1024}")
    assert fi == len(items)
    for a in (ak, aw, av, ax):
        a.to(0)
    p.I(f"s_add_u32 s{S_H}, s{S_H}, 1")
    p.I(f"s_add_u32 s{S_HEADCNT}, s{S_HEADCNT}, 1")
    p.I(f"s_cmp_lt_u32 s{S_HEADCNT}, 2")
    p.flush_hazards()
    p.I("s_cbranch_scc1 L_A_head")
    p.I("s_endpgm")

    for i in stubs:
        p.label(f"L_A_stub{i}")
        p.raw(f"  s_call_b64 {sr(S_RET,2)}, L_A_fix")
        p.raw(f"  s_branch L_A_back{i}")
    p.label("L_A_fix")
    p.reset_state()
    p.nop(16)
    p.I(f"v_mov_b32 v{V_T}, v{V_MX}")
    p.I(f"v_permlane32_swap_b32 v{V_T}, v{V_MX}")
    p.I(f"v_max3_f32 v{V_MX}, v{V_MX}, v{V_T}, 0")
    p.I(f"v_ceil_f32 v{V_MX}, v{V_MX}")
    for base in (V_S[0], V_S[1], V_NEGM):
        for k in range(16):
            p.I(f"v_sub_f32 v{base+k}, v{base+k}, v{V_MX}")
    p.I(f"v_exp_f32 v{V_MX}, -v{V_MX}")
    for k in range(4):
        p.I(f"v_mul_f32 v{V_L+k}, v{V_L+k}, v{V_MX}")
    for k in range(128):
        r = V_P + k
        p.I(f"v_lshlrev_b32 v{V_T}, 16, v{r}")
        p.I(f"v_and_b32 v{r}, 0xffff0000, v{r}")
        p.I(f"v_mul_f32 v{V_T}, v{V_T}, v{V_MX}")
        p.I(f"v_mul_f32 v{r}, v{r}, v{V_MX}")
        p.I(f"v_cvt_pk_bf16_f32 v{r}, v{V_T}, v{r}")
    p.nop(4)
    p.raw(f"  s_setpc_b64 {sr(S_RET,2)}")


def gen_G(p):
    VX, VW, VK, VV = 8, 12, 16, 20
    SG = S_T3
    p.reset_state()
    p.I(f"s_sub_u32 s{SG}, s{S_WAVE}, 4")
    p.I("v_lshrrev_b32 v1, 3, v0")
    p.I("v_and_b32 v2, 7, v0")
    p.I("v_bfe_u32 v3, v0, 4, 1")
    p.I("v_lshrrev_b32 v4, 4, v0")
    p.I(f"s_lshl_b32 s{S_T0}, s{SG}, 15")
    for j in range(4):
        p.I(f"v_add_u32 v5, {4*j}, v4")
        p.I("v_and_b32 v5, 7, v5")
        p.I("v_xor_b32 v5, v5, v2")
        p.I("v_lshlrev_b32 v5, 4, v5")
        p.I(f"v_lshl_add_u32 v5, v1, 10, v5")
        p.I(f"v_add_u32 v5, {8*j*1024 - j*1024}, v5")
        p.I(f"v_add_u32 v{VX+j}, s{S_T0}, v5")
    p.I("v_lshlrev_b32 v5, 2, v3")
    p.I("v_xor_b32 v5, v5, v2")
    p.I("v_lshlrev_b32 v5, 4, v5")
    p.I("v_lshl_add_u32 v5, v1, 8, v5")
    p.I(f"s_lshl_b32 s{S_T0}, s{SG}, 13")
    p.I(f"v_add_u32 v5, s{S_T0}, v5")
    for j in range(4):
        p.I(f"v_add_u32 v{VV+j}, {8*j*256 - j*1024}, v5")
    p.I("v_bfe_u32 v6, v0, 3, 2")
    p.I("v_lshrrev_b32 v7, 5, v0")
    p.I(f"s_lshl_b32 s{S_T0}, s{SG}, 12")
    for j in range(4):
        p.I(f"v_add_u32 v5, {2*j}, v3")
        p.I("v_xor_b32 v5, v5, v2")
        p.I("v_lshlrev_b32 v5, 4, v5")
        p.I("v_lshl_add_u32 v5, v6, 8, v5")
        p.I("v_lshl_add_u32 v5, v7, 7, v5")
        p.I(f"v_add_u32 v{VK+j}, s{S_T0}, v5")
    p.I("v_lshlrev_b32 v5, 2, v3")
    p.I("v_xor_b32 v5, v5, v2")
    p.I("v_lshlrev_b32 v5, 4, v5")
    p.I("v_lshl_add_u32 v5, v6, 13, v5")
    p.I("v_lshl_add_u32 v5, v7, 7, v5")
    p.I(f"s_lshl_b32 s{S_T0}, s{SG}, 17")
    p.I(f"v_add_u32 v5, s{S_T0}, v5")
    for j in range(4):
        p.I(f"v_add_u32 v{VW+j}, {4*j*8192 - j*1024}, v5")
    p.I(f"s_lshl_b32 s{S_XBASE}, s{S_B}, 17")
    p.I(f"s_lshl_b32 s{S_WQBASE}, s{S_H}, 8")
    p.I(f"s_lshl_b32 s{S_T0}, s{S_B}, 5")
    p.I(f"s_add_u32 s{S_T0}, s{S_T0}, s{S_H}")
    p.I(f"s_lshl_b32 s{S_KVBASE}, s{S_T0}, 17")
    p.I(f"s_lshl_b32 s{S_M0B}, s{SG}, 12")

    tiles = []
    for hd in range(2):
        for c in range(8):
            tiles.append(("x", S_XBASE, c * 128, SRD_X, VX, ""))
            tiles.append(("w", S_WQBASE, hd * 256 + c * 64 * 8192, SRD_WQ, VW, ""))
        for t in range(8):
            tiles.append(("k", S_KVBASE, hd * 131072 + t * 16384, SRD_K, VK, KVFLAGS))
        for ph in range(2):
            for t4 in range(4):
                tiles.append(("v", S_KVBASE, hd * 131072 + t4 * 32768 + ph * 128, SRD_V, VV, KVFLAGS))
    NT = len(tiles)

    def issue(T):
        nm, sb, off, srd, vo, fl = tiles[T]
        p.I(f"s_add_u32 s{S_T0}, s{sb}, {off}")
        p.I(f"s_add_u32 m0, s{S_M0B}, {(T % 8) * 16384}")
        for j in range(4):
            p.I(f"buffer_load_dwordx4 v{vo+j}, {sr(srd,4)}, s{S_T0} offen offset:{j*1024} {fl} lds")

    for T in range(D_AHEAD):
        issue(T)
    for T in range(NT):
        younger = min(D_AHEAD - 1, NT - 1 - T)
        p.wait(vm=4 * younger)
        p.I("s_barrier")
        if T + D_AHEAD < NT:
            issue(T + D_AHEAD)
    p.I("s_endpgm")


def kernel1():
    p = Prog()
    p.tag = "1"
    prologue(p, 256)
    p.I(f"s_and_b32 s{S_T0}, s2, 1")
    p.I(f"s_lshl_b32 s{S_T0}, s{S_T0}, 3")
    p.I(f"s_bfe_u32 s{S_T1}, s2, {(3 << 16) | 3}")
    p.I(f"s_add_u32 s{S_B}, s{S_T0}, s{S_T1}")
    p.I(f"s_bfe_u32 s{S_T0}, s2, {(2 << 16) | 1}")
    p.I(f"s_lshl_b32 s{S_T0}, s{S_T0}, 3")
    p.I(f"s_lshr_b32 s{S_T1}, s2, 6")
    p.I(f"s_lshl_b32 s{S_T1}, s{S_T1}, 1")
    p.I(f"s_add_u32 s{S_H}, s{S_T0}, s{S_T1}")
    p.I(f"s_cmp_ge_u32 s{S_WAVE}, 4")
    p.I("s_cbranch_scc1 L_G")
    gen_A(p)
    p.label("L_G")
    gen_G(p)
    p.label("L_exit1")
    p.I("s_endpgm")
    return p


def kernel2():
    p = Prog()
    p.tag = "2"
    prologue(p, 256)
    S_RH, S_CB, S_WOB, S_OB, S_LB = 59, 60, 61, 62, 63
    V_AWO, V_WV, V_OV = 2, 4, 8
    ACC = 64
    OF = [128, 192]
    p.I(f"s_and_b32 s{S_T0}, s2, 7")
    p.I(f"s_lshl_b32 s{S_T0}, s{S_T0}, 1")
    p.I(f"s_lshr_b32 s{S_T1}, s2, 7")
    p.I(f"s_add_u32 s{S_B}, s{S_T0}, s{S_T1}")
    p.I(f"s_bfe_u32 s{S_RH}, s2, {(1 << 16) | 3}")
    p.I(f"s_bfe_u32 s{S_CB}, s2, {(3 << 16) | 4}")
    p.I(f"s_lshl_b32 s{S_LB}, s{S_WAVE}, 15")
    t0, t1, t2, t3 = 16, 17, 18, 19
    p.I(f"v_lshrrev_b32 v{t0}, 5, v0")
    p.I(f"v_bfe_u32 v{t1}, v0, 2, 2")
    p.I(f"v_bfe_u32 v{t2}, v0, 3, 1")
    p.I(f"v_lshlrev_b32 v{t2}, 6, v{t2}")
    p.I(f"v_lshl_add_u32 v{t2}, v{t1}, 7, v{t2}")
    p.I(f"v_bfe_u32 v{t3}, v0, 4, 1")
    p.I(f"v_lshl_add_u32 v{t2}, v{t3}, 5, v{t2}")
    p.I(f"v_and_b32 v{t3}, 1, v0")
    p.I(f"v_lshl_add_u32 v20, v{t3}, 4, v{t2}")
    p.I(f"v_bfe_u32 v{t3}, v0, 1, 1")
    p.I(f"v_lshl_add_u32 v20, v{t3}, 3, v20")
    p.I(f"v_lshl_add_u32 v20, v{t0}, 9, v20")
    p.I(f"v_add_u32 v{V_AWO}, s{S_LB}, v20")
    p.I(f"v_xor_b32 v{V_AWO+1}, 64, v{V_AWO}")
    p.I("v_lshrrev_b32 v16, 3, v0")
    p.I("v_and_b32 v17, 7, v0")
    p.I("v_bfe_u32 v18, v0, 4, 1")
    p.I("v_lshlrev_b32 v18, 2, v18")
    p.I("v_xor_b32 v17, v17, v18")
    p.I("v_lshlrev_b32 v17, 4, v17")
    p.I("v_lshl_add_u32 v17, v16, 10, v17")
    for j in range(4):
        p.I(f"v_add_u32 v{V_WV+j}, {8*j*1024 - j*1024}, v17")
    p.I(f"v_lshlrev_b32 v{V_OV}, 4, v0")
    p.I(f"s_lshl_b32 s{S_T0}, s{S_CB}, 2")
    p.I(f"s_add_u32 s{S_H}, s{S_WAVE}, s{S_T0}")
    p.I(f"s_lshl_b32 s{S_WOB}, s{S_CB}, 7")
    p.I(f"s_lshl_b32 s{S_OB}, s{S_B}, 20")
    p.I(f"s_lshl_b32 s{S_T0}, s{S_RH}, 14")
    p.I(f"s_add_u32 s{S_OB}, s{S_OB}, s{S_T0}")

    def issue(u):
        bsel = u % 2
        p.I(f"s_and_b32 s{S_H}, s{S_H}, 31")
        p.I(f"s_lshl_b32 s{S_T0}, s{S_H}, 17")
        p.I(f"s_add_u32 s{S_T0}, s{S_T0}, s{S_WOB}")
        p.I(f"s_lshl_b32 s{S_T1}, s{S_H}, 15")
        p.I(f"s_add_u32 s{S_T1}, s{S_T1}, s{S_OB}")
        for g in range(4):
            p.I(f"s_add_u32 m0, s{S_LB}, {bsel*16384 + g*4096}")
            for j in range(4):
                p.I(f"buffer_load_dwordx4 v{V_WV+j}, {sr(SRD_WO,4)}, s{S_T0} offen offset:{j*1024} lds")
            for j in range(4):
                r = OF[bsel] + 16 * g + 4 * j
                p.I(f"buffer_load_dwordx4 {vr(r,4)}, v{V_OV}, {sr(SRD_WS,4)}, s{S_T1} offen offset:{j*1024}")
            if g < 3:
                p.I(f"s_add_u32 s{S_T0}, s{S_T0}, 32768")
                p.I(f"s_add_u32 s{S_T1}, s{S_T1}, 4096")
        p.I(f"s_add_u32 s{S_H}, s{S_H}, 4")

    NU = 8
    issue(0)
    for u in range(NU):
        if u + 1 < NU:
            issue(u + 1)
            p.wait(vm=32)
        else:
            p.wait(vm=0)
        bsel = u % 2
        items = []
        for ks in range(8):
            for nb in range(2):
                def f(reg, ks=ks, nb=nb):
                    off = bsel * 16384 + ks * 2048
                    p.I(f"ds_read_b64_tr_b16 {vr(reg,2)}, v{V_AWO+nb} offset:{off}")
                    p.I(f"ds_read_b64_tr_b16 {vr(reg+2,2)}, v{V_AWO+nb} offset:{off+1024}")
                items.append(f)
        ring = FragRing(p, items, base=16, n=6)
        for _ in range(5):
            ring.issue_next()
        fi = 0
        for ks in range(8):
            for nb in range(2):
                for qb in range(2):
                    acc = vr(ACC + 16 * (nb * 2 + qb), 16)
                    cin = "0" if (u == 0 and ks == 0) else acc
                    p.I(f"v_mfma_f32_32x32x16_bf16 {acc}, {vr(ring.reg(fi),4)}, {vr(OF[bsel] + qb*32 + ks*4, 4)}, {cin}")
                fi += 1
                ring.issue_next()
    p.I("s_barrier")
    p.I(f"s_lshl_b32 s{S_T0}, s{S_WAVE}, 12")
    p.I(f"v_add_u32 v16, s{S_T0}, v{V_OV}")
    for beta in range(4):
        for k4 in range(4):
            p.I(f"ds_write_b128 v16, {vr(ACC + 16*beta + 4*k4, 4)} offset:{beta*16384 + k4*1024}")
    p.wait(lgkm=0)
    p.I("s_barrier")
    p.I(f"s_lshl_b32 s{S_T0}, s{S_WAVE}, 14")
    p.I(f"v_add_u32 v16, s{S_T0}, v{V_OV}")
    for w in range(4):
        for k4 in range(4):
            p.I(f"ds_read_b128 {vr(128 + 16*w + 4*k4, 4)}, v16 offset:{w*4096 + k4*1024}")
        if w == 2:
            p.wait(lgkm=4)
    for i in range(16):
        p.I(f"v_add_f32 v{128+i}, v{128+i}, v{144+i}")
    for i in range(16):
        p.I(f"v_add_f32 v{160+i}, v{160+i}, v{176+i}")
    for i in range(16):
        p.I(f"v_add_f32 v{128+i}, v{128+i}, v{160+i}")
    for i in range(8):
        p.I(f"v_cvt_pk_bf16_f32 v{128+i}, v{128+2*i}, v{128+2*i+1}")
    p.I("v_and_b32 v16, 31, v0")
    p.I("v_lshlrev_b32 v16, 10, v16")
    p.I("v_lshrrev_b32 v17, 5, v0")
    p.I("v_lshl_add_u32 v16, v17, 4, v16")
    p.I(f"s_lshl_b32 s{S_T0}, s{S_B}, 17")
    p.I(f"s_lshl_b32 s{S_T1}, s{S_RH}, 16")
    p.I(f"s_add_u32 s{S_T0}, s{S_T0}, s{S_T1}")
    p.I(f"s_and_b32 s{S_T1}, s{S_WAVE}, 1")
    p.I(f"s_lshl_b32 s{S_T1}, s{S_T1}, 15")
    p.I(f"s_add_u32 s{S_T0}, s{S_T0}, s{S_T1}")
    p.I(f"s_add_u32 s{S_T0}, s{S_T0}, s{S_WOB}")
    p.I(f"s_lshr_b32 s{S_T1}, s{S_WAVE}, 1")
    p.I(f"s_lshl_b32 s{S_T1}, s{S_T1}, 6")
    p.I(f"s_add_u32 s{S_T0}, s{S_T0}, s{S_T1}")
    p.I(f"buffer_store_dwordx4 v[128:131], v16, {sr(SRD_OUT,4)}, s{S_T0} offen")
    p.I(f"buffer_store_dwordx4 v[132:135], v16, {sr(SRD_OUT,4)}, s{S_T0} offen offset:32")
    p.label("L_exit2")
    p.I("s_endpgm")
    return p


def main():
    out = sys.argv[1]
    k1, k2 = kernel1(), kernel2()
    s = "; @launch kernel=attn_kernel grid=(256,1,1) block=(512,1,1) lds=131072\n"
    s += "; @launch kernel=oproj_kernel grid=(256,1,1) block=(256,1,1) lds=131072\n"
    s += '.amdgcn_target "amdgcn-amd-amdhsa--gfx950"\n.text\n'
    s += kernel_header("attn_kernel") + k1.text()
    s += kernel_header("oproj_kernel") + k2.text()
    s += '.section .rodata,"a"\n'
    s += kernel_desc("attn_kernel", 256, 96, 256)
    s += kernel_desc("oproj_kernel", 256, 96, 256)
    open(out, "w").write(s)
    print("nops inserted:", k1.nops_inserted, k2.nops_inserted, "lines", len(k1.lines), len(k2.lines))


main()
```

```python
import sys, math, struct, os
from asmlib import Prog, vr, sr, kernel_header, kernel_desc

STAMP = int(os.environ.get("STAMP", "0"))
DT = int(os.environ.get("DT", "4"))
KVFLAGS = os.environ.get("KVFLAGS", "nt")
CLASSES = eval(os.environ.get("CLASSES", "[(0,(0,8,0)),(4,(0,0,8))]"))
NCLS = len(CLASSES)
KNAME = "standalone__mha_block_cached__near_ridge_kernel"
if KVFLAGS == "-":
    KVFLAGS = ""

WS_PART = 16 << 20
WS_STAMP = 32 << 20
WS_F1 = 48 << 20
WS_F2 = 49 << 20


def f32bits(x):
    return struct.unpack("<I", struct.pack("<f", x))[0]


S_WAVE = 3
SRD_X, SRD_K, SRD_V, SRD_WQ, SRD_WO, SRD_OUT, SRD_WS, SRD_DBG = 8, 12, 16, 20, 24, 28, 32, 4
S_B, S_H, S_T0, S_T1, S_T2, S_T3 = 36, 37, 38, 39, 56, 57
S_HEADCNT = 58
S_XBASE, S_WQBASE, S_KVBASE, S_OBASE = 59, 60, 61, 62
S_HG = 63
S_RET = 64
S_SCALE, S_THR = 66, 67
S_M0B = 68
S_P = 69
S_CLS = 70
S_BL = 71
S_F = 40
S_FLAG = 46
S_G = 47
S_C0 = 48
S_WOB = 49
S_OINB = 50
S_SPIN = 51
S_EX = 52
S_STAMP = 72


def stamp(p, idx):
    if STAMP:
        p.raw(f"  s_memrealtime s[{S_STAMP+2*idx}:{S_STAMP+1+2*idx}]")


def stamp_store(p, n, kern):
    p.raw("  s_waitcnt lgkmcnt(0)")
    p.I(f"s_lshl_b32 s{S_T0}, s2, 8")
    p.I(f"s_add_u32 s{S_T0}, s{S_T0}, {WS_STAMP + kern*65536}")
    p.I("v_mov_b32 v30, 0")
    for i in range(n):
        p.I(f"v_mov_b32 v32, s{S_STAMP+2*i}")
        p.I(f"v_mov_b32 v33, s{S_STAMP+1+2*i}")
        p.I(f"buffer_store_dwordx2 v[32:33], v30, {sr(SRD_WS,4)}, s{S_T0} offen offset:{8*i}")
        p.nop(2)


def prologue(p, nwg):
    p.I(f"s_cmp_ge_u32 s2, {nwg}")
    p.I("s_cbranch_scc1 L_exit")
    p.I("s_load_dwordx8 s[40:47], s[0:1], 0")
    p.I("s_load_dwordx8 s[48:55], s[0:1], 32")
    p.I("v_lshrrev_b32 v1, 6, v0")
    p.I(f"v_readfirstlane_b32 s{S_WAVE}, v1")
    p.I("v_and_b32 v0, 63, v0")
    p.I(f"s_bfe_u32 s{S_BL}, s2, {(3 << 16) | 3}")
    p.I(f"s_and_b32 s{S_T0}, s2, 1")
    p.I(f"s_lshl_b32 s{S_T0}, s{S_T0}, 3")
    p.I(f"s_add_u32 s{S_B}, s{S_T0}, s{S_BL}")
    p.I(f"s_bfe_u32 s{S_HG}, s2, {(2 << 16) | 1}")
    p.I(f"s_lshr_b32 s{S_P}, s2, 6")
    p.I(f"s_lshl_b32 s{S_T0}, s{S_HG}, 3")
    p.I(f"s_add_u32 s{S_H}, s{S_T0}, s{S_P}")
    p.I(f"s_and_b32 s{S_CLS}, s{S_BL}, {NCLS-1}")
    p.raw("  s_waitcnt lgkmcnt(0)")
    for srd, src, size in ((SRD_X, 40, 2 << 20), (SRD_K, 42, 64 << 20), (SRD_V, 44, 64 << 20), (SRD_WQ, 46, 4 << 20),
                           (SRD_WO, 48, 4 << 20), (SRD_OUT, 50, 2 << 20), (SRD_DBG, 52, 256), (SRD_WS, 54, 256 << 20)):
        p.I(f"s_mov_b32 s{srd}, s{src}")
        p.I(f"s_and_b32 s{srd+1}, s{src+1}, 0xffff")
        p.I(f"s_mov_b32 s{srd+2}, {size}")
        p.I(f"s_mov_b32 s{srd+3}, 0x20000")


def slot_q(c):
    return [2, 4, 0][c % 3]


def slot_k(t):
    return (6 + t) % 10


def slot_v(t):
    return (4 + t) % 10


V_AK, V_AW, V_AV, V_AX, V_ST, V_MX, V_T = 2, 6, 8, 10, 14, 15, 1
V_FR = 16
NFR = 6
V_NEGM = 40
V_S = [56, 72]
V_Q = 88
V_P = 120
V_L = 248
V_SEL = 252
V_QACC = 120
V_X = [184, 200]
V_QFR = 16
NQFR = 12
V_RL = 40


class AddrSet:
    def __init__(self, p, regs):
        self.p, self.regs, self.hi = p, regs, 0

    def to(self, slot):
        hi = slot // 4
        if hi != self.hi:
            d = (hi - self.hi) * 65536
            for r in self.regs:
                if d > 0:
                    self.p.I(f"v_add_u32 v{r}, {d}, v{r}")
                else:
                    self.p.I(f"v_subrev_u32 v{r}, {-d}, v{r}")
            self.hi = hi
        return (slot % 4) * 16384


def tr_lane_base(p, dst, t1, t3):
    p.I(f"v_bfe_u32 v{t1}, v0, 2, 2")
    p.I(f"v_bfe_u32 v{dst}, v0, 3, 1")
    p.I(f"v_lshlrev_b32 v{dst}, 6, v{dst}")
    p.I(f"v_lshl_add_u32 v{dst}, v{t1}, 7, v{dst}")
    p.I(f"v_bfe_u32 v{t3}, v0, 4, 1")
    p.I(f"v_lshl_add_u32 v{dst}, v{t3}, 5, v{dst}")


def add_pi(p, dst, src, t3):
    p.I(f"v_and_b32 v{t3}, 1, v0")
    p.I(f"v_lshl_add_u32 v{dst}, v{t3}, 4, v{src}")
    p.I(f"v_bfe_u32 v{t3}, v0, 1, 1")
    p.I(f"v_lshl_add_u32 v{dst}, v{t3}, 3, v{dst}")


def lane_setup_A(p):
    t0, t1, t2, t3 = 16, 17, 18, 19
    p.I(f"v_lshrrev_b32 v{t0}, 5, v0")
    p.I(f"v_and_b32 v{t1}, 31, v0")
    p.I(f"v_bfe_u32 v{t2}, v0, 1, 3")
    p.I(f"v_xor_b32 v{t2}, v{t2}, v{t0}")
    p.I(f"v_lshlrev_b32 v{t2}, 4, v{t2}")
    p.I(f"v_lshrrev_b32 v{t3}, 2, v{t1}")
    p.I(f"v_lshlrev_b32 v{t3}, 10, v{t3}")
    p.I(f"v_and_b32 v20, 3, v{t1}")
    p.I(f"v_lshl_add_u32 v{t3}, v20, 7, v{t3}")
    p.I(f"v_add_u32 v{V_AK}, v{t3}, v{t2}")
    for i in range(1, 4):
        p.I(f"v_xor_b32 v{V_AK+i}, {i*32}, v{V_AK}")
    p.I(f"s_lshl_b32 s{S_T0}, s{S_WAVE}, 12")
    p.I(f"v_lshlrev_b32 v{t3}, 7, v{t1}")
    p.I(f"v_add3_u32 v{V_AX}, v{t3}, v{t2}, s{S_T0}")
    for i in range(1, 4):
        p.I(f"v_xor_b32 v{V_AX+i}, {i*32}, v{V_AX}")
    tr_lane_base(p, t2, t1, t3)
    p.I(f"v_and_b32 v{t3}, 3, v0")
    p.I(f"v_lshl_add_u32 v20, v{t3}, 3, v{t2}")
    p.I(f"v_lshl_add_u32 v{V_AV}, v{t0}, 9, v20")
    p.I(f"v_xor_b32 v{V_AV+1}, 64, v{V_AV}")
    add_pi(p, 20, t2, t3)
    p.I(f"v_lshl_add_u32 v{V_AW}, v{t0}, 11, v20")
    p.I(f"v_xor_b32 v{V_AW+1}, 64, v{V_AW}")
    p.I(f"v_lshlrev_b32 v{V_ST}, 4, v0")
    p.I(f"v_add_u32 v{V_ST}, s{S_T0}, v{V_ST}")
    p.I(f"v_bfe_u32 v{t1}, v0, 2, 1")
    p.I(f"v_bfe_u32 v{t2}, v0, 4, 1")
    p.I(f"v_cmp_eq_u32 vcc, v{t1}, v{t2}")
    p.I(f"v_mov_b32 v{t3}, 0x3f803f80")
    p.I(f"v_cndmask_b32 v{V_SEL}, 0, v{t3}, vcc")
    for i in range(1, 4):
        p.I(f"v_mov_b32 v{V_SEL+i}, v{V_SEL}")


class FragRing:
    def __init__(self, p, items, base, n):
        self.p, self.items, self.base, self.n = p, items, base, n
        self.issued = 0

    def reg(self, i):
        return self.base + 4 * (i % self.n)

    def issue_next(self):
        if self.issued >= len(self.items):
            return False
        i = self.issued
        self.items[i](self.reg(i))
        self.issued += 1
        return True


_lab = [0]


def foreign(p, sreg):
    _lab[0] += 1
    n = _lab[0]
    p.flush_hazards()
    p.label(f"L_fb{n}")
    p.I(f"s_cmp_eq_u32 s{sreg}, 0")
    p.I(f"s_cbranch_scc1 L_fbd{n}")
    p.I("s_barrier")
    p.I(f"s_sub_u32 s{sreg}, s{sreg}, 1")
    p.I(f"s_branch L_fb{n}")
    p.label(f"L_fbd{n}")


def flag_store(p, ev_off_sreg_expr):
    p.I(f"v_mov_b32 v{V_T}, 1")
    p.I(f"v_mov_b32 v{V_MX}, 0")
    p.I(f"s_mov_b64 {sr(S_EX,2)}, exec")
    p.I("s_mov_b64 exec, 1")
    p.I(f"buffer_store_dword v{V_T}, v{V_MX}, {sr(SRD_WS,4)}, s{ev_off_sreg_expr} offen sc1")
    p.I(f"s_mov_b64 exec, {sr(S_EX,2)}")


def gemm_step_reads(p, nfr_ahead):
    pass


def gen_A(p):
    lane_setup_A(p)
    p.I(f"s_mov_b32 s{S_SCALE}, {hex(f32bits(math.log2(math.e) / math.sqrt(128.0)))}")
    p.I(f"s_mov_b32 s{S_THR}, {hex(f32bits(20.0))}")
    p.I(f"s_mov_b32 s{S_HEADCNT}, 0")
    for i in range(3):
        p.I(f"s_mov_b32 s{S_F+i}, 0")
        p.I(f"s_mov_b32 s{S_F+3+i}, {CLASSES[0][1][i]}")
    for c in range(1, NCLS):
        p.I(f"s_cmp_eq_u32 s{S_CLS}, {c}")
        for i in range(3):
            p.I(f"s_cselect_b32 s{S_F+3+i}, {CLASSES[c][1][i]}, s{S_F+3+i}")
    p.I(f"s_lshl_b32 s{S_T0}, s{S_B}, 2")
    p.I(f"s_add_u32 s{S_T0}, s{S_T0}, s{S_HG}")
    p.I(f"s_lshl_b32 s{S_T0}, s{S_T0}, 11")
    p.I(f"s_lshl_b32 s{S_T1}, s{S_WAVE}, 7")
    p.I(f"s_add_u32 s{S_T0}, s{S_T0}, s{S_T1}")
    p.I(f"s_lshl_b32 s{S_T1}, s{S_P}, 2")
    p.I(f"s_add_u32 s{S_T0}, s{S_T0}, s{S_T1}")
    p.I(f"s_add_u32 s{S_FLAG}, s{S_T0}, {WS_F1}")
    p.flush_hazards()
    p.label("L_A_head")
    p.reset_state()
    ak, aw, av, ax = AddrSet(p, [V_AK + i for i in range(4)]), AddrSet(p, [V_AW, V_AW + 1]), AddrSet(p, [V_AV, V_AV + 1]), AddrSet(p, [V_AX + i for i in range(4)])
    p.I(f"s_lshl_b32 s{S_T0}, s{S_B}, 5")
    p.I(f"s_add_u32 s{S_T0}, s{S_T0}, s{S_H}")
    p.I(f"s_lshl_b32 s{S_OBASE}, s{S_T0}, 15")

    def bar():
        p.I("s_barrier")

    p.I(f"s_cmp_eq_u32 s{S_HEADCNT}, 0")
    p.I("s_cbranch_scc1 L_A_nopub")
    p.wait(vm=0)
    p.I(f"s_add_u32 s{S_T0}, s{S_FLAG}, 512")
    flag_store(p, S_T0)
    p.label("L_A_nopub")
    foreign(p, S_F + 0)
    items = []

    def mk_w(c, s, mb):
        def f(reg):
            off = aw.to(slot_q(c) + 1) + s * 4096 + (mb // 2) * 512
            p.I(f"ds_read_b64_tr_b16 {vr(reg, 2)}, v{V_AW + mb % 2} offset:{off}")
            p.I(f"ds_read_b64_tr_b16 {vr(reg + 2, 2)}, v{V_AW + mb % 2} offset:{off + 1024}")
        return f

    for c in range(8):
        for s in range(4):
            for mb in range(4):
                items.append(mk_w(c, s, mb))
    ring = FragRing(p, items, V_QFR, NQFR)

    def open_pair(c):
        p.wait(lgkm=0)
        bar()
        off = ax.to(slot_q(c))
        for ss in range(4):
            p.I(f"ds_read_b128 {vr(V_X[c % 2] + 4 * ss, 4)}, v{V_AX + ss} offset:{off}")

    opened = 0
    open_pair(0)
    opened = 1
    for _ in range(5):
        ring.issue_next()
    AH = NQFR - 1
    idle = 0
    for fi in range(128):
        c, s, mb = fi // 16, (fi // 4) % 4, fi % 4
        acc = vr(V_QACC + 16 * mb, 16)
        cin = "0" if (c == 0 and s == 0) else acc
        p.I(f"v_mfma_f32_32x32x16_bf16 {acc}, {vr(ring.reg(fi), 4)}, {vr(V_X[c % 2] + 4 * s, 4)}, {cin}")
        for _ in range(2):
            if ring.issued < min(opened * 16, fi + 1 + AH, 128):
                ring.issue_next()
        if ring.issued == opened * 16 and opened < 8:
            idle += 1
            if idle >= 3:
                open_pair(opened)
                opened += 1
                idle = 0
    foreign(p, S_F + 1)
    items = []

    def mk_k(j, ks):
        def f(reg):
            t = j // 2
            if j % 2 == 0 and ks == 0:
                bar()
            off = ak.to(slot_k(t)) + (j % 2) * 8192 + (ks // 4) * 512
            p.I(f"ds_read_b128 {vr(reg, 4)}, v{V_AK + ks % 4} offset:{off}")
        return f

    for j in range(16):
        for ks in range(8):
            items.append(mk_k(j, ks))
    ring = FragRing(p, items, V_FR, NFR)
    for _ in range(NFR - 1):
        ring.issue_next()
    fi = 0
    for mb in range(4):
        for i in range(16):
            r = V_QACC + 16 * mb + i
            p.I(f"v_mul_f32 v{r}, s{S_SCALE}, v{r}")
        for i in range(8):
            r = V_QACC + 16 * mb + 2 * i
            p.I(f"v_cvt_pk_bf16_f32 v{V_Q + 8 * mb + i}, v{r}, v{r+1}")
    for i in range(4):
        p.I(f"v_mov_b32 v{V_L+i}, 0")

    def softmax_ops(i):
        S = V_S[i % 2]
        return [f"v_max3_f32 v{V_MX}, v{S}, v{S+1}, v{S+2}",
                f"v_max3_f32 v{V_T}, v{S+3}, v{S+4}, v{S+5}",
                f"v_max3_f32 v{V_MX}, v{V_MX}, v{S+6}, v{S+7}",
                f"v_max3_f32 v{V_T}, v{V_T}, v{S+8}, v{S+9}",
                f"v_max3_f32 v{V_MX}, v{V_MX}, v{S+10}, v{S+11}",
                f"v_max3_f32 v{V_T}, v{V_T}, v{S+12}, v{S+13}",
                f"v_max3_f32 v{V_MX}, v{V_MX}, v{S+14}, v{S+15}",
                f"v_max_f32 v{V_MX}, v{V_MX}, v{V_T}"]

    def exp_ops(i):
        S = V_S[i % 2]
        ops = []
        for k in range(0, 16, 2):
            ops.append(f"v_exp_f32 v{S+k}, v{S+k}")
            ops.append(f"v_exp_f32 v{S+k+1}, v{S+k+1}")
            if k >= 2:
                ops.append(f"v_cvt_pk_bf16_f32 v{V_P + 8*i + (k-2)//2}, v{S+k-2}, v{S+k-1}")
        ops.append(f"v_cvt_pk_bf16_f32 v{V_P + 8*i + 7}, v{S+14}, v{S+15}")
        return ops

    def lsum(i):
        for h in range(2):
            p.I(f"v_mfma_f32_16x16x32_bf16 {vr(V_L,4)}, {vr(V_SEL,4)}, {vr(V_P + 8*i + 4*h, 4)}, {vr(V_L,4)}")

    def qk_mfma(j, ks):
        nonlocal fi
        S = vr(V_S[j % 2], 16)
        cin = S if ks else ("0" if j == 0 else vr(V_NEGM, 16))
        p.I(f"v_mfma_f32_32x32x16_bf16 {S}, {vr(ring.reg(fi), 4)}, {vr(V_Q + 4 * ks, 4)}, {cin}")
        fi += 1
        ring.issue_next()

    stubs = []
    for ks in range(8):
        qk_mfma(0, ks)
    for o in softmax_ops(0):
        p.I(o)
    p.I(f"v_mov_b32 v{V_T}, v{V_MX}")
    p.I(f"v_permlane32_swap_b32 v{V_T}, v{V_MX}")
    p.I(f"v_max_f32 v{V_MX}, v{V_MX}, v{V_T}")
    p.I(f"v_ceil_f32 v{V_MX}, v{V_MX}")
    for i in range(16):
        p.I(f"v_sub_f32 v{V_NEGM+i}, 0, v{V_MX}")
    for i in range(16):
        p.I(f"v_sub_f32 v{V_S[0]+i}, v{V_S[0]+i}, v{V_MX}")

    vitems = []

    def mk_v(ph, kk, mb):
        def f(reg):
            t4, k8 = kk // 8, kk % 8
            if k8 == 0 and mb == 0:
                bar()
            off = av.to(slot_v(ph * 4 + t4)) + k8 * 2048
            p.I(f"ds_read_b64_tr_b16 {vr(reg, 2)}, v{V_AV + mb} offset:{off}")
            p.I(f"ds_read_b64_tr_b16 {vr(reg + 2, 2)}, v{V_AV + mb} offset:{off + 1024}")
        return f

    for ph in range(2):
        for kk in range(32):
            for mb in range(2):
                vitems.append(mk_v(ph, kk, mb))

    for j in range(1, 17):
        i = j - 1
        pre = softmax_ops(i) if i > 0 else []
        post = exp_ops(i)
        if j < 16:
            qk_mfma(j, 0)
            if i >= 1:
                lsum(i - 1)
            qk_mfma(j, 1)
            for o in pre[:4]:
                p.I(o)
            qk_mfma(j, 2)
            for o in pre[4:]:
                p.I(o)
            if pre:
                p.I(f"v_cmp_nge_f32 vcc, s{S_THR}, v{V_MX}")
            start = 0
            if not pre:
                for o in post[:4]:
                    p.I(o)
                start = 4
            qk_mfma(j, 3)
            if pre:
                p.I(f"s_cbranch_vccnz L_A_stub{i}")
                p.label(f"L_A_back{i}")
                stubs.append(i)
            rest = post[start:]
            per = (len(rest) + 4) // 5
            for g in range(5):
                for o in rest[g * per:(g + 1) * per]:
                    p.I(o)
                if g < 4:
                    qk_mfma(j, 4 + g)
        else:
            lsum(i - 1)
            for o in pre:
                p.I(o)
            p.I(f"v_cmp_nge_f32 vcc, s{S_THR}, v{V_MX}")
            p.I(f"s_cbranch_vccnz L_A_stub{i}")
            p.label(f"L_A_back{i}")
            stubs.append(i)
            for o in post:
                p.I(o)
            lsum(i)
    foreign(p, S_F + 2)
    ring = FragRing(p, vitems, V_FR, NFR)
    for _ in range(NFR - 1):
        ring.issue_next()
    p.I(f"v_rcp_f32 v{V_RL}, v{V_L}")
    fi = 0
    OACC = [V_S[0], V_Q]

    def epi_ops(ph):
        a = OACC[ph]
        ops = []
        for f in range(4):
            for i in range(8):
                ops.append(f"v_mul_f32 v{a+8*f+i}, v{V_RL}, v{a+8*f+i}")
            for i in range(4):
                ops.append(f"v_cvt_pk_bf16_f32 v{a+8*f+i}, v{a+8*f+2*i}, v{a+8*f+2*i+1}")
            if f == 0:
                ops.append(f"s_add_u32 s{S_T0}, s{S_OBASE}, {ph*16384}")
            ops.append(f"buffer_store_dwordx4 {vr(a+8*f,4)}, v{V_ST}, {sr(SRD_WS,4)}, s{S_T0} offen offset:{f*1024} sc1")
        return ops

    pend = []
    for ph in range(2):
        for kk in range(32):
            for mb in range(2):
                acc = vr(OACC[ph] + 16 * mb, 16)
                cin = "0" if kk == 0 else acc
                p.I(f"v_mfma_f32_32x32x16_bf16 {acc}, {vr(ring.reg(fi), 4)}, {vr(V_P + 4 * kk, 4)}, {cin}")
                fi += 1
                ring.issue_next()
                if ph == 1 and kk >= 2:
                    for _ in range(4):
                        if pend:
                            p.I(pend.pop(0))
            if ph == 1 and kk == 20:
                p.wait(vm=0)
                p.I(f"s_lshl_b32 s{S_T0}, s{S_HEADCNT}, 10")
                p.I(f"s_add_u32 s{S_T0}, s{S_T0}, s{S_FLAG}")
                flag_store(p, S_T0)
        if ph == 0:
            pend = epi_ops(0)
        else:
            for o in epi_ops(1):
                p.I(o)
    for a in (ak, aw, av, ax):
        a.to(0)
    p.I(f"s_add_u32 s{S_H}, s{S_H}, 4")
    p.I(f"s_add_u32 s{S_HEADCNT}, s{S_HEADCNT}, 1")
    for i in range(3):
        p.I(f"s_mov_b32 s{S_F+i}, s{S_F+3+i}")
    p.I(f"s_cmp_lt_u32 s{S_HEADCNT}, 2")
    p.flush_hazards()
    p.I("s_cbranch_scc1 L_A_head")
    p.I("s_barrier")
    p.wait(vm=0)
    p.I(f"s_add_u32 s{S_T0}, s{S_FLAG}, {3*512}")
    flag_store(p, S_T0)
    p.I("s_endpgm")

    for i in stubs:
        p.label(f"L_A_stub{i}")
        p.raw(f"  s_call_b64 {sr(S_RET,2)}, L_A_fix")
        p.raw(f"  s_branch L_A_back{i}")
    p.label("L_A_fix")
    p.reset_state()
    p.nop(16)
    p.I(f"v_mov_b32 v{V_T}, v{V_MX}")
    p.I(f"v_permlane32_swap_b32 v{V_T}, v{V_MX}")
    p.I(f"v_max3_f32 v{V_MX}, v{V_MX}, v{V_T}, 0")
    p.I(f"v_ceil_f32 v{V_MX}, v{V_MX}")
    for base in (V_S[0], V_S[1], V_NEGM):
        for k in range(16):
            p.I(f"v_sub_f32 v{base+k}, v{base+k}, v{V_MX}")
    p.I(f"v_exp_f32 v{V_MX}, -v{V_MX}")
    for k in range(4):
        p.I(f"v_mul_f32 v{V_L+k}, v{V_L+k}, v{V_MX}")
    for k in range(128):
        r = V_P + k
        p.I(f"v_lshlrev_b32 v{V_T}, 16, v{r}")
        p.I(f"v_and_b32 v{r}, 0xffff0000, v{r}")
        p.I(f"v_mul_f32 v{V_T}, v{V_T}, v{V_MX}")
        p.I(f"v_mul_f32 v{r}, v{r}, v{V_MX}")
        p.I(f"v_cvt_pk_bf16_f32 v{r}, v{V_T}, v{r}")
    p.nop(4)
    p.raw(f"  s_setpc_b64 {sr(S_RET,2)}")


GX, GW, GK, GV, GWO = 8, 12, 16, 20, 24
G_OV = 28
G_AWO = 29
G_POLL = 31
G_PADDR = 32
G_DPOLL = 33
G_ACC = 64
G_B = 128
NGB = 4
G_FR = 192
NGFR = 8


def gen_G_setup(p):
    SG = S_G
    p.reset_state()
    p.I(f"s_sub_u32 s{SG}, s{S_WAVE}, 4")
    p.I("v_lshrrev_b32 v1, 3, v0")
    p.I("v_and_b32 v2, 7, v0")
    p.I("v_bfe_u32 v3, v0, 4, 1")
    p.I("v_lshrrev_b32 v4, 4, v0")
    p.I("v_bfe_u32 v6, v0, 3, 2")
    p.I("v_lshrrev_b32 v7, 5, v0")
    p.I(f"s_lshl_b32 s{S_T0}, s{SG}, 15")
    for j in range(4):
        p.I(f"v_add_u32 v5, {4*j}, v4")
        p.I("v_and_b32 v5, 7, v5")
        p.I("v_xor_b32 v5, v5, v2")
        p.I("v_lshlrev_b32 v5, 4, v5")
        p.I(f"v_lshl_add_u32 v5, v1, 10, v5")
        p.I(f"v_add_u32 v5, {8*j*1024 - j*1024}, v5")
        p.I(f"v_add_u32 v{GX+j}, s{S_T0}, v5")
    p.I("v_lshlrev_b32 v34, 2, v3")
    p.I("v_xor_b32 v34, v34, v2")
    p.I("v_lshlrev_b32 v34, 4, v34")
    p.I("v_lshl_add_u32 v5, v6, 13, v34")
    p.I("v_lshl_add_u32 v5, v7, 7, v5")
    p.I(f"s_lshl_b32 s{S_T0}, s{SG}, 17")
    p.I(f"v_add_u32 v5, s{S_T0}, v5")
    for j in range(4):
        p.I(f"v_add_u32 v{GW+j}, {4*j*8192 - j*1024}, v5")
    p.I(f"s_lshl_b32 s{S_T0}, s{SG}, 12")
    for j in range(4):
        p.I(f"v_add_u32 v5, {2*j}, v3")
        p.I("v_xor_b32 v5, v5, v2")
        p.I("v_lshlrev_b32 v5, 4, v5")
        p.I("v_lshl_add_u32 v5, v6, 8, v5")
        p.I("v_lshl_add_u32 v5, v7, 7, v5")
        p.I(f"v_add_u32 v{GK+j}, s{S_T0}, v5")
    p.I(f"s_lshl_b32 s{S_XBASE}, s{S_B}, 17")
    p.I(f"s_lshl_b32 s{S_WQBASE}, s{S_H}, 8")
    p.I(f"s_lshl_b32 s{S_T0}, s{S_B}, 5")
    p.I(f"s_add_u32 s{S_T0}, s{S_T0}, s{S_H}")
    p.I(f"s_lshl_b32 s{S_KVBASE}, s{S_T0}, 17")
    p.I(f"s_lshl_b32 s{S_M0B}, s{SG}, 12")
    p.I(f"s_lshl_b32 s{S_T0}, s{S_P}, 1")
    p.I(f"s_add_u32 s{S_C0}, s{S_BL}, s{S_T0}")


def gen_G_setup2(p):
    SG = S_G
    p.I("v_lshl_add_u32 v5, v1, 8, v34")
    p.I(f"s_lshl_b32 s{S_T0}, s{SG}, 13")
    p.I(f"v_add_u32 v5, s{S_T0}, v5")
    for j in range(4):
        p.I(f"v_add_u32 v{GV+j}, {8*j*256 - j*1024}, v5")
    p.I("v_lshl_add_u32 v5, v6, 10, v34")
    p.I("v_lshl_add_u32 v5, v7, 7, v5")
    p.I(f"s_lshl_b32 s{S_T0}, s{SG}, 14")
    p.I(f"v_add_u32 v5, s{S_T0}, v5")
    for j in range(4):
        p.I(f"v_add_u32 v{GWO+j}, {4*j*1024 - j*1024}, v5")
    p.I(f"v_lshlrev_b32 v{G_OV}, 4, v0")
    p.I(f"v_and_b32 v5, 3, v0")
    p.I(f"v_lshlrev_b32 v{G_PADDR}, 2, v5")
    tr_lane_base(p, 35, 36, 37)
    add_pi(p, 35, 35, 37)
    p.I(f"v_lshl_add_u32 v{G_AWO}, v7, 10, v35")
    p.I(f"v_xor_b32 v{G_AWO+1}, 64, v{G_AWO}")
    p.I(f"s_lshl_b32 s{S_WOB}, s{S_HG}, 20")
    p.I(f"s_lshl_b32 s{S_T0}, s{S_P}, 8")
    p.I(f"s_add_u32 s{S_WOB}, s{S_WOB}, s{S_T0}")
    p.I(f"s_lshl_b32 s{S_OINB}, s{S_B}, 20")
    p.I(f"s_lshl_b32 s{S_T0}, s{S_HG}, 18")
    p.I(f"s_add_u32 s{S_OINB}, s{S_OINB}, s{S_T0}")
    p.I(f"s_add_u32 s{S_OINB}, s{S_OINB}, s{S_M0B}")
    p.I(f"s_lshl_b32 s{S_T0}, s{S_B}, 2")
    p.I(f"s_add_u32 s{S_T0}, s{S_T0}, s{S_HG}")
    p.I(f"s_lshl_b32 s{S_T0}, s{S_T0}, 11")
    p.I(f"s_lshl_b32 s{S_T1}, s{SG}, 7")
    p.I(f"s_add_u32 s{S_T0}, s{S_T0}, s{S_T1}")
    p.I(f"s_add_u32 s{S_FLAG}, s{S_T0}, {WS_F1}")


def gen_reset(p, tag):
    p.I(f"s_cmp_lg_u32 s{S_WAVE}, 4")
    p.I(f"s_cbranch_scc1 L_G_norst{tag}")
    p.I(f"s_lshl_b32 s{S_T0}, s{S_B}, 2")
    p.I(f"s_add_u32 s{S_T0}, s{S_T0}, s{S_HG}")
    p.I(f"s_lshl_b32 s{S_T0}, s{S_T0}, 11")
    p.I(f"s_lshl_b32 s{S_T1}, s{S_P}, 2")
    p.I(f"s_add_u32 s{S_T0}, s{S_T0}, s{S_T1}")
    p.I(f"s_add_u32 s{S_T0}, s{S_T0}, {WS_F1}")
    p.I(f"v_lshlrev_b32 v38, 7, v0")
    p.I(f"v_add_u32 v38, s{S_T0}, v38")
    p.I(f"s_lshl_b32 s{S_T0}, s{S_B}, 2")
    p.I(f"s_add_u32 s{S_T0}, s{S_T0}, s{S_P}")
    p.I(f"s_lshl_b32 s{S_T0}, s{S_T0}, 9")
    p.I(f"s_lshl_b32 s{S_T1}, s{S_HG}, 2")
    p.I(f"s_add_u32 s{S_T0}, s{S_T0}, s{S_T1}")
    p.I(f"s_add_u32 s{S_T0}, s{S_T0}, {WS_F2 - 16*128}")
    p.I(f"v_lshlrev_b32 v39, 7, v0")
    p.I(f"v_add_u32 v39, s{S_T0}, v39")
    p.I("v_cmp_gt_u32 vcc, 16, v0")
    p.I("v_cndmask_b32 v38, v39, v38, vcc")
    p.I("v_mov_b32 v39, 0")
    p.I(f"s_mov_b64 {sr(S_EX,2)}, exec")
    p.I("s_mov_b64 exec, 0xfffff")
    p.raw(f"  buffer_store_dword v39, v38, {sr(SRD_WS,4)}, 0 offen sc1")
    p.I(f"s_mov_b64 exec, {sr(S_EX,2)}")
    p.label(f"L_G_norst{tag}")


def gen_reset_done(p, tag):
    p.I(f"s_cmp_lg_u32 s{S_WAVE}, 4")
    p.I(f"s_cbranch_scc1 L_G_nord{tag}")
    p.I("v_mov_b32 v39, 1")
    p.I(f"s_lshl_b32 s{S_T0}, s{S_B}, 4")
    p.I(f"v_mov_b32 v38, s{S_T0}")
    p.I(f"s_mov_b64 {sr(S_EX,2)}, exec")
    p.I("s_mov_b64 exec, 1")
    p.raw(f"  buffer_atomic_add v39, v38, {sr(SRD_DBG,4)}, 0 offen sc1")
    p.I(f"s_mov_b64 exec, {sr(S_EX,2)}")
    p.label(f"L_G_nord{tag}")


class Ent:
    def __init__(self, kind, need, nops, emit, slot=None, gate=None, units=1):
        self.kind, self.need, self.nops, self.emit, self.slot, self.gate, self.units = kind, need, nops, emit, slot, gate, units
        self.free_after = -1


def gen_G_class(p, cls):
    npre, fb = CLASSES[cls]
    tag = f"c{cls}"
    awo = AddrSet(p, [G_AWO, G_AWO + 1])

    def dma(vo, srd, slot, fl):
        p.I(f"s_add_u32 m0, s{S_M0B}, {slot * 16384}")
        for j in range(4):
            p.I(f"buffer_load_dwordx4 v{vo+j}, {sr(srd,4)}, s{S_T0} offen offset:{j*1024} {fl} lds")

    def e_x(c, slot):
        def f():
            p.I(f"s_add_u32 s{S_T1}, s{S_C0}, {c}")
            p.I(f"s_and_b32 s{S_T1}, s{S_T1}, 7")
            p.I(f"s_lshl_b32 s{S_T0}, s{S_T1}, 7")
            p.I(f"s_add_u32 s{S_T0}, s{S_T0}, s{S_XBASE}")
            dma(GX, SRD_X, slot, "")
        return f

    def e_w(hd, c, slot):
        def f():
            p.I(f"s_add_u32 s{S_T1}, s{S_C0}, {c}")
            p.I(f"s_and_b32 s{S_T1}, s{S_T1}, 7")
            p.I(f"s_lshl_b32 s{S_T0}, s{S_T1}, 19")
            p.I(f"s_add_u32 s{S_T0}, s{S_T0}, s{S_WQBASE}")
            if hd:
                p.I(f"s_add_u32 s{S_T0}, s{S_T0}, 1024")
            dma(GW, SRD_WQ, slot, "")
        return f

    def e_kv(vo, srd, off, slot):
        def f():
            p.I(f"s_add_u32 s{S_T0}, s{S_KVBASE}, {off}")
            dma(vo, srd, slot, KVFLAGS)
        return f

    def kappa(seg, i):
        if seg == "O1":
            p.I(f"s_add_u32 s{S_T1}, s{S_BL}, {i}")
            p.I(f"s_and_b32 s{S_T1}, s{S_T1}, 7")
        else:
            p.I(f"s_add_u32 s{S_T1}, s{S_BL}, {i}")
            p.I(f"s_and_b32 s{S_T1}, s{S_T1}, 3")
            p.I(f"s_lshl_b32 s{S_T1}, s{S_T1}, 1")
            p.I(f"s_add_u32 s{S_T1}, s{S_T1}, {8 if seg == 'O2a' else 9}")

    def e_wo(seg, i, ent_holder):
        def f():
            kappa(seg, i)
            p.I(f"s_lshl_b32 s{S_T0}, s{S_T1}, 16")
            p.I(f"s_add_u32 s{S_T0}, s{S_T0}, s{S_WOB}")
            dma(GWO, SRD_WO, ent_holder[0].slot, "")
        return f

    def e_o(seg, i, buf):
        def f():
            kappa(seg, i)
            p.I(f"s_lshl_b32 s{S_T0}, s{S_T1}, 14")
            p.I(f"s_add_u32 s{S_T0}, s{S_T0}, s{S_OINB}")
            for j in range(4):
                p.I(f"buffer_load_dwordx4 {vr(G_B + 16*buf + 4*j, 4)}, v{G_OV}, {sr(SRD_WS,4)}, s{S_T0} offen offset:{j*1024} sc1")
        return f

    def poll_load(ev):
        p.I(f"s_add_u32 s{S_T0}, s{S_FLAG}, {ev*512}")
        p.I(f"buffer_load_dword v{G_POLL}, v{G_PADDR}, {sr(SRD_WS,4)}, s{S_T0} offen sc1")

    def e_poll(ev):
        return lambda: poll_load(ev)

    def dpoll_load():
        p.I(f"s_lshl_b32 s{S_T0}, s{S_B}, 4")
        p.I(f"v_mov_b32 v38, 0")
        p.I(f"buffer_load_dword v{G_DPOLL}, v38, {sr(SRD_DBG,4)}, s{S_T0} offen sc1")

    def check(reg, val, reload, name):
        p.I(f"v_cmp_ne_u32 vcc, {val}, v{reg}")
        p.I(f"s_cbranch_vccz L_ok_{name}")
        p.I(f"s_mov_b32 s{S_SPIN}, 0x20000")
        p.label(f"L_sp_{name}")
        saved = list(p.vm)
        p.I("s_sleep 1")
        reload()
        p.wait(vm=0)
        p.I(f"v_cmp_ne_u32 vcc, {val}, v{reg}")
        p.I(f"s_cbranch_vccz L_ok_{name}")
        p.I(f"s_sub_u32 s{S_SPIN}, s{S_SPIN}, 1")
        p.I(f"s_cmp_lg_u32 s{S_SPIN}, 0")
        p.I(f"s_cbranch_scc1 L_sp_{name}")
        p.label(f"L_ok_{name}")
        p.vm = saved

    steps = []
    ents = []
    slot_free = {s: -1 for s in range(10)}
    slot_last = {s: -100 for s in range(10)}
    bbuf_free = {s: -1 for s in range(NGB)}
    ocount = [0]
    o1_done = [0]

    def add_tile(kind, emitf, slot, lag):
        s = len(steps)
        e = Ent(kind, s, 4, emitf, slot=slot)
        e.free_after = slot_free[slot]
        slot_free[slot] = s + lag
        slot_last[slot] = s
        ents.append(e)
        return e

    def add_osteps(seg, idxs, avoid, single_barrier=False, gate=None):
        first = True
        s0 = len(steps)
        wos, os_ = [], []
        for i in idxs:
            s = s0 if single_barrier else len(steps)
            cand = sorted((slot_free[x], x) for x in range(10) if x not in avoid)
            slot = cand[0][1]
            holder = [None]
            e = Ent("wo", s, 4, e_wo(seg, i, holder), slot=slot)
            holder[0] = e
            e.free_after = slot_free[slot]
            slot_free[slot] = 10000 if single_barrier else s + 1
            buf = ocount[0] % NGB
            ocount[0] += 1
            eo = Ent("o", s, 4, e_o(seg, i, buf), gate=gate if first else None)
            eo.free_after = max(bbuf_free[buf], 23)
            bbuf_free[buf] = s + 1
            first = False
            if single_barrier:
                wos.append(e)
                os_.append(eo)
                eo.need = None
                steps_info.append((slot, buf))
            else:
                ents.append(e)
                ents.append(eo)
                steps.append(("G", [(slot, buf)]))
        return wos, os_

    for hd in range(2):
        def o1(n, avoid):
            if n:
                idxs = list(range(o1_done[0], o1_done[0] + n))
                add_osteps("O1", idxs, avoid, gate=("flag", 1) if o1_done[0] == 0 else None)
                o1_done[0] += n
        if hd:
            o1(fb[0], {2, 3, 4, 5})
        for c in range(8):
            add_tile("x", e_x(c, slot_q(c)), slot_q(c), 1)
            add_tile("w", e_w(hd, c, slot_q(c) + 1), slot_q(c) + 1, 1)
            steps.append(("A", None))
        if hd:
            o1(fb[1], {6, 7, 8, 9})
        for t in range(8):
            add_tile("k", e_kv(GK, SRD_K, hd * 4 * 131072 + t * 16384, slot_k(t)), slot_k(t), 2 if t < 7 else 1)
            steps.append(("A", None))
        if hd:
            o1(fb[2], {4, 5, 6, 7})
        for t in range(8):
            add_tile("v", e_kv(GV, SRD_V, hd * 4 * 131072 + (t % 4) * 32768 + (t // 4) * 128, slot_v(t)), slot_v(t), 2 if t < 7 else 1)
            steps.append(("A", None))
    assert o1_done[0] == 8
    n_main = len(steps)
    steps_info = []
    wosa, osa = add_osteps("O2a", range(4), set(), single_barrier=True)
    info_a = steps_info
    steps.append(("G2", None))
    steps_info = []
    wosb, osb = add_osteps("O2b", range(4), set(), single_barrier=True)
    info_b = steps_info
    steps.append(("G2", None))
    ents += wosa

    order = list(ents)
    if npre:
        ks = [e for e in order if e.kind == "k"][:npre]
        for e in ks:
            order.remove(e)
        order = ks + order
    gi = [i for i, e in enumerate(order) if e.gate][0]
    pe = Ent("poll", None, 1, e_poll(1), units=0)
    pe.pre = ("dcheck",)
    order.insert(max(gi - 3, 0), pe)
    de = Ent("dpoll", None, 1, dpoll_load, units=0)
    order.insert(26, de)

    issued = []
    ptr = [0]
    landed = [0]

    def inflight():
        return sum(e.units for e in issued[landed[0]:])

    def can_issue(s):
        if ptr[0] >= len(order):
            return False
        e = order[ptr[0]]
        if e.free_after > s:
            return False
        return inflight() + e.units <= DT or (e.need is not None and e.need <= s + 1)

    def issue_one():
        e = order[ptr[0]]
        if e.kind == "poll":
            check(G_DPOLL, 16, dpoll_load, f"d{tag}")
        if e.gate:
            check(G_POLL, 1, lambda: poll_load(e.gate[1]), f"f{e.gate[1]}{tag}")
        e.emit()
        issued.append(e)
        ptr[0] += 1

    def wait_for(s):
        idx = max((i for i, e in enumerate(issued) if e.need is not None and e.need <= s), default=-1)
        for e in order:
            if e.need is not None and e.need <= s:
                assert e in issued, (s, e.kind)
        n = sum(e.nops for e in issued[idx + 1:])
        landed[0] = max(landed[0], idx + 1)
        p.wait(vm=n)

    def compute(slot, buf, first, issue_cb):
        items = []
        for s4 in range(4):
            for mb in range(4):
                def f(reg, s4=s4, mb=mb):
                    off = awo.to(slot) + s4 * 4096 + (mb // 2) * 512
                    p.I(f"ds_read_b64_tr_b16 {vr(reg,2)}, v{G_AWO + mb % 2} offset:{off}")
                    p.I(f"ds_read_b64_tr_b16 {vr(reg+2,2)}, v{G_AWO + mb % 2} offset:{off+2048}")
                items.append(f)
        ring = FragRing(p, items, G_FR, NGFR)
        for _ in range(NGFR - 1):
            ring.issue_next()
        issue_cb()
        for fi in range(16):
            s4, mb = fi // 4, fi % 4
            acc = vr(G_ACC + 16 * mb, 16)
            cin = "0" if (first and s4 == 0) else acc
            p.I(f"v_mfma_f32_32x32x16_bf16 {acc}, {vr(ring.reg(fi),4)}, {vr(G_B + 16*buf + 4*s4, 4)}, {cin}")
            ring.issue_next()
            if fi in (3, 7):
                issue_cb()

    gen_reset(p, tag)
    stamp(p, 0)
    while can_issue(-1):
        issue_one()
    gen_G_setup2(p)
    firstO = True
    marks, nm = {}, 1
    prev = None
    for s in range(n_main):
        wait_for(s)
        p.I("s_barrier")
        kinds = [e.kind for e in ents if e.need == s]
        if kinds[0] != prev and nm < 11:
            stamp(p, nm)
            nm += 1
            if STAMP and steps[s][0] == "G":
                p.raw("  s_waitcnt lgkmcnt(0)")
        prev = kinds[0]
        if s == 0:
            gen_reset_done(p, tag)
        if steps[s][0] == "A":
            while can_issue(s):
                issue_one()
        else:
            slot, buf = steps[s][1][0]

            def cb():
                if can_issue(s):
                    issue_one()
            compute(slot, buf, firstO, cb)
            firstO = False
            while can_issue(s):
                issue_one()
    s = n_main - 1
    while ptr[0] < len(order):
        assert order[ptr[0]].free_after <= s, order[ptr[0]].kind
        issue_one()
    while nm < 9:
        stamp(p, nm)
        nm += 1
    stamp(p, 9)
    poll_load(2)
    check(G_POLL, 1, lambda: poll_load(2), f"f2{tag}")
    for e in osa:
        e.emit()
    p.I("s_barrier")
    for e in wosb:
        e.emit()
    poll_load(3)
    if STAMP:
        p.raw("  s_waitcnt lgkmcnt(0)")
    for (slot, buf) in info_a:
        compute(slot, buf, False, lambda: None)
    stamp(p, 10)
    check(G_POLL, 1, lambda: poll_load(3), f"f3{tag}")
    for e in osb:
        e.emit()
    stamp(p, 11)
    p.I("s_barrier")
    if STAMP:
        p.raw("  s_waitcnt lgkmcnt(0)")
    for (slot, buf) in info_b:
        compute(slot, buf, False, lambda: None)
    awo.to(0)
    p.flush_hazards()
    p.I("s_branch L_G_final")


def gen_G_final(p):
    p.label("L_G_final")
    p.reset_state()
    stamp(p, 12)
    SG = S_G
    p.I(f"s_lshl_b32 s{S_T0}, s{S_B}, 2")
    p.I(f"s_add_u32 s{S_T2}, s{S_T0}, s{S_P}")
    p.I(f"s_lshl_b32 s{S_T3}, s{S_T2}, 18")
    p.I(f"s_add_u32 s{S_T3}, s{S_T3}, {WS_PART}")
    p.I(f"s_lshl_b32 s{S_T2}, s{S_T2}, 9")
    p.I(f"s_add_u32 s{S_T2}, s{S_T2}, {WS_F2}")
    p.I("s_barrier")
    p.I(f"s_cmp_eq_u32 s{SG}, s{S_HG}")
    p.I("s_cbranch_scc1 L_G_own")
    p.I(f"s_lshl_b32 s{S_T0}, s{SG}, 16")
    p.I(f"s_lshl_b32 s{S_T1}, s{S_HG}, 14")
    p.I(f"s_add_u32 s{S_T0}, s{S_T0}, s{S_T1}")
    p.I(f"s_add_u32 s{S_T0}, s{S_T0}, s{S_T3}")
    for q in range(4):
        for j in range(4):
            p.I(f"buffer_store_dwordx4 {vr(G_ACC + 16*q + 4*j, 4)}, v{G_OV}, {sr(SRD_WS,4)}, s{S_T0} offen offset:{j*1024} sc1")
        if q < 3:
            p.I(f"s_add_u32 s{S_T0}, s{S_T0}, 4096")
    p.I("s_barrier")
    p.wait(vm=0)
    p.I(f"s_lshl_b32 s{S_T0}, s{SG}, 7")
    p.I(f"s_lshl_b32 s{S_T1}, s{S_HG}, 2")
    p.I(f"s_add_u32 s{S_T0}, s{S_T0}, s{S_T1}")
    p.I(f"s_add_u32 s{S_T0}, s{S_T0}, s{S_T2}")
    p.I("v_mov_b32 v38, 1")
    p.I("v_mov_b32 v39, 0")
    p.I(f"s_mov_b64 {sr(S_EX,2)}, exec")
    p.I("s_mov_b64 exec, 1")
    p.I(f"buffer_store_dword v38, v39, {sr(SRD_WS,4)}, s{S_T0} offen sc1")
    p.I(f"s_mov_b64 exec, {sr(S_EX,2)}")
    p.I("s_branch L_G_join")
    p.label("L_G_own")
    p.reset_state()
    for q in range(16):
        p.I(f"ds_write_b128 v{G_OV}, {vr(G_ACC + 4*q, 4)} offset:{q*1024}")
    p.wait(lgkm=0)
    p.I("s_barrier")
    p.label("L_G_join")
    p.reset_state()
    p.nop(2)
    p.I(f"v_add_u32 v38, s{S_M0B}, v{G_OV}")
    for j in range(4):
        p.I(f"ds_read_b128 {vr(G_B + 4*j, 4)}, v38 offset:{j*1024}")
    p.I(f"s_lshl_b32 s{S_T0}, s{S_HG}, 7")
    p.I(f"s_add_u32 s{S_T2}, s{S_T2}, s{S_T0}")
    p.I(f"s_lshl_b32 s{S_T0}, s{S_HG}, 2")
    p.I(f"v_cmp_ne_u32 {sr(S_EX,2)}, s{S_T0}, v{G_PADDR}")
    p.I(f"s_mov_b32 s{S_SPIN}, 0x20000")
    p.label("L_G_sp2")
    p.I(f"buffer_load_dword v{G_POLL}, v{G_PADDR}, {sr(SRD_WS,4)}, s{S_T2} offen sc1")
    p.I(f"v_cmp_ne_u32 vcc, 1, v{G_POLL}")
    p.I(f"s_and_b64 vcc, vcc, {sr(S_EX,2)}")
    p.I("s_cbranch_vccz L_G_ok2")
    p.I(f"s_sub_u32 s{S_SPIN}, s{S_SPIN}, 1")
    p.I(f"s_cmp_lg_u32 s{S_SPIN}, 0")
    p.I("s_cbranch_scc1 L_G_sp2")
    p.label("L_G_ok2")
    stamp(p, 13)
    p.I(f"s_lshl_b32 s{S_T0}, s{S_HG}, 16")
    p.I(f"s_add_u32 s{S_T3}, s{S_T3}, s{S_T0}")
    p.I(f"s_add_u32 s{S_T3}, s{S_T3}, s{S_M0B}")
    for i in range(3):
        p.I(f"s_add_u32 s{S_T0}, s{S_HG}, {i+1}")
        p.I(f"s_and_b32 s{S_T0}, s{S_T0}, 3")
        p.I(f"s_lshl_b32 s{S_T0}, s{S_T0}, 14")
        p.I(f"s_add_u32 s{S_T0}, s{S_T0}, s{S_T3}")
        for j in range(4):
            p.I(f"buffer_load_dwordx4 {vr(G_B + 16*(i+1) + 4*j, 4)}, v{G_OV}, {sr(SRD_WS,4)}, s{S_T0} offen offset:{j*1024} sc1")
    p.I("v_and_b32 v38, 31, v0")
    p.I("v_lshlrev_b32 v38, 10, v38")
    p.I("v_lshrrev_b32 v39, 5, v0")
    p.I("v_lshl_add_u32 v38, v39, 4, v38")
    p.I(f"s_lshl_b32 s{S_T0}, s{S_B}, 17")
    p.I(f"s_lshl_b32 s{S_T1}, s{S_HG}, 15")
    p.I(f"s_add_u32 s{S_T0}, s{S_T0}, s{S_T1}")
    p.I(f"s_lshl_b32 s{S_T1}, s{S_P}, 8")
    p.I(f"s_add_u32 s{S_T0}, s{S_T0}, s{S_T1}")
    p.I(f"s_lshl_b32 s{S_T1}, s{SG}, 6")
    p.I(f"s_add_u32 s{S_T0}, s{S_T0}, s{S_T1}")
    if STAMP:
        p.raw("  s_waitcnt lgkmcnt(0)")
    for i in range(3):
        for k in range(16):
            p.I(f"v_add_f32 v{G_B+k}, v{G_B+k}, v{G_B+16*(i+1)+k}")
    for k in range(8):
        p.I(f"v_cvt_pk_bf16_f32 v{G_B+k}, v{G_B+2*k}, v{G_B+2*k+1}")
    p.I(f"buffer_store_dwordx4 {vr(G_B,4)}, v38, {sr(SRD_OUT,4)}, s{S_T0} offen")
    p.I(f"buffer_store_dwordx4 {vr(G_B+4,4)}, v38, {sr(SRD_OUT,4)}, s{S_T0} offen offset:32")
    if STAMP:
        p.wait(vm=0)
        stamp(p, 14)
        p.I(f"s_cmp_lg_u32 s{S_WAVE}, 4")
        p.I("s_cbranch_scc1 L_exit")
        stamp_store(p, 15, 0)
    p.I("s_endpgm")


def main():
    out = sys.argv[1]
    p = Prog()
    prologue(p, 256)
    p.I(f"s_cmp_lt_u32 s{S_WAVE}, 4")
    p.I("s_cbranch_scc1 L_A")
    gen_G_setup(p)
    for c in range(1, NCLS):
        p.I(f"s_cmp_eq_u32 s{S_CLS}, {c}")
        p.I(f"s_cbranch_scc1 L_G_cls{c}")
    for c in range(NCLS):
        if c:
            p.label(f"L_G_cls{c}")
        p.reset_state()
        p.nop(2)
        gen_G_class(p, c)
    gen_G_final(p)
    p.label("L_A")
    p.reset_state()
    gen_A(p)
    p.label("L_exit")
    p.I("s_endpgm")
    s = "; @launch grid=(256,1,1) block=(512,1,1) lds=163840\n"
    s += '.amdgcn_target "amdgcn-amd-amdhsa--gfx950"\n.text\n'
    s += kernel_header(KNAME) + p.text()
    s += '.section .rodata,"a"\n'
    s += kernel_desc(KNAME, 256, 102, 256)
    open(out, "w").write(s)
    print("nops inserted:", p.nops_inserted, "lines", len(p.lines))


main()
```

```python
import re

_REG = re.compile(r"\b([vsa])\[(\d+):(\d+)\]|\b([vsa])(\d+)\b")


def regs_of(op):
    out = []
    for m in _REG.finditer(op):
        if m.group(1):
            out += [(m.group(1), i) for i in range(int(m.group(2)), int(m.group(3)) + 1)]
        else:
            out.append((m.group(4), int(m.group(5))))
    if re.search(r"\bvcc\b", op):
        out += [("s", 106), ("s", 107)]
    if re.search(r"\bvcc_lo\b", op):
        out.append(("s", 106))
    if re.search(r"\bvcc_hi\b", op):
        out.append(("s", 107))
    if re.search(r"\bm0\b", op):
        out.append(("s", 124))
    if re.search(r"\bexec\b", op):
        out += [("s", 126), ("s", 127)]
    return out


TRANS = ("v_exp_f32", "v_log_f32", "v_rcp_f32", "v_rsq_f32", "v_sqrt_f32", "v_sin_f32", "v_cos_f32")


def vr(base, n=1):
    return f"v{base}" if n == 1 else f"v[{base}:{base+n-1}]"


def sr(base, n=1):
    return f"s{base}" if n == 1 else f"s[{base}:{base+n-1}]"


class Prog:
    def __init__(self):
        self.lines = []
        self.reset_state()
        self.nops_inserted = 0

    def reset_state(self):
        self.t = 0
        self.valu_w = {}
        self.trans_w = {}
        self.mfma_w = {}
        self.mfma_c = {}
        self.valu_sw = {}
        self.m0_w = -100
        self.store_d = {}
        self.lgkm = []
        self.vm = []

    def raw(self, s):
        self.lines.append(s)

    def comment(self, s):
        self.lines.append("  ; " + s)

    def label(self, name):
        self.lines.append(name + ":")

    def nop(self, n):
        while n > 0:
            k = min(n, 16)
            self.lines.append(f"  s_nop {k-1}")
            self.t += k
            n -= k

    def flush_hazards(self):
        need = 0
        for r, (t, rng) in self.mfma_w.items():
            need = max(need, 12 - (self.t - t - 1))
        for r, t in self.mfma_c.items():
            need = max(need, 7 - (self.t - t - 1))
        for r, t in self.valu_w.items():
            need = max(need, 2 - (self.t - t - 1))
        for r, t in self.valu_sw.items():
            need = max(need, 5 - (self.t - t - 1))
        for r, t in self.store_d.items():
            need = max(need, 2 - (self.t - t - 1))
        need = max(need, 1 - (self.t - self.m0_w - 1))
        if need > 0:
            self.nop(need)

    def wait(self, vm=None, lgkm=None):
        parts = []
        if vm is not None:
            vm = min(vm, 63)
            parts.append(f"vmcnt({vm})")
            if len(self.vm) > vm:
                self.vm = self.vm[len(self.vm) - vm:] if vm else []
        if lgkm is not None:
            lgkm = min(lgkm, 15)
            parts.append(f"lgkmcnt({lgkm})")
            if len(self.lgkm) > lgkm:
                self.lgkm = self.lgkm[len(self.lgkm) - lgkm:] if lgkm else []
        self.lines.append("  s_waitcnt " + " ".join(parts))
        self.t += 1

    def touch(self, vregs):
        regs = set(("v", r) for r in vregs)
        wl = self._need_wait(self.lgkm, regs)
        wv = self._need_wait(self.vm, regs)
        if wl is not None or wv is not None:
            self.wait(vm=wv, lgkm=wl)

    def _need_wait(self, q, regs):
        idx = -1
        for i, d in enumerate(q):
            if d & regs:
                idx = i
        if idx < 0:
            return None
        return len(q) - 1 - idx

    def I(self, text):
        text = text.strip()
        mn, _, rest = text.partition(" ")
        ops = [o.strip() for o in self._split(rest)]
        reads, writes = set(), set()
        kind = "other"
        srcC = set()
        ab = set()
        if mn.startswith("v_mfma"):
            kind = "mfma"
            writes = set(regs_of(ops[0]))
            ab = set(regs_of(ops[1])) | set(regs_of(ops[2]))
            srcC = set(regs_of(ops[3]))
            reads = ab | srcC
        elif mn.startswith("v_"):
            kind = "valu"
            if mn.startswith("v_permlane") and "swap" in mn:
                reads = set(regs_of(ops[0])) | set(regs_of(ops[1]))
                writes = set(reads)
            elif mn.startswith("v_cmp"):
                writes = set(regs_of(ops[0]))
                for o in ops[1:]:
                    reads |= set(regs_of(o))
            elif mn == "v_nop":
                pass
            else:
                writes = set(regs_of(ops[0]))
                for o in ops[1:]:
                    reads |= set(regs_of(o))
                if mn.startswith(("v_fmac", "v_pk_fmac", "v_writelane", "v_dot2c")):
                    reads |= writes
                if mn.startswith(("v_add_co", "v_sub_co", "v_addc_co", "v_subb_co")):
                    writes |= set(regs_of(ops[1]))
        elif mn.startswith("ds_"):
            kind = "ds"
            if mn.startswith(("ds_read", "ds_bpermute", "ds_permute", "ds_swizzle")):
                writes = set(regs_of(ops[0]))
                for o in ops[1:]:
                    reads |= set(regs_of(o))
            else:
                for o in ops:
                    reads |= set(regs_of(o))
        elif mn.startswith(("buffer_", "global_")):
            kind = "vmem"
            is_lds = bool(re.search(r"\blds\b", rest)) or "_lds_" in mn
            if mn.startswith(("buffer_wbl2", "buffer_inv")):
                pass
            elif "load" in mn and not is_lds:
                writes = set(regs_of(ops[0]))
                for o in ops[1:]:
                    reads |= set(regs_of(o))
            elif "atomic" in mn and re.search(r"\bsc0\b", rest):
                for o in ops:
                    reads |= set(regs_of(o))
                writes = set(regs_of(ops[0]))
            else:
                for o in ops:
                    reads |= set(regs_of(o))
            if is_lds:
                reads.add(("s", 124))
        elif mn.startswith("s_"):
            kind = "salu"
            if mn.startswith(("s_cmp", "s_cbranch", "s_branch", "s_barrier", "s_setprio", "s_sleep", "s_endpgm", "s_setpc", "s_bitcmp")):
                for o in ops:
                    reads |= set(regs_of(o))
            else:
                if ops:
                    writes = set(regs_of(ops[0]))
                for o in ops[1:]:
                    reads |= set(regs_of(o))
        touched = reads | writes
        wl = self._need_wait(self.lgkm, touched)
        wv = self._need_wait(self.vm, touched)
        if wl is not None or wv is not None:
            self.wait(vm=wv, lgkm=wl)
        need = 0

        def since(t):
            return self.t - t - 1

        if kind == "mfma":
            drange = (min(r[1] for r in writes), max(r[1] for r in writes))
            for r in reads:
                if r in self.valu_w:
                    need = max(need, 2 - since(self.valu_w[r]))
            for r in ab:
                if r in self.mfma_w:
                    need = max(need, 12 - since(self.mfma_w[r][0]))
            if srcC:
                crange = (min(r[1] for r in srcC), max(r[1] for r in srcC))
                for r in srcC:
                    if r in self.mfma_w and self.mfma_w[r][1] != crange:
                        need = max(need, 10 - since(self.mfma_w[r][0]))
            for r in writes:
                if r in self.mfma_w and r not in srcC:
                    need = max(need, 10 - since(self.mfma_w[r][0]))
        elif kind == "valu":
            for r in touched:
                if r in self.mfma_w:
                    need = max(need, 12 - since(self.mfma_w[r][0]))
            for r in writes:
                if r in self.mfma_c:
                    need = max(need, 7 - since(self.mfma_c[r]))
                if r in self.store_d:
                    need = max(need, 2 - since(self.store_d[r]))
            for r in reads:
                if r in self.trans_w:
                    need = max(need, 1 - since(self.trans_w[r]))
                if r[0] == "s" and r in self.valu_sw:
                    lane_sel = mn.startswith(("v_readlane", "v_writelane"))
                    need = max(need, (4 if lane_sel else 2) - since(self.valu_sw[r]))
                if r in self.valu_w:
                    if mn.startswith("v_permlane") or "dpp" in text:
                        need = max(need, 2 - since(self.valu_w[r]))
                    if mn.startswith(("v_readfirstlane", "v_readlane")):
                        need = max(need, 1 - since(self.valu_w[r]))
        elif kind in ("ds", "vmem"):
            for r in touched:
                if r in self.mfma_w:
                    need = max(need, 12 - since(self.mfma_w[r][0]))
                if r[0] == "s" and r in self.valu_sw:
                    need = max(need, 5 - since(self.valu_sw[r]))
            for r in writes:
                if r in self.store_d:
                    need = max(need, 1 - since(self.store_d[r]))
                if r in self.mfma_c:
                    need = max(need, 7 - since(self.mfma_c[r]))
            if ("s", 124) in reads and kind == "vmem":
                need = max(need, 1 - since(self.m0_w))
            for r in reads:
                if r in self.trans_w:
                    need = max(need, 1 - since(self.trans_w[r]))
        elif kind == "salu":
            for r in reads:
                if r in self.valu_sw:
                    need = max(need, 1 - since(self.valu_sw[r]))
        if need > 0:
            self.nops_inserted += need
            self.nop(need)
        self.lines.append("  " + text)
        t = self.t
        self.t += 1
        for r in writes:
            self.valu_w.pop(r, None)
            self.trans_w.pop(r, None)
            self.mfma_w.pop(r, None)
            self.valu_sw.pop(r, None)
        if kind == "mfma":
            for r in writes:
                self.mfma_w[r] = (t, drange)
            for r in srcC:
                self.mfma_c[r] = t
        elif kind == "valu":
            for r in writes:
                if r[0] == "s":
                    self.valu_sw[r] = t
                else:
                    self.valu_w[r] = t
                    if mn.startswith(TRANS):
                        self.trans_w[r] = t
        elif kind == "ds":
            self.lgkm.append(set(writes))
            assert len(self.lgkm) <= 15 or True
        elif kind == "vmem":
            if not mn.startswith(("buffer_inv",)):
                self.vm.append(set(writes))
            if "store" in mn and ("x4" in mn or "x3" in mn):
                for r in regs_of(ops[0] if mn.startswith("buffer") else ops[1]):
                    self.store_d[r] = t
        elif kind == "salu":
            if ("s", 124) in writes:
                self.m0_w = t

    @staticmethod
    def _split(rest):
        out, cur, depth = [], "", 0
        for ch in rest:
            if ch in "[(":
                depth += 1
            elif ch in "])":
                depth -= 1
            if ch == "," and depth == 0:
                out.append(cur)
                cur = ""
            else:
                cur += ch
        if cur.strip():
            out.append(cur)
        return out

    def text(self):
        return "\n".join(self.lines) + "\n"


def kernel_header(name):
    return f".globl {name}\n.p2align 8\n.type {name},@function\n{name}:\n"


def kernel_desc(name, vgpr, sgpr, accum):
    return f""".p2align 6
.amdhsa_kernel {name}
  .amdhsa_next_free_vgpr {vgpr}
  .amdhsa_next_free_sgpr {sgpr}
  .amdhsa_accum_offset {accum}
  .amdhsa_group_segment_fixed_size 0
  .amdhsa_kernarg_size 64
  .amdhsa_user_sgpr_count 2
  .amdhsa_user_sgpr_kernarg_segment_ptr 1
  .amdhsa_system_sgpr_workgroup_id_x 1
.end_amdhsa_kernel
"""
```

```python
import sys, math, struct, os
from asmlib import Prog, vr, sr, kernel_header, kernel_desc

STAMP = int(os.environ.get("STAMP", "0"))
KVFLAGS = os.environ.get("KVFLAGS", "nt")
AUXFLAGS = os.environ.get("AUXFLAGS", "")
OFLAGS = os.environ.get("OFLAGS", "sc1")
STFLAGS = os.environ.get("STFLAGS", "sc1")
PRIO_A = int(os.environ.get("PRIO_A", "0"))
PRIO_G = int(os.environ.get("PRIO_G", "0"))
ROT = int(os.environ.get("ROT", "1"))
DT = int(os.environ.get("DT", "4"))
CLASSES = eval(os.environ.get("CLASSES", "[dict(npre=0,mid=8),dict(npre=4,mid=0)]"))
NCLS = len(CLASSES)
KD = 4
KNAME = "standalone__mha_block_cached__near_ridge_kernel"
if KVFLAGS == "-":
    KVFLAGS = ""

WS_PART = 16 << 20
WS_STAMP = 32 << 20
WS_F1 = 48 << 20
WS_F2 = 49 << 20
SPIN = "0x20000"
HSLOT = 2


def f32bits(x):
    return struct.unpack("<I", struct.pack("<f", x))[0]


QSCALE = hex(f32bits(math.log2(math.e) / math.sqrt(128.0)))
THR = hex(f32bits(40.0))

S_WAVE = 3
SRD_X, SRD_K, SRD_V, SRD_WQ, SRD_WO, SRD_OUT, SRD_WS, SRD_DBG = 8, 12, 16, 20, 24, 28, 32, 4
S_B, S_H, S_T0, S_T1, S_T2, S_T3 = 36, 37, 38, 39, 56, 57
S_HEADCNT = 58
S_XBASE, S_WQBASE, S_KVBASE, S_OBASE = 59, 60, 61, 62
S_HG = 63
S_RET = 64
S_SCALE, S_THR = 66, 67
S_M0B = 68
S_P = 69
S_CLS = 70
S_BL = 71
S_DS = 54
S_FLAG = 46
S_PUB = 45
S_G = 47
S_C0 = 48
S_WOB = 49
S_OINB = 50
S_SPIN = 51
S_EX = 52
S_FIRST = 44
S_STAMP = 72


def stamp(p, idx):
    if STAMP in (1, 2):
        p.raw(f"  {'s_memtime' if STAMP == 2 else 's_memrealtime'} s[{S_STAMP+2*idx}:{S_STAMP+1+2*idx}]")


def stamp_store(p, n, kern):
    p.raw("  s_waitcnt lgkmcnt(0)")
    p.I(f"s_lshl_b32 s{S_T0}, s2, 8")
    p.I(f"s_add_u32 s{S_T0}, s{S_T0}, {WS_STAMP + kern*65536}")
    p.I("v_mov_b32 v30, 0")
    for i in range(n):
        p.I(f"v_mov_b32 v32, s{S_STAMP+2*i}")
        p.I(f"v_mov_b32 v33, s{S_STAMP+1+2*i}")
        p.I(f"buffer_store_dwordx2 v[32:33], v30, {sr(SRD_WS,4)}, s{S_T0} offen offset:{8*i}")
        p.nop(2)


def prologue(p, nwg):
    p.I(f"s_cmp_ge_u32 s2, {nwg}")
    p.I("s_cbranch_scc1 L_exit")
    p.I("s_load_dwordx8 s[40:47], s[0:1], 0")
    p.I("s_load_dwordx8 s[48:55], s[0:1], 32")
    p.I("v_lshrrev_b32 v1, 6, v0")
    p.I(f"v_readfirstlane_b32 s{S_WAVE}, v1")
    p.I("v_and_b32 v0, 63, v0")
    p.I(f"s_bfe_u32 s{S_BL}, s2, {(3 << 16) | 3}")
    p.I(f"s_and_b32 s{S_T0}, s2, 1")
    p.I(f"s_lshl_b32 s{S_T0}, s{S_T0}, 3")
    p.I(f"s_add_u32 s{S_B}, s{S_T0}, s{S_BL}")
    p.I(f"s_bfe_u32 s{S_HG}, s2, {(2 << 16) | 1}")
    p.I(f"s_lshr_b32 s{S_P}, s2, 6")
    p.I(f"s_lshl_b32 s{S_T0}, s{S_HG}, 3")
    p.I(f"s_add_u32 s{S_H}, s{S_T0}, s{S_P}")
    p.I(f"s_and_b32 s{S_CLS}, s{S_BL}, {NCLS-1}")
    p.raw("  s_waitcnt lgkmcnt(0)")
    for srd, src, size in ((SRD_X, 40, 2 << 20), (SRD_WQ, 46, 4 << 20), (SRD_K, 42, 64 << 20), (SRD_V, 44, 64 << 20),
                           (SRD_WO, 48, 4 << 20), (SRD_OUT, 50, 2 << 20), (SRD_DBG, 52, 256), (SRD_WS, 54, 256 << 20)):
        p.I(f"s_mov_b32 s{srd}, s{src}")
        p.I(f"s_and_b32 s{srd+1}, s{src+1}, 0xffff")
        p.I(f"s_mov_b32 s{srd+2}, {size}")
        p.I(f"s_mov_b32 s{srd+3}, 0x20000")
    p.I(f"s_and_b32 s{S_G}, s{S_WAVE}, 3")
    p.I(f"s_lshl_b32 s{S_M0B}, s{S_G}, 12")
    p.I(f"s_lshl_b32 s{S_XBASE}, s{S_B}, 17")
    p.I(f"s_lshl_b32 s{S_WQBASE}, s{S_H}, 8")
    p.I(f"s_lshl_b32 s{S_T0}, s{S_B}, 5")
    p.I(f"s_add_u32 s{S_T0}, s{S_T0}, s{S_H}")
    p.I(f"s_lshl_b32 s{S_KVBASE}, s{S_T0}, 17")
    p.I(f"s_lshl_b32 s{S_OBASE}, s{S_T0}, 15")
    if ROT == 1:
        p.I(f"s_lshl_b32 s{S_T0}, s{S_P}, 1")
        p.I(f"s_add_u32 s{S_C0}, s{S_BL}, s{S_T0}")
    elif ROT == 2:
        p.I(f"s_add_u32 s{S_T0}, s{S_BL}, s{S_P}")
        p.I(f"s_and_b32 s{S_T0}, s{S_T0}, 1")
        p.I(f"s_lshl_b32 s{S_C0}, s{S_T0}, 2")
    else:
        p.I(f"s_mov_b32 s{S_C0}, 0")


def scalars2(p):
    p.I(f"s_lshl_b32 s{S_WOB}, s{S_HG}, 20")
    p.I(f"s_lshl_b32 s{S_T0}, s{S_P}, 8")
    p.I(f"s_add_u32 s{S_WOB}, s{S_WOB}, s{S_T0}")
    p.I(f"s_lshl_b32 s{S_OINB}, s{S_B}, 20")
    p.I(f"s_lshl_b32 s{S_T0}, s{S_HG}, 18")
    p.I(f"s_add_u32 s{S_OINB}, s{S_OINB}, s{S_T0}")
    p.I(f"s_add_u32 s{S_OINB}, s{S_OINB}, s{S_M0B}")
    p.I(f"s_lshl_b32 s{S_T0}, s{S_B}, 2")
    p.I(f"s_add_u32 s{S_T0}, s{S_T0}, s{S_HG}")
    p.I(f"s_lshl_b32 s{S_T0}, s{S_T0}, 11")
    p.I(f"s_lshl_b32 s{S_T1}, s{S_G}, 7")
    p.I(f"s_add_u32 s{S_T0}, s{S_T0}, s{S_T1}")
    p.I(f"s_add_u32 s{S_FLAG}, s{S_T0}, {WS_F1}")
    p.I(f"s_lshl_b32 s{S_T1}, s{S_P}, 2")
    p.I(f"s_add_u32 s{S_PUB}, s{S_FLAG}, s{S_T1}")
    p.I(f"s_mov_b32 s{S_SCALE}, {QSCALE}")


def slot_q(c):
    return [2, 4, 0][c % 3]


def slot_k(t):
    return (6 + t) % 10


def slot_v(t):
    return (4 + t) % 10


class AddrSet:
    def __init__(self, p, regs):
        self.p, self.regs, self.hi = p, regs, 0

    def to(self, slot):
        hi = slot // 4
        if hi != self.hi:
            d = (hi - self.hi) * 65536
            for r in self.regs:
                if d > 0:
                    self.p.I(f"v_add_u32 v{r}, {d}, v{r}")
                else:
                    self.p.I(f"v_subrev_u32 v{r}, {-d}, v{r}")
            self.hi = hi
        return (slot % 4) * 16384


def tr_lane_base(p, dst, t1, t3):
    p.I(f"v_bfe_u32 v{t1}, v0, 2, 2")
    p.I(f"v_bfe_u32 v{dst}, v0, 3, 1")
    p.I(f"v_lshlrev_b32 v{dst}, 6, v{dst}")
    p.I(f"v_lshl_add_u32 v{dst}, v{t1}, 7, v{dst}")
    p.I(f"v_bfe_u32 v{t3}, v0, 4, 1")
    p.I(f"v_lshl_add_u32 v{dst}, v{t3}, 5, v{dst}")


def add_pi(p, dst, src, t3):
    p.I(f"v_and_b32 v{t3}, 1, v0")
    p.I(f"v_lshl_add_u32 v{dst}, v{t3}, 4, v{src}")
    p.I(f"v_bfe_u32 v{t3}, v0, 1, 1")
    p.I(f"v_lshl_add_u32 v{dst}, v{t3}, 3, v{dst}")


class FragRing:
    def __init__(self, p, items, base, n):
        self.p, self.items, self.base, self.n = p, items, base, n
        self.issued = 0

    def reg(self, i):
        return self.base + 4 * (i % self.n)

    def issue_next(self):
        if self.issued >= len(self.items):
            return False
        i = self.issued
        self.items[i](self.reg(i))
        self.issued += 1
        return True


LX, LW, LK, LV, LWO, LOV, LPA, LPOLL, LDPOLL, LT = 0, 4, 8, 12, 16, 20, 21, 22, 23, 24


def loader_setup(p, R, which):
    t = lambda i: R + LT + i
    l8, m8, u1, l16, rr, hf, sw, tmp = [t(i) for i in range(8)]
    p.I(f"v_lshrrev_b32 v{l8}, 3, v0")
    p.I(f"v_and_b32 v{m8}, 7, v0")
    p.I(f"v_bfe_u32 v{u1}, v0, 4, 1")
    p.I(f"v_lshrrev_b32 v{l16}, 4, v0")
    p.I(f"v_bfe_u32 v{rr}, v0, 3, 2")
    p.I(f"v_lshrrev_b32 v{hf}, 5, v0")
    p.I(f"v_lshlrev_b32 v{sw}, 2, v{u1}")
    p.I(f"v_xor_b32 v{sw}, v{sw}, v{m8}")
    p.I(f"v_lshlrev_b32 v{sw}, 4, v{sw}")
    for w in which:
        if w == "x":
            p.I(f"s_lshl_b32 s{S_T0}, s{S_G}, 15")
            for j in range(4):
                p.I(f"v_add_u32 v{tmp}, {4*j}, v{l16}")
                p.I(f"v_and_b32 v{tmp}, 7, v{tmp}")
                p.I(f"v_xor_b32 v{tmp}, v{tmp}, v{m8}")
                p.I(f"v_lshlrev_b32 v{tmp}, 4, v{tmp}")
                p.I(f"v_lshl_add_u32 v{tmp}, v{l8}, 10, v{tmp}")
                p.I(f"v_add_u32 v{tmp}, {8*j*1024 - j*1024}, v{tmp}")
                p.I(f"v_add_u32 v{R+LX+j}, s{S_T0}, v{tmp}")
        elif w == "w":
            p.I(f"v_lshl_add_u32 v{tmp}, v{rr}, 13, v{sw}")
            p.I(f"v_lshl_add_u32 v{tmp}, v{hf}, 7, v{tmp}")
            p.I(f"s_lshl_b32 s{S_T0}, s{S_G}, 17")
            p.I(f"v_add_u32 v{tmp}, s{S_T0}, v{tmp}")
            for j in range(4):
                p.I(f"v_add_u32 v{R+LW+j}, {4*j*8192 - j*1024}, v{tmp}")
        elif w == "k":
            for j in range(4):
                p.I(f"v_add_u32 v{tmp}, {2*j}, v{u1}")
                p.I(f"v_xor_b32 v{tmp}, v{tmp}, v{m8}")
                p.I(f"v_lshlrev_b32 v{tmp}, 4, v{tmp}")
                p.I(f"v_lshl_add_u32 v{tmp}, v{rr}, 8, v{tmp}")
                p.I(f"v_lshl_add_u32 v{tmp}, v{hf}, 7, v{tmp}")
                p.I(f"v_add_u32 v{R+LK+j}, s{S_M0B}, v{tmp}")
        elif w == "v":
            p.I(f"v_lshl_add_u32 v{tmp}, v{l8}, 8, v{sw}")
            p.I(f"s_lshl_b32 s{S_T0}, s{S_G}, 13")
            p.I(f"v_add_u32 v{tmp}, s{S_T0}, v{tmp}")
            for j in range(4):
                p.I(f"v_add_u32 v{R+LV+j}, {8*j*256 - j*1024}, v{tmp}")
        elif w == "o":
            p.I(f"v_lshl_add_u32 v{tmp}, v{rr}, 10, v{sw}")
            p.I(f"v_lshl_add_u32 v{tmp}, v{hf}, 7, v{tmp}")
            p.I(f"s_lshl_b32 s{S_T0}, s{S_G}, 14")
            p.I(f"v_add_u32 v{tmp}, s{S_T0}, v{tmp}")
            for j in range(4):
                p.I(f"v_add_u32 v{R+LWO+j}, {4*j*1024 - j*1024}, v{tmp}")
            p.I(f"v_lshlrev_b32 v{R+LOV}, 4, v0")
            p.I(f"v_and_b32 v{tmp}, 3, v0")
            p.I(f"v_lshlrev_b32 v{R+LPA}, 2, v{tmp}")


class E:
    def __init__(self, kind, idx, need, slot=None, rel=None, gate=None):
        self.kind, self.idx, self.need, self.slot, self.rel, self.gate = kind, idx, need, slot, rel, gate
        self.free = -1
        self.at = None
        self.who = None


class Sched:
    def __init__(self, cfg):
        npre, mid = cfg.get("npre", 0), cfg.get("mid", 8)
        self.steps = []
        ents = []
        st = self.steps

        def phase(name, n, mk):
            for i in range(n):
                mk(i, len(st))
                st.append((name, i))

        phase("QA", 8, lambda c, s: ents.extend([E("x", c, s, slot_q(c), s + 1), E("w", c, s, slot_q(c) + 1, s + 1)]))
        phase("K", 8, lambda t, s: ents.append(E("k", t, s, slot_k(t), s + 2)))
        phase("V", 8, lambda t, s: ents.append(E("v", t, s, slot_v(t), s + (2 if t < 7 else 1))))
        phase("QB", 8, lambda c, s: ents.append(E("wb", c, s, None, s + 1)))
        self.hstep = len(st)

        def ostep(o):
            def mk(i, s):
                g = {0: 1, 8: 2, 12: 3}.get(o + i)
                ents.extend([E("wo", o + i, s, None, s + 1), E("o", o + i, s, None, s + 1, gate=g)])
            return mk
        ents.append(E("hand", 0, self.hstep - 1, HSLOT, None))
        ents.append(E("hand", 1, self.hstep - 1, HSLOT + 1, None))
        phase("O", mid, ostep(0))
        self.kb0 = len(st)
        for e in ents:
            if e.kind == "hand":
                e.rel = self.hstep + 1
        phase("K", 8, lambda t, s: ents.append(E("k", 8 + t, s, slot_k(t), s + 2)))
        phase("V", 8, lambda t, s: ents.append(E("v", 8 + t, s, slot_v(t), s + (2 if t < 7 else 1))))
        self.tail0 = len(st)
        phase("O", 16 - mid, ostep(mid))
        self.n = len(st)
        ents.sort(key=lambda e: e.need)
        sf = {x: -1 for x in range(10)}
        fixed = [e for e in ents if e.slot is not None]
        for e in ents:
            if e.slot is None:
                def cost(x):
                    eff = lambda f: self.kb0 + (f.idx - 8) // 2 if (f.kind == "k" and 8 <= f.idx < 8 + KD) else (f.need + 3 if f.kind == "hand" else f.need)
                    nxt = min((eff(f) for f in fixed if f.slot == x and f.need >= e.need), default=10 ** 6)
                    if sf[x] > e.need - 1:
                        return (1000, 0)
                    pen = max(0, (e.rel + 3) - nxt)
                    return (pen, sf[x])
                e.slot = min(range(10), key=cost)
            e.free = sf[e.slot]
            assert e.free <= e.need - (0 if e.kind == "hand" else 1), (e.kind, e.idx, e.need, e.free)
            sf[e.slot] = e.rel
        self.ents = ents
        order = [e for e in ents if e.kind != "hand"]
        ks = [e for e in order if e.kind == "k"][:npre]
        for e in ks:
            order.remove(e)
        order = ks + order
        self.order = order
        lastVA, lastVB = 23, self.tail0 - 1
        for e in order:
            if e.gate == 1:
                e.free = max(e.free, lastVA + 2)
            if e.gate == 2:
                e.free = max(e.free, lastVB)
            if e.gate == 3:
                e.free = max(e.free, lastVB + 1)
        self._plan()

    def consumer(self, s):
        return "A" if self.steps[s][0] in ("QA", "K", "V") else "G"

    def loader(self, s):
        if s < 0:
            return "G"
        return "G" if self.consumer(s) == "A" else "A"

    def _plan(self):
        order = list(self.order)
        issued = []
        landed = set()
        for s in range(-1, self.n):
            for e in issued:
                if e.need <= s:
                    for f in issued:
                        if f.who == e.who and issued.index(f) <= issued.index(e):
                            landed.add(f)
            while order:
                infl = sum(1 for e in issued if e not in landed)
                cand = None
                for i, e in enumerate(order[:12]):
                    blocked_gate = any(f.kind == "o" for f in order[:i])
                    if i > 0 and not (e.kind == "wo" and all(f.kind == "o" or f.kind == "wo" for f in order[:i])):
                        break
                    if e.kind == "o" and i > 0:
                        continue
                    if e.free <= s and not (e.gate and e.need > s + 2):
                        cand = e
                        break
                    if e.kind != "o":
                        break
                if cand is None:
                    break
                must = any(f.need <= s + 1 for f in order)
                if infl >= DT and not must:
                    break
                who = self.loader(s)
                if cand.kind == "k" and cand.idx >= 8:
                    if who == "A" and cand.idx - 8 >= KD:
                        break
                cand.at, cand.who = s, who
                issued.append(cand)
                order.remove(cand)
            if s == self.kb0 - 1:
                while order and order[0].kind == "k" and order[0].idx - 8 < KD:
                    e = order.pop(0)
                    assert e.free <= s
                    e.at, e.who = s, "A"
                    issued.append(e)
            for e in order:
                assert e.need > s + 1 or s == self.n - 1, ("not issued in time", e.kind, e.idx, e.need, s, e.free)
        assert not order
        self.issued = issued


class Loader:
    def __init__(self, p, R, tag):
        self.p, self.R, self.tag = p, R, tag
        self.cnt = 0
        self.mark = {}
        self.dchecked = False

    def I(self, t):
        if t.startswith("buffer_"):
            self.cnt += 1
        self.p.I(t)

    def kappa(self, o):
        p = self.p
        p.I(f"s_add_u32 s{S_T1}, s{S_BL}, {o}")
        if o < 8:
            p.I(f"s_and_b32 s{S_T1}, s{S_T1}, 7")
        else:
            p.I(f"s_and_b32 s{S_T1}, s{S_T1}, 3")
            p.I(f"s_lshl_b32 s{S_T1}, s{S_T1}, 1")
            p.I(f"s_add_u32 s{S_T1}, s{S_T1}, {8 if o < 12 else 9}")

    def spin(self, kind, ev):
        p, R = self.p, self.R
        name = f"{self.tag}{kind}{ev}"
        p.flush_hazards()
        p.I(f"s_mov_b32 s{S_SPIN}, {SPIN}")
        if kind == "d":
            p.I(f"s_lshl_b32 s{S_T0}, s{S_B}, 4")
            p.I(f"v_mov_b32 v{R+LT}, 0")
        else:
            p.I(f"s_add_u32 s{S_T0}, s{S_FLAG}, {ev*512}")
        p.label(f"L_sp_{name}")
        if kind == "d":
            self.I(f"buffer_load_dword v{R+LPOLL}, v{R+LT}, {sr(SRD_DBG,4)}, s{S_T0} offen sc1")
            p.wait(vm=0)
            p.I(f"v_cmp_gt_u32 vcc, 16, v{R+LPOLL}")
        else:
            self.I(f"buffer_load_dword v{R+LPOLL}, v{R+LPA}, {sr(SRD_WS,4)}, s{S_T0} offen sc1")
            p.wait(vm=0)
            p.I(f"v_cmp_ne_u32 vcc, 1, v{R+LPOLL}")
        p.I(f"s_cbranch_vccz L_ok_{name}")
        p.I(f"s_sub_u32 s{S_SPIN}, s{S_SPIN}, 1")
        p.I(f"s_cmp_lg_u32 s{S_SPIN}, 0")
        p.I(f"s_cbranch_scc1 L_sp_{name}")
        p.label(f"L_ok_{name}")

    def issue(self, e):
        p, R = self.p, self.R
        if e.gate:
            self.spin("f", e.gate)
        k = e.kind
        fl = AUXFLAGS
        if k in ("x", "w", "wb"):
            p.I(f"s_add_u32 s{S_T1}, s{S_C0}, {e.idx}")
            p.I(f"s_and_b32 s{S_T1}, s{S_T1}, 7")
            if k == "x":
                p.I(f"s_lshl_b32 s{S_DS}, s{S_T1}, 7")
                p.I(f"s_add_u32 s{S_DS}, s{S_DS}, s{S_XBASE}")
                vo, srd = [R + LX + j for j in range(4)], SRD_X
            else:
                p.I(f"s_lshl_b32 s{S_DS}, s{S_T1}, 19")
                p.I(f"s_add_u32 s{S_DS}, s{S_DS}, s{S_WQBASE}")
                if k == "wb":
                    p.I(f"s_add_u32 s{S_DS}, s{S_DS}, 1024")
                vo, srd = [R + LW + j for j in range(4)], SRD_WQ
        elif k in ("k", "v"):
            hd, t = e.idx // 8, e.idx % 8
            off = hd * 4 * 131072 + (t * 16384 if k == "k" else (t % 4) * 32768 + (t // 4) * 128)
            p.I(f"s_add_u32 s{S_DS}, s{S_KVBASE}, {off}")
            vo, srd = ([R + LK + j for j in range(4)], SRD_K) if k == "k" else ([R + LV + j for j in range(4)], SRD_V)
            fl = KVFLAGS
        elif k == "wo":
            self.kappa(e.idx)
            p.I(f"s_lshl_b32 s{S_DS}, s{S_T1}, 16")
            p.I(f"s_add_u32 s{S_DS}, s{S_DS}, s{S_WOB}")
            vo, srd = [R + LWO + j for j in range(4)], SRD_WO
        else:
            self.kappa(e.idx)
            p.I(f"s_lshl_b32 s{S_DS}, s{S_T1}, 14")
            p.I(f"s_add_u32 s{S_DS}, s{S_DS}, s{S_OINB}")
            vo, srd, fl = [R + LOV] * 4, SRD_WS, OFLAGS
        p.I(f"s_add_u32 m0, s{S_M0B}, {e.slot * 16384}")
        for j in range(4):
            self.I(f"buffer_load_dwordx4 v{vo[j]}, {sr(srd,4)}, s{S_DS} offen offset:{j*1024} {fl} lds")
        self.mark[e] = self.cnt

    def wait_for(self, s, **kw):
        need = [m for e, m in self.mark.items() if e.need == s]
        if need:
            self.p.wait(vm=self.cnt - max(need), **kw)
        elif kw:
            self.p.wait(**kw)


V_AK, V_AW, V_AV, V_AX, V_ST, V_MX, V_T = 2, 6, 8, 10, 14, 15, 1
V_M = 6
V_HQ = 10
V_FR = 16
NFR = 6
V_S = [40, 56, 72]
V_Q = 88
V_P = 120
V_L = 248
V_SEL = 252
V_QACC = 120
V_X = [184, 200]
V_QFR = 16
NQFR = 12
V_RL = 7
A_R = 120


def lane_setup_A(p):
    t0, t1, t2, t3 = 16, 17, 18, 19
    p.I(f"v_lshrrev_b32 v{t0}, 5, v0")
    p.I(f"v_and_b32 v{t1}, 31, v0")
    p.I(f"v_bfe_u32 v{t2}, v0, 1, 3")
    p.I(f"v_xor_b32 v{t2}, v{t2}, v{t0}")
    p.I(f"v_lshlrev_b32 v{t2}, 4, v{t2}")
    p.I(f"v_lshrrev_b32 v{t3}, 2, v{t1}")
    p.I(f"v_lshlrev_b32 v{t3}, 10, v{t3}")
    p.I(f"v_and_b32 v20, 3, v{t1}")
    p.I(f"v_lshl_add_u32 v{t3}, v20, 7, v{t3}")
    p.I(f"v_add_u32 v{V_AK}, v{t3}, v{t2}")
    for i in range(1, 4):
        p.I(f"v_xor_b32 v{V_AK+i}, {i*32}, v{V_AK}")
    p.I(f"v_lshlrev_b32 v{t3}, 7, v{t1}")
    p.I(f"v_add3_u32 v{V_AX}, v{t3}, v{t2}, s{S_M0B}")
    for i in range(1, 4):
        p.I(f"v_xor_b32 v{V_AX+i}, {i*32}, v{V_AX}")
    tr_lane_base(p, t2, t1, t3)
    p.I(f"v_and_b32 v{t3}, 3, v0")
    p.I(f"v_lshl_add_u32 v20, v{t3}, 3, v{t2}")
    p.I(f"v_lshl_add_u32 v{V_AV}, v{t0}, 9, v20")
    p.I(f"v_xor_b32 v{V_AV+1}, 64, v{V_AV}")
    add_pi(p, 20, t2, t3)
    p.I(f"v_lshl_add_u32 v{V_AW}, v{t0}, 11, v20")
    p.I(f"v_xor_b32 v{V_AW+1}, 64, v{V_AW}")
    p.I(f"v_lshlrev_b32 v{V_ST}, 4, v0")
    p.I(f"v_add_u32 v{V_ST}, s{S_M0B}, v{V_ST}")
    p.I(f"v_bfe_u32 v{t1}, v0, 2, 1")
    p.I(f"v_bfe_u32 v{t2}, v0, 4, 1")
    p.I(f"v_cmp_eq_u32 vcc, v{t1}, v{t2}")
    p.I(f"v_mov_b32 v{t3}, 0x3f803f80")
    p.I(f"v_cndmask_b32 v{V_SEL}, 0, v{t3}, vcc")
    for i in range(1, 4):
        p.I(f"v_mov_b32 v{V_SEL+i}, v{V_SEL}")


def flag_store(p, sreg, I=None):
    I = I or p.I
    p.I(f"v_mov_b32 v{V_T}, 1")
    p.I(f"v_mov_b32 v{V_MX}, 0")
    p.I(f"s_mov_b64 {sr(S_EX,2)}, exec")
    p.I("s_mov_b64 exec, 1")
    I(f"buffer_store_dword v{V_T}, v{V_MX}, {sr(SRD_WS,4)}, s{sreg} offen sc1")
    p.I(f"s_mov_b64 exec, {sr(S_EX,2)}")


def gemm_phase(p, nunits, open_unit, frag_item, mfma, ring_base, nfr, extra=None):
    items = [frag_item(c, s, mb) for c in range(nunits) for s in range(4) for mb in range(4)]
    ring = FragRing(p, items, ring_base, nfr)
    open_unit(0)
    opened = 1
    for _ in range(5):
        ring.issue_next()
    AH = nfr - 1
    idle = 0
    n = 16 * nunits
    for fi in range(n):
        c, s, mb = fi // 16, (fi // 4) % 4, fi % 4
        mfma(c, s, mb, ring.reg(fi))
        for _ in range(2):
            if ring.issued < min(opened * 16, fi + 1 + AH, n):
                ring.issue_next()
        if extra:
            extra(fi)
        if ring.issued == opened * 16 and opened < nunits:
            idle += 1
            if idle >= 3:
                open_unit(opened)
                opened += 1
                idle = 0


def gen_A(p, scheds):
    stamp(p, 0)
    lane_setup_A(p)
    scalars2(p)
    if PRIO_A:
        p.I(f"s_setprio {PRIO_A}")
    p.I(f"s_mov_b32 s{S_HEADCNT}, 0")
    ak, aw, av, ax = AddrSet(p, [V_AK + i for i in range(4)]), AddrSet(p, [V_AW, V_AW + 1]), AddrSet(p, [V_AV, V_AV + 1]), AddrSet(p, [V_AX + i for i in range(4)])

    def open_pair(c):
        p.wait(lgkm=0)
        p.I("s_barrier")
        if c == 0:
            stamp(p, 1)
        off = ax.to(slot_q(c))
        for ss in range(4):
            p.I(f"ds_read_b128 {vr(V_X[c % 2] + 4 * ss, 4)}, v{V_AX + ss} offset:{off}")

    def mk_w(c, s, mb):
        def f(reg):
            off = aw.to(slot_q(c) + 1) + s * 4096 + (mb // 2) * 512
            p.I(f"ds_read_b64_tr_b16 {vr(reg, 2)}, v{V_AW + mb % 2} offset:{off}")
            p.I(f"ds_read_b64_tr_b16 {vr(reg + 2, 2)}, v{V_AW + mb % 2} offset:{off + 1024}")
        return f

    def q_mfma(c, s, mb, reg):
        acc = vr(V_QACC + 16 * mb, 16)
        cin = "0" if (c == 0 and s == 0) else acc
        p.I(f"v_mfma_f32_32x32x16_bf16 {acc}, {vr(reg, 4)}, {vr(V_X[c % 2] + 4 * s, 4)}, {cin}")

    gemm_phase(p, 8, open_pair, mk_w, q_mfma, V_QFR, NQFR)

    def mk_k(j, ks):
        def f(reg):
            t = j // 2
            if j % 2 == 0 and ks == 0:
                if t < KD:
                    p.raw(f"  s_waitcnt vmcnt({4 * (KD - 1 - t)})")
                p.I("s_barrier")
            off = ak.to(slot_k(t)) + (j % 2) * 8192 + (ks // 4) * 512
            p.I(f"ds_read_b128 {vr(reg, 4)}, v{V_AK + ks % 4} offset:{off}")
        return f

    def mk_v(ph, kk, mb):
        def f(reg):
            t4, k8 = kk // 8, kk % 8
            if k8 == 0 and mb == 0:
                p.I("s_barrier")
            off = av.to(slot_v(ph * 4 + t4)) + k8 * 2048
            p.I(f"ds_read_b64_tr_b16 {vr(reg, 2)}, v{V_AV + mb} offset:{off}")
            p.I(f"ds_read_b64_tr_b16 {vr(reg + 2, 2)}, v{V_AV + mb} offset:{off + 1024}")
        return f

    kitems = [mk_k(j, ks) for j in range(16) for ks in range(8)]
    vitems = [mk_v(ph, kk, mb) for ph in range(2) for kk in range(32) for mb in range(2)]

    def k_prefetch():
        r = FragRing(p, kitems + vitems, V_FR, NFR)
        for _ in range(6):
            r.issue_next()
        return r

    ring = k_prefetch()
    ak_entry = ak.hi
    stamp(p, 2)
    p.I(f"s_lshl_b32 s{S_T0}, s{S_G}, 13")
    p.I(f"s_add_u32 s{S_T0}, s{S_T0}, {HSLOT*16384}")
    p.I(f"v_lshlrev_b32 v{V_HQ}, 4, v0")
    p.I(f"v_add_u32 v{V_HQ}, s{S_T0}, v{V_HQ}")
    for mb in range(4):
        for i in range(16):
            r = V_QACC + 16 * mb + i
            p.I(f"v_mul_f32 v{r}, s{S_SCALE}, v{r}")
        for i in range(8):
            r = V_QACC + 16 * mb + 2 * i
            p.I(f"v_cvt_pk_bf16_f32 v{V_Q + 8 * mb + i}, v{r}, v{r+1}")
    p.wait(lgkm=0)
    p.flush_hazards()
    p.label("L_A_head")
    p.reset_state()
    fi = 0
    for i in range(4):
        p.I(f"v_mov_b32 v{V_L+i}, 0")
    p.I(f"v_mov_b32 v{V_M}, 0")
    p.I(f"s_mov_b32 s{S_THR}, {THR}")
    p.I(f"s_mov_b32 s{S_FIRST}, 1")

    def max_ops(i):
        S = V_S[i % 3]
        a = (lambda r: f"|v{r}|") if i == 0 else (lambda r: f"v{r}")
        return [f"v_max3_f32 v{V_MX}, {a(S)}, {a(S+1)}, {a(S+2)}",
                f"v_max3_f32 v{V_T}, {a(S+3)}, {a(S+4)}, {a(S+5)}",
                f"v_max3_f32 v{V_MX}, v{V_MX}, {a(S+6)}, {a(S+7)}",
                f"v_max3_f32 v{V_T}, v{V_T}, {a(S+8)}, {a(S+9)}",
                f"v_max3_f32 v{V_MX}, v{V_MX}, {a(S+10)}, {a(S+11)}",
                f"v_max3_f32 v{V_T}, v{V_T}, {a(S+12)}, {a(S+13)}",
                f"v_max3_f32 v{V_MX}, v{V_MX}, {a(S+14)}, {a(S+15)}",
                f"v_max_f32 v{V_MX}, v{V_MX}, v{V_T}"]

    def exp_groups(i):
        S = V_S[i % 3]
        gs = []
        for k in range(8):
            g = [f"v_exp_f32 v{S+2*k}, v{S+2*k}", f"v_exp_f32 v{S+2*k+1}, v{S+2*k+1}"]
            if k >= 1:
                g.append(f"v_cvt_pk_bf16_f32 v{V_P + 8*i + k - 1}, v{S+2*k-2}, v{S+2*k-1}")
            gs.append(g)
        gs[7] = gs[7] + [("late", f"v_cvt_pk_bf16_f32 v{V_P + 8*i + 7}, v{S+14}, v{S+15}")]
        return gs

    def lsum(i, h):
        p.I(f"v_mfma_f32_16x16x32_bf16 {vr(V_L,4)}, {vr(V_SEL,4)}, {vr(V_P + 8*i + 4*h, 4)}, {vr(V_L,4)}")

    def reads():
        if fi % 2 == 0:
            ring.issue_next()
            ring.issue_next()

    OACC = [V_Q, V_S[0]]
    stubs = []
    egq = []
    pend = []
    for m in range(256):
        if m < 128:
            j, ks = m // 8, m % 8
            S = vr(V_S[j % 3], 16)
            if m % 2 == 0:
                p.touch([ring.reg(m + 1) + k for k in range(4)])
            p.I(f"v_mfma_f32_32x32x16_bf16 {S}, {vr(ring.reg(m), 4)}, {vr(V_Q + 4 * ks, 4)}, {S if ks else '0'}")
        else:
            ph, kk, mb = (m - 128) // 64, ((m - 128) // 2) % 32, m % 2
            acc = vr(OACC[ph] + 16 * mb, 16)
            if m % 2 == 0:
                p.touch([ring.reg(m + 1) + k for k in range(4)])
            p.I(f"v_mfma_f32_32x32x16_bf16 {acc}, {vr(ring.reg(m), 4)}, {vr(V_P + 4 * kk, 4)}, {'0' if kk == 0 else acc}")
        fi = m + 1
        j, ks = m // 8, m % 8
        i = j - 1
        if ks == 5 and 0 <= i < 16:
            p.I(f"s_cbranch_vccnz L_A_stub{i}")
            p.label(f"L_A_back{i}")
            if i == 0:
                p.I(f"s_mov_b32 s{S_FIRST}, 0")
            stubs.append(i)
            egq.extend(exp_groups(i))
        reads()
        late = []
        if egq:
            for o in egq.pop(0):
                if isinstance(o, tuple):
                    late.append(o[1])
                else:
                    p.I(o)
        if 0 <= i < 16 and ks in (2, 3, 4):
            mo = max_ops(i)
            sl = {2: mo[0:3], 3: mo[3:6], 4: mo[6:8]}[ks]
            for o in sl:
                p.I(o)
        for o in late:
            p.I(o)
        if 0 <= i < 16 and ks == 4:
            p.I(f"v_cmp_nge_f32 vcc, s{S_THR}, v{V_MX}")
        if 1 <= i <= 16 and ks == 6:
            lsum(i - 1, 0)
        if 2 <= i <= 17 and ks == 0:
            lsum(i - 2, 1)
        if m == 127:
            stamp(p, 3)
        if m == 128 + 30:
            p.I(f"v_rcp_f32 v{V_RL}, v{V_L}")
        if m == 191:
            stamp(p, 4)
            pend = None
        if m >= 192 + 4:
            if pend is None:
                pend = epi_ops(OACC, 0)
            for _ in range(4):
                if pend:
                    p.I(pend.pop(0))
        if m == 192 + 36:
            p.wait(vm=0)
            p.I(f"s_lshl_b32 s{S_T0}, s{S_HEADCNT}, 10")
            p.I(f"s_add_u32 s{S_T0}, s{S_T0}, s{S_PUB}")
            flag_store(p, S_T0)
    assert not egq and not pend
    stamp(p, 5)
    for o in epi_ops(OACC, 1):
        p.I(o)
    av.to(0)
    ak.to(0)
    p.I(f"s_cmp_eq_u32 s{S_HEADCNT}, 1")
    p.I("s_cbranch_scc1 L_A_tail")
    loader_setup(p, A_R, "wko")
    p.I(f"s_add_u32 s{S_OBASE}, s{S_OBASE}, {4*32768}")
    p.I(f"s_mov_b32 s{S_HEADCNT}, 1")
    if STAMP in (1, 2):
        p.raw("  s_waitcnt lgkmcnt(0)")
        for i in range(6):
            p.I(f"s_mov_b32 s{S_STAMP+12+i}, s{S_STAMP+6+i}")
    for c in range(1, NCLS):
        p.I(f"s_cmp_eq_u32 s{S_CLS}, {c}")
        p.I(f"s_cbranch_scc1 L_A_s1c{c}")
    for c, sc in enumerate(scheds):
        if c:
            p.label(f"L_A_s1c{c}")
        p.reset_state()
        p.nop(2)
        ld = Loader(p, A_R, f"a1c{c}")
        for s in range(24, sc.kb0):
            ld.wait_for(s, **({"lgkm": 0} if s == sc.hstep + 1 else {}))
            p.I("s_barrier")
            if s == 24:
                p.wait(vm=0)
                p.I(f"s_add_u32 s{S_T0}, s{S_PUB}, 512")
                flag_store(p, S_T0, ld.I)
            if s == sc.hstep:
                for q in range(8):
                    p.I(f"ds_read_b128 {vr(V_Q + 4*q, 4)}, v{V_HQ} offset:{q*1024}")
            for e in sc.issued:
                if e.who == "A" and e.at == s:
                    ld.issue(e)
        ak.hi = 0
        k_prefetch()
        if sc.hstep == sc.kb0:
            for q in range(8):
                p.I(f"ds_read_b128 {vr(V_Q + 4*q, 4)}, v{V_HQ} offset:{q*1024}")
        assert ak.hi == ak_entry
        p.wait(lgkm=0)
        p.flush_hazards()
        p.I("s_branch L_A_head")
    p.label("L_A_tail")
    p.reset_state()
    p.nop(2)
    loader_setup(p, A_R, "o")
    for c in range(1, NCLS):
        p.I(f"s_cmp_eq_u32 s{S_CLS}, {c}")
        p.I(f"s_cbranch_scc1 L_A_s2c{c}")
    for c, sc in enumerate(scheds):
        if c:
            p.label(f"L_A_s2c{c}")
        p.reset_state()
        p.nop(2)
        ld = Loader(p, A_R, f"a2c{c}")
        for s in range(sc.tail0, sc.n):
            ld.wait_for(s)
            p.I("s_barrier")
            if s == sc.tail0:
                p.wait(vm=0)
                p.I(f"s_add_u32 s{S_T0}, s{S_PUB}, {3*512}")
                flag_store(p, S_T0, ld.I)
                stamp(p, 9)
            for e in sc.issued:
                if e.who == "A" and e.at == s:
                    ld.issue(e)
        if STAMP in (1, 2):
            p.I(f"s_cmp_lg_u32 s{S_WAVE}, 0")
            p.I("s_cbranch_scc1 L_exit")
            stamp_store(p, 10, 1)
        p.I("s_endpgm")

    for i in stubs:
        p.label(f"L_A_stub{i}")
        p.raw(f"  s_call_b64 {sr(S_RET,2)}, L_A_fix{i % 3}")
        if i == 15:
            for k in range(32):
                p.raw(f"  v_mul_f32 v{OACC[0]+k}, v{OACC[0]+k}, v{V_MX}")
            p.raw("  s_nop 3")
        p.raw(f"  s_branch L_A_back{i}")
    for par in range(3):
        S = V_S[par]
        p.label(f"L_A_fix{par}")
        p.reset_state()
        p.nop(16)
        p.I(f"s_mov_b32 s{S_THR}, 0xff800000")
        for k in range(16):
            p.I(f"v_sub_f32 v{S+k}, v{S+k}, v{V_M}")
        p.I(f"v_max3_f32 v{V_MX}, v{S}, v{S+1}, v{S+2}")
        for k in range(3, 15, 2):
            p.I(f"v_max3_f32 v{V_MX}, v{V_MX}, v{S+k}, v{S+k+1}")
        p.I(f"v_max_f32 v{V_MX}, v{V_MX}, v{S+15}")
        p.I(f"v_mov_b32 v{V_T}, v{V_MX}")
        p.I(f"v_permlane32_swap_b32 v{V_T}, v{V_MX}")
        p.I(f"v_max_f32 v{V_MX}, v{V_MX}, v{V_T}")
        p.I(f"v_ceil_f32 v{V_MX}, v{V_MX}")
        p.I(f"s_cmp_eq_u32 s{S_FIRST}, 1")
        p.I(f"s_cbranch_scc1 L_A_fixa{par}")
        p.I(f"v_max_f32 v{V_MX}, 0, v{V_MX}")
        p.label(f"L_A_fixa{par}")
        p.nop(2)
        for k in range(16):
            p.I(f"v_sub_f32 v{S+k}, v{S+k}, v{V_MX}")
        p.I(f"s_branch L_A_fixc")
    p.label("L_A_fixc")
    p.reset_state()
    p.nop(2)
    p.I(f"v_add_f32 v{V_M}, v{V_M}, v{V_MX}")
    p.I(f"v_cmp_neq_f32 vcc, 0, v{V_MX}")
    p.I(f"v_exp_f32 v{V_MX}, -v{V_MX}")
    p.I("s_cbranch_vccz L_A_fixd")
    p.I(f"s_cmp_eq_u32 s{S_FIRST}, 1")
    p.I("s_cbranch_scc1 L_A_fixd")
    for k in range(4):
        p.I(f"v_mul_f32 v{V_L+k}, v{V_L+k}, v{V_MX}")
    for k in range(128):
        r = V_P + k
        p.I(f"v_lshlrev_b32 v{V_T}, 16, v{r}")
        p.I(f"v_and_b32 v{r}, 0xffff0000, v{r}")
        p.I(f"v_mul_f32 v{V_T}, v{V_T}, v{V_MX}")
        p.I(f"v_mul_f32 v{r}, v{r}, v{V_MX}")
        p.I(f"v_cvt_pk_bf16_f32 v{r}, v{V_T}, v{r}")
    p.label("L_A_fixd")
    p.nop(4)
    p.raw(f"  s_setpc_b64 {sr(S_RET,2)}")


OACC_FIX = 0


def epi_ops(OACC, ph):
    a = OACC[ph]
    ops = []
    for f in range(4):
        for i in range(8):
            ops.append(f"v_mul_f32 v{a+8*f+i}, v{V_RL}, v{a+8*f+i}")
        for i in range(4):
            ops.append(f"v_cvt_pk_bf16_f32 v{a+8*f+i}, v{a+8*f+2*i}, v{a+8*f+2*i+1}")
        if f == 0:
            ops.append(f"s_add_u32 s{S_T0}, s{S_OBASE}, {ph*16384}")
        ops.append(f"buffer_store_dwordx4 {vr(a+8*f,4)}, v{V_ST}, {sr(SRD_WS,4)}, s{S_T0} offen offset:{f*1024} {STFLAGS}")
    return ops


G_R = 8
G_AX = 1
G_AW = 5
G_AWO = 7
G_AO = G_R + LT + 7
G_ACC = 64
G_XF = 128
G_B = 128
G_W = [128, 144]
G_FR = 40
G_FR2 = 160


def gen_G_setup2(p):
    loader_setup(p, G_R, "vo")
    scalars2(p)
    tr_lane_base(p, 40, 41, 42)
    add_pi(p, 40, 40, 42)
    p.I("v_lshrrev_b32 v43, 5, v0")
    p.I(f"v_lshl_add_u32 v{G_AWO}, v43, 10, v40")
    p.I(f"s_and_b32 s{S_T0}, s{S_G}, 1")
    p.I(f"s_lshl_b32 s{S_T0}, s{S_T0}, 6")
    p.I(f"v_xor_b32 v{G_AWO}, s{S_T0}, v{G_AWO}")
    p.I(f"s_lshr_b32 s{S_T0}, s{S_G}, 1")
    p.I(f"s_lshl_b32 s{S_T0}, s{S_T0}, 9")
    p.I(f"v_add_u32 v{G_AWO}, s{S_T0}, v{G_AWO}")
    p.I(f"v_lshlrev_b32 v{G_AO}, 4, v0")
    p.I(f"v_lshl_add_u32 v{G_AW}, v43, 11, v40")
    p.I(f"v_xor_b32 v{G_AW+1}, 64, v{G_AW}")
    p.I(f"v_bfe_u32 v42, v0, 1, 3")
    p.I(f"v_xor_b32 v42, v42, v43")
    p.I(f"v_lshlrev_b32 v42, 4, v42")
    p.I(f"v_and_b32 v40, 31, v0")
    p.I(f"v_lshlrev_b32 v40, 7, v40")
    p.I(f"v_add3_u32 v{G_AX}, v40, v42, s{S_M0B}")
    for i in range(1, 4):
        p.I(f"v_xor_b32 v{G_AX+i}, {i*32}, v{G_AX}")


def gen_reset(p, tag):
    p.I(f"s_cmp_lg_u32 s{S_WAVE}, 4")
    p.I(f"s_cbranch_scc1 L_G_norst{tag}")
    p.I(f"s_lshl_b32 s{S_T0}, s{S_B}, 2")
    p.I(f"s_add_u32 s{S_T0}, s{S_T0}, s{S_HG}")
    p.I(f"s_lshl_b32 s{S_T0}, s{S_T0}, 11")
    p.I(f"s_lshl_b32 s{S_T1}, s{S_P}, 2")
    p.I(f"s_add_u32 s{S_T0}, s{S_T0}, s{S_T1}")
    p.I(f"s_add_u32 s{S_T0}, s{S_T0}, {WS_F1}")
    p.I(f"v_lshlrev_b32 v48, 7, v0")
    p.I(f"v_add_u32 v48, s{S_T0}, v48")
    p.I(f"s_lshl_b32 s{S_T0}, s{S_B}, 2")
    p.I(f"s_add_u32 s{S_T0}, s{S_T0}, s{S_P}")
    p.I(f"s_lshl_b32 s{S_T0}, s{S_T0}, 11")
    p.I(f"s_lshl_b32 s{S_T1}, s{S_HG}, 2")
    p.I(f"s_add_u32 s{S_T0}, s{S_T0}, s{S_T1}")
    p.I(f"s_add_u32 s{S_T0}, s{S_T0}, {WS_F2 - 16*128}")
    p.I(f"v_lshlrev_b32 v49, 7, v0")
    p.I(f"v_add_u32 v49, s{S_T0}, v49")
    p.I("v_cmp_gt_u32 vcc, 16, v0")
    p.I("v_cndmask_b32 v48, v49, v48, vcc")
    p.I("v_mov_b32 v49, 0")
    p.I(f"s_mov_b64 {sr(S_EX,2)}, exec")
    p.I("s_mov_b32 exec_hi, 0")
    p.raw(f"  buffer_store_dword v49, v48, {sr(SRD_WS,4)}, 0 offen sc1")
    p.I(f"s_mov_b64 exec, {sr(S_EX,2)}")
    p.label(f"L_G_norst{tag}")


def gen_reset_done(p, tag):
    p.I(f"s_cmp_lg_u32 s{S_WAVE}, 4")
    p.I(f"s_cbranch_scc1 L_G_nord{tag}")
    p.I("v_mov_b32 v49, 1")
    p.I(f"s_lshl_b32 s{S_T0}, s{S_B}, 4")
    p.I(f"v_mov_b32 v48, s{S_T0}")
    p.I(f"s_mov_b64 {sr(S_EX,2)}, exec")
    p.I("s_mov_b64 exec, 1")
    p.raw(f"  buffer_atomic_add v49, v48, {sr(SRD_DBG,4)}, 0 offen sc1")
    p.I(f"s_mov_b64 exec, {sr(S_EX,2)}")
    p.label(f"L_G_nord{tag}")


def gen_G_class(p, c, sc):
    tag = f"c{c}"
    ld = Loader(p, G_R, f"g{tag}")
    awo, ao = AddrSet(p, [G_AWO]), AddrSet(p, [G_AO])
    aw, ax = AddrSet(p, [G_AW, G_AW + 1]), AddrSet(p, [G_AX + i for i in range(4)])
    by = {(e.kind, e.idx): e for e in sc.ents}

    def issue_at(s):
        for e in sc.issued:
            if e.who == "G" and e.at == s:
                ld.issue(e)

    stamp(p, 0)
    gen_reset(p, tag)
    issue_at(-1)
    gen_G_setup2(p)
    if PRIO_G:
        p.I(f"s_setprio {PRIO_G}")
    nm = [1]

    def mark():
        if nm[0] < 10:
            stamp(p, nm[0])
            nm[0] += 1

    s = 0
    first_o = True
    while s < sc.n:
        name, idx = sc.steps[s]
        if name in ("QA", "K", "V"):
            ld.wait_for(s, **({"lgkm": 0} if (s <= 8 or s == sc.hstep) else {}))
            p.I("s_barrier")
            if idx == 0:
                mark()
            if name == "QA":
                off = ax.to(slot_q(idx))
                for ss in range(4):
                    p.I(f"ds_read_b128 {vr(G_XF + 16*idx + 4*ss, 4)}, v{G_AX + ss} offset:{off}")
                if idx == 1:
                    gen_reset_done(p, tag)
            if s == 16:
                p.I(f"s_lshl_b32 s{S_T0}, s{S_B}, 4")
                p.I(f"v_mov_b32 v48, 0")
                ld.I(f"buffer_load_dword v{G_R+LDPOLL}, v48, {sr(SRD_DBG,4)}, s{S_T0} offen sc1")
            if s == 21:
                p.I(f"v_cmp_gt_u32 vcc, 16, v{G_R+LDPOLL}")
                p.I(f"s_cbranch_vccz L_dok{tag}")
                t_keep, saved, ck = p.t, list(p.vm), ld.cnt
                ld.spin("d", 0)
                p.label(f"L_dok{tag}")
                p.t, p.vm, ld.cnt = t_keep, saved, ck
            issue_at(s)
            s += 1
        elif name == "QB":
            s0 = s

            def open_u(u):
                ld.wait_for(s0 + u, lgkm=0)
                p.I("s_barrier")
                if u == 0:
                    mark()

            def item(u, s4, mb):
                def f(reg):
                    off = aw.to(by[("wb", u)].slot) + s4 * 4096 + (mb // 2) * 512
                    p.I(f"ds_read_b64_tr_b16 {vr(reg,2)}, v{G_AW + mb % 2} offset:{off}")
                    p.I(f"ds_read_b64_tr_b16 {vr(reg+2,2)}, v{G_AW + mb % 2} offset:{off+1024}")
                return f

            def mf(u, s4, mb, reg):
                acc = vr(G_ACC + 16 * mb, 16)
                cin = "0" if (u == 0 and s4 == 0) else acc
                p.I(f"v_mfma_f32_32x32x16_bf16 {acc}, {vr(reg,4)}, {vr(G_XF + 16*u + 4*s4, 4)}, {cin}")
            gemm_phase(p, 8, open_u, item, mf, G_FR, 6)
            p.I(f"s_lshl_b32 s{S_T0}, s{S_G}, 13")
            p.I(f"s_add_u32 s{S_T0}, s{S_T0}, {HSLOT*16384}")
            p.I(f"v_add_u32 v48, s{S_T0}, v{G_R+LOV}")
            for mb in range(4):
                for i in range(16):
                    r = G_ACC + 16 * mb + i
                    p.I(f"v_mul_f32 v{r}, s{S_SCALE}, v{r}")
                for i in range(8):
                    r = G_ACC + 16 * mb + 2 * i
                    p.I(f"v_cvt_pk_bf16_f32 v{G_ACC + 16 * mb + i}, v{r}, v{r+1}")
                for h in range(2):
                    p.I(f"ds_write_b128 v48, {vr(G_ACC + 16*mb + 4*h, 4)} offset:{(2*mb+h)*1024}")
            s += 8
        else:
            s0 = s
            n = 0
            while s + n < sc.n and sc.steps[s + n][0] == "O":
                n += 1
            o0 = [e.idx for e in sc.ents if e.kind == "o" and e.need == s0][0]
            fz = first_o
            first_o = False

            def open_u(u):
                ld.wait_for(s0 + u, lgkm=0)
                p.I("s_barrier")
                if u == 0 or (o0 + u) in (8, 12):
                    mark()
                off = awo.to(by[("wo", o0 + u)].slot)
                for s4 in range(4):
                    r = G_W[u % 2] + 4 * s4
                    p.I(f"ds_read_b64_tr_b16 {vr(r,2)}, v{G_AWO} offset:{off + s4*4096}")
                    p.I(f"ds_read_b64_tr_b16 {vr(r+2,2)}, v{G_AWO} offset:{off + s4*4096 + 2048}")

            def item(u, s4, mb):
                def f(reg):
                    off = ao.to(by[("o", o0 + u)].slot) + mb * 4096 + s4 * 1024
                    p.I(f"ds_read_b128 {vr(reg,4)}, v{G_AO} offset:{off}")
                return f

            def mf(u, s4, mb, reg):
                acc = vr(G_ACC + 16 * mb, 16)
                cin = "0" if (fz and u == 0 and s4 == 0) else acc
                p.I(f"v_mfma_f32_32x32x16_bf16 {acc}, {vr(G_W[u % 2] + 4*s4, 4)}, {vr(reg,4)}, {cin}")
            gemm_phase(p, n, open_u, item, mf, G_FR2, 12)
            s += n
    while nm[0] < 10:
        mark()
    p.flush_hazards()
    p.I("s_branch L_G_final")


def gen_G_final(p):
    p.label("L_G_final")
    p.reset_state()
    stamp(p, 10)
    SG = S_G
    OV, PA, POLL = G_R + LOV, G_R + LPA, G_R + LPOLL
    p.I(f"s_lshl_b32 s{S_T0}, s{S_B}, 2")
    p.I(f"s_add_u32 s{S_T2}, s{S_T0}, s{S_P}")
    p.I(f"s_lshl_b32 s{S_T3}, s{S_T2}, 18")
    p.I(f"s_add_u32 s{S_T3}, s{S_T3}, {WS_PART}")
    p.I(f"s_add_u32 s{S_T3}, s{S_T3}, s{S_M0B}")
    p.I(f"s_lshl_b32 s{S_T2}, s{S_T2}, 11")
    p.I(f"s_add_u32 s{S_T2}, s{S_T2}, {WS_F2}")
    p.I(f"s_lshl_b32 s{S_T0}, s{SG}, 7")
    p.I(f"s_add_u32 s{S_T2}, s{S_T2}, s{S_T0}")
    p.I(f"s_lshl_b32 s{S_T1}, s{S_HG}, 14")
    p.I(f"s_add_u32 s{S_DS}, s{S_T3}, s{S_T1}")
    for d in range(4):
        p.I(f"s_cmp_eq_u32 s{S_HG}, {d}")
        p.I(f"s_cbranch_scc1 L_G_own{d}")
        for j in range(4):
            p.I(f"buffer_store_dwordx4 {vr(G_ACC + 16*d + 4*j, 4)}, v{OV}, {sr(SRD_WS,4)}, s{S_DS} offen offset:{j*1024} {STFLAGS}")
        p.I(f"s_branch L_G_nx{d}")
        p.label(f"L_G_own{d}")
        for k in range(16):
            p.I(f"v_mov_b32 v{G_B+k}, v{G_ACC+16*d+k}")
        p.label(f"L_G_nx{d}")
        if d < 3:
            p.I(f"s_add_u32 s{S_DS}, s{S_DS}, 65536")
    p.I(f"v_lshlrev_b32 v49, 7, v{PA}")
    p.I(f"s_lshl_b32 s{S_T1}, s{S_HG}, 2")
    p.I(f"s_add_u32 s{S_T0}, s{S_T2}, s{S_T1}")
    p.I("v_mov_b32 v48, 1")
    p.I(f"s_mov_b64 {sr(S_EX,2)}, exec")
    p.I("s_mov_b64 exec, 15")
    p.wait(vm=0)
    p.I(f"buffer_store_dword v48, v49, {sr(SRD_WS,4)}, s{S_T0} offen sc1")
    p.I(f"s_mov_b64 exec, {sr(S_EX,2)}")
    stamp(p, 11)
    p.I(f"s_lshl_b32 s{S_T0}, s{S_HG}, 9")
    p.I(f"s_add_u32 s{S_T2}, s{S_T2}, s{S_T0}")
    p.I(f"v_cmp_ne_u32 {sr(S_EX,2)}, s{S_T1}, v{PA}")
    p.I(f"s_mov_b32 s{S_SPIN}, {SPIN}")
    p.label("L_G_sp2")
    p.I(f"buffer_load_dword v{POLL}, v{PA}, {sr(SRD_WS,4)}, s{S_T2} offen sc1")
    p.I(f"v_cmp_ne_u32 vcc, 1, v{POLL}")
    p.I(f"s_and_b64 vcc, vcc, {sr(S_EX,2)}")
    p.I("s_cbranch_vccz L_G_ok2")
    p.I(f"s_sub_u32 s{S_SPIN}, s{S_SPIN}, 1")
    p.I(f"s_cmp_lg_u32 s{S_SPIN}, 0")
    p.I("s_cbranch_scc1 L_G_sp2")
    p.label("L_G_ok2")
    stamp(p, 12)
    p.I(f"s_lshl_b32 s{S_T0}, s{S_HG}, 16")
    p.I(f"s_add_u32 s{S_T3}, s{S_T3}, s{S_T0}")
    for i in range(3):
        p.I(f"s_add_u32 s{S_T0}, s{S_HG}, {i+1}")
        p.I(f"s_and_b32 s{S_T0}, s{S_T0}, 3")
        p.I(f"s_lshl_b32 s{S_T0}, s{S_T0}, 14")
        p.I(f"s_add_u32 s{S_T0}, s{S_T0}, s{S_T3}")
        for j in range(4):
            p.I(f"buffer_load_dwordx4 {vr(G_B + 16*(i+1) + 4*j, 4)}, v{OV}, {sr(SRD_WS,4)}, s{S_T0} offen offset:{j*1024} sc1")
    p.I("v_and_b32 v48, 31, v0")
    p.I("v_lshlrev_b32 v48, 10, v48")
    p.I("v_lshrrev_b32 v49, 5, v0")
    p.I("v_lshl_add_u32 v48, v49, 4, v48")
    p.I(f"s_lshl_b32 s{S_T0}, s{S_B}, 17")
    p.I(f"s_lshl_b32 s{S_T1}, s{S_HG}, 15")
    p.I(f"s_add_u32 s{S_T0}, s{S_T0}, s{S_T1}")
    p.I(f"s_lshl_b32 s{S_T1}, s{S_P}, 8")
    p.I(f"s_add_u32 s{S_T0}, s{S_T0}, s{S_T1}")
    p.I(f"s_lshl_b32 s{S_T1}, s{SG}, 6")
    p.I(f"s_add_u32 s{S_T0}, s{S_T0}, s{S_T1}")
    for i in range(3):
        for k in range(16):
            p.I(f"v_add_f32 v{G_B+k}, v{G_B+k}, v{G_B+16*(i+1)+k}")
    for k in range(8):
        p.I(f"v_cvt_pk_bf16_f32 v{G_B+k}, v{G_B+2*k}, v{G_B+2*k+1}")
    p.I(f"buffer_store_dwordx4 {vr(G_B,4)}, v48, {sr(SRD_OUT,4)}, s{S_T0} offen")
    p.I(f"buffer_store_dwordx4 {vr(G_B+4,4)}, v48, {sr(SRD_OUT,4)}, s{S_T0} offen offset:32")
    if STAMP in (1, 2):
        p.wait(vm=0)
        stamp(p, 13)
        p.I(f"s_cmp_lg_u32 s{S_WAVE}, 4")
        p.I("s_cbranch_scc1 L_exit")
        stamp_store(p, 14, 0)
    p.I("s_endpgm")


def main():
    out = sys.argv[1]
    scheds = [Sched(c) for c in CLASSES]
    if os.environ.get("SHOW"):
        for sc in scheds:
            print(" ".join(f"{e.kind}{e.idx}@{e.at}{e.who}>{e.need}[{e.slot}]" for e in sc.issued))
    p = Prog()
    prologue(p, 256)
    p.I(f"s_cmp_lt_u32 s{S_WAVE}, 4")
    p.I("s_cbranch_scc1 L_A")
    loader_setup(p, G_R, "xwk")
    for c in range(1, NCLS):
        p.I(f"s_cmp_eq_u32 s{S_CLS}, {c}")
        p.I(f"s_cbranch_scc1 L_G_cls{c}")
    for c in range(NCLS):
        if c:
            p.label(f"L_G_cls{c}")
        p.reset_state()
        p.nop(2)
        gen_G_class(p, c, scheds[c])
    gen_G_final(p)
    p.label("L_A")
    p.reset_state()
    gen_A(p, scheds)
    p.label("L_exit")
    p.I("s_endpgm")
    s = "; @launch grid=(256,1,1) block=(512,1,1) lds=163840\n"
    s += '.amdgcn_target "amdgcn-amd-amdhsa--gfx950"\n.text\n'
    s += kernel_header(KNAME) + p.text()
    s += '.section .rodata,"a"\n'
    s += kernel_desc(KNAME, 256, 102, 256)
    open(out, "w").write(s)
    print("nops inserted:", p.nops_inserted, "lines", len(p.lines))


main()
```

```python
import sys, math, struct, os
from asmlib import Prog, vr, sr, kernel_header, kernel_desc

STAMP = int(os.environ.get("STAMP", "0"))
KVFLAGS = os.environ.get("KVFLAGS", "nt")
AUXFLAGS = os.environ.get("AUXFLAGS", "")
OFLAGS = os.environ.get("OFLAGS", "sc1")
STFLAGS = os.environ.get("STFLAGS", "sc1")
PRIO_A = int(os.environ.get("PRIO_A", "0"))
PRIO_G = int(os.environ.get("PRIO_G", "0"))
ROT = int(os.environ.get("ROT", "1"))
DT = int(os.environ.get("DT", "4"))
CLASSES = eval(os.environ.get("CLASSES", "[dict(npre=0,qb=1,mid=8),dict(npre=0,qb=0,mid=0)]"))
NCLS = len(CLASSES)
KD = int(os.environ.get("KD", "4"))
GLEAD = int(os.environ.get("GLEAD", "2"))
PER = int(os.environ.get("PER", "3"))
KEARLY = int(os.environ.get("KEARLY", "0"))
KNAME = "standalone__mha_block_cached__near_ridge_kernel"
if KVFLAGS == "-":
    KVFLAGS = ""

WS_PART = 16 << 20
WS_STAMP = 32 << 20
WS_F1 = 48 << 20
WS_F2 = 49 << 20
SPIN = "0x20000"
HSLOT = 2


def f32bits(x):
    return struct.unpack("<I", struct.pack("<f", x))[0]


QSCALE = hex(f32bits(math.log2(math.e) / math.sqrt(128.0)))
THR = hex(f32bits(40.0))

S_WAVE = 3
SRD_X, SRD_K, SRD_V, SRD_WQ, SRD_WO, SRD_OUT, SRD_WS, SRD_DBG = 8, 12, 16, 20, 24, 28, 32, 4
S_B, S_H, S_T0, S_T1, S_T2, S_T3 = 36, 37, 38, 39, 56, 57
S_HEADCNT = 58
S_XBASE, S_WQBASE, S_KVBASE, S_OBASE = 59, 60, 61, 62
S_HG = 63
S_RET = 64
S_SCALE, S_THR = 66, 67
S_M0B = 68
S_P = 69
S_CLS = 70
S_BL = 71
S_DS = 54
S_FLAG = 46
S_PUB = 45
S_G = 47
S_C0 = 48
S_WOB = 49
S_OINB = 50
S_SPIN = 51
S_EX = 52
S_FIRST = 44
S_NEEDPUB = 43
S_STAMP = 72


def stamp(p, idx):
    if STAMP in (1, 2):
        p.raw(f"  {'s_memtime' if STAMP == 2 else 's_memrealtime'} s[{S_STAMP+2*idx}:{S_STAMP+1+2*idx}]")


def stamp_store(p, n, kern):
    p.raw("  s_waitcnt lgkmcnt(0)")
    p.I(f"s_lshl_b32 s{S_T0}, s2, 8")
    p.I(f"s_add_u32 s{S_T0}, s{S_T0}, {WS_STAMP + kern*65536}")
    p.I("v_mov_b32 v30, 0")
    for i in range(n):
        p.I(f"v_mov_b32 v32, s{S_STAMP+2*i}")
        p.I(f"v_mov_b32 v33, s{S_STAMP+1+2*i}")
        p.I(f"buffer_store_dwordx2 v[32:33], v30, {sr(SRD_WS,4)}, s{S_T0} offen offset:{8*i}")
        p.nop(2)


def prologue(p, nwg):
    p.I(f"s_cmp_ge_u32 s2, {nwg}")
    p.I("s_cbranch_scc1 L_exit")
    p.I("s_load_dwordx8 s[40:47], s[0:1], 0")
    p.I("s_load_dwordx8 s[48:55], s[0:1], 32")
    p.I("v_lshrrev_b32 v1, 6, v0")
    p.I(f"v_readfirstlane_b32 s{S_WAVE}, v1")
    p.I("v_and_b32 v0, 63, v0")
    p.I(f"s_bfe_u32 s{S_BL}, s2, {(3 << 16) | 3}")
    p.I(f"s_and_b32 s{S_T0}, s2, 1")
    p.I(f"s_lshl_b32 s{S_T0}, s{S_T0}, 3")
    p.I(f"s_add_u32 s{S_B}, s{S_T0}, s{S_BL}")
    p.I(f"s_bfe_u32 s{S_HG}, s2, {(2 << 16) | 1}")
    p.I(f"s_lshr_b32 s{S_P}, s2, 6")
    p.I(f"s_lshl_b32 s{S_T0}, s{S_HG}, 3")
    p.I(f"s_add_u32 s{S_H}, s{S_T0}, s{S_P}")
    p.I(f"s_and_b32 s{S_CLS}, s{S_BL}, {NCLS-1}")
    p.raw("  s_waitcnt lgkmcnt(0)")
    for srd, src, size in ((SRD_X, 40, 2 << 20), (SRD_WQ, 46, 4 << 20), (SRD_K, 42, 64 << 20), (SRD_V, 44, 64 << 20),
                           (SRD_WO, 48, 4 << 20), (SRD_OUT, 50, 2 << 20), (SRD_DBG, 52, 256), (SRD_WS, 54, 256 << 20)):
        p.I(f"s_mov_b32 s{srd}, s{src}")
        p.I(f"s_and_b32 s{srd+1}, s{src+1}, 0xffff")
        p.I(f"s_mov_b32 s{srd+2}, {size}")
        p.I(f"s_mov_b32 s{srd+3}, 0x20000")
    p.I(f"s_and_b32 s{S_G}, s{S_WAVE}, 3")
    p.I(f"s_lshl_b32 s{S_M0B}, s{S_G}, 12")
    p.I(f"s_lshl_b32 s{S_XBASE}, s{S_B}, 17")
    p.I(f"s_lshl_b32 s{S_WQBASE}, s{S_H}, 8")
    p.I(f"s_lshl_b32 s{S_T0}, s{S_B}, 5")
    p.I(f"s_add_u32 s{S_T0}, s{S_T0}, s{S_H}")
    p.I(f"s_lshl_b32 s{S_KVBASE}, s{S_T0}, 17")
    p.I(f"s_lshl_b32 s{S_OBASE}, s{S_T0}, 15")
    if ROT == 1:
        p.I(f"s_lshl_b32 s{S_T0}, s{S_P}, 1")
        p.I(f"s_add_u32 s{S_C0}, s{S_BL}, s{S_T0}")
    elif ROT == 2:
        p.I(f"s_add_u32 s{S_T0}, s{S_BL}, s{S_P}")
        p.I(f"s_and_b32 s{S_T0}, s{S_T0}, 1")
        p.I(f"s_lshl_b32 s{S_C0}, s{S_T0}, 2")
    else:
        p.I(f"s_mov_b32 s{S_C0}, 0")


def scalars2(p):
    p.I(f"s_lshl_b32 s{S_WOB}, s{S_HG}, 20")
    p.I(f"s_lshl_b32 s{S_T0}, s{S_P}, 8")
    p.I(f"s_add_u32 s{S_WOB}, s{S_WOB}, s{S_T0}")
    p.I(f"s_lshl_b32 s{S_OINB}, s{S_B}, 20")
    p.I(f"s_lshl_b32 s{S_T0}, s{S_HG}, 18")
    p.I(f"s_add_u32 s{S_OINB}, s{S_OINB}, s{S_T0}")
    p.I(f"s_add_u32 s{S_OINB}, s{S_OINB}, s{S_M0B}")
    p.I(f"s_lshl_b32 s{S_T0}, s{S_B}, 2")
    p.I(f"s_add_u32 s{S_T0}, s{S_T0}, s{S_HG}")
    p.I(f"s_lshl_b32 s{S_T0}, s{S_T0}, 11")
    p.I(f"s_lshl_b32 s{S_T1}, s{S_G}, 7")
    p.I(f"s_add_u32 s{S_T0}, s{S_T0}, s{S_T1}")
    p.I(f"s_add_u32 s{S_FLAG}, s{S_T0}, {WS_F1}")
    p.I(f"s_lshl_b32 s{S_T1}, s{S_P}, 2")
    p.I(f"s_add_u32 s{S_PUB}, s{S_FLAG}, s{S_T1}")
    p.I(f"s_mov_b32 s{S_SCALE}, {QSCALE}")


def slot_q(c):
    return [2, 4, 0][c % 3]


def slot_k(t):
    return (6 + t) % 10


def slot_v(t):
    return (4 + t) % 10


class AddrSet:
    def __init__(self, p, regs):
        self.p, self.regs, self.hi = p, regs, 0

    def to(self, slot):
        hi = slot // 4
        if hi != self.hi:
            d = (hi - self.hi) * 65536
            for r in self.regs:
                if d > 0:
                    self.p.I(f"v_add_u32 v{r}, {d}, v{r}")
                else:
                    self.p.I(f"v_subrev_u32 v{r}, {-d}, v{r}")
            self.hi = hi
        return (slot % 4) * 16384


def tr_lane_base(p, dst, t1, t3):
    p.I(f"v_bfe_u32 v{t1}, v0, 2, 2")
    p.I(f"v_bfe_u32 v{dst}, v0, 3, 1")
    p.I(f"v_lshlrev_b32 v{dst}, 6, v{dst}")
    p.I(f"v_lshl_add_u32 v{dst}, v{t1}, 7, v{dst}")
    p.I(f"v_bfe_u32 v{t3}, v0, 4, 1")
    p.I(f"v_lshl_add_u32 v{dst}, v{t3}, 5, v{dst}")


def add_pi(p, dst, src, t3):
    p.I(f"v_and_b32 v{t3}, 1, v0")
    p.I(f"v_lshl_add_u32 v{dst}, v{t3}, 4, v{src}")
    p.I(f"v_bfe_u32 v{t3}, v0, 1, 1")
    p.I(f"v_lshl_add_u32 v{dst}, v{t3}, 3, v{dst}")


class FragRing:
    def __init__(self, p, items, base, n):
        self.p, self.items, self.base, self.n = p, items, base, n
        self.issued = 0

    def reg(self, i):
        return self.base + 4 * (i % self.n)

    def issue_next(self):
        if self.issued >= len(self.items):
            return False
        i = self.issued
        self.items[i](self.reg(i))
        self.issued += 1
        return True


LX, LW, LK, LV, LWO, LOV, LPA, LPOLL, LDPOLL, LT = 0, 4, 8, 12, 16, 20, 21, 22, 23, 24


def loader_setup(p, R, which):
    t = lambda i: R + LT + i
    l8, m8, u1, l16, rr, hf, sw, tmp = [t(i) for i in range(8)]
    p.I(f"v_lshrrev_b32 v{l8}, 3, v0")
    p.I(f"v_and_b32 v{m8}, 7, v0")
    p.I(f"v_bfe_u32 v{u1}, v0, 4, 1")
    p.I(f"v_lshrrev_b32 v{l16}, 4, v0")
    p.I(f"v_bfe_u32 v{rr}, v0, 3, 2")
    p.I(f"v_lshrrev_b32 v{hf}, 5, v0")
    p.I(f"v_lshlrev_b32 v{sw}, 2, v{u1}")
    p.I(f"v_xor_b32 v{sw}, v{sw}, v{m8}")
    p.I(f"v_lshlrev_b32 v{sw}, 4, v{sw}")
    for w in which:
        if w == "x":
            p.I(f"s_lshl_b32 s{S_T0}, s{S_G}, 15")
            for j in range(4):
                p.I(f"v_add_u32 v{tmp}, {4*j}, v{l16}")
                p.I(f"v_and_b32 v{tmp}, 7, v{tmp}")
                p.I(f"v_xor_b32 v{tmp}, v{tmp}, v{m8}")
                p.I(f"v_lshlrev_b32 v{tmp}, 4, v{tmp}")
                p.I(f"v_lshl_add_u32 v{tmp}, v{l8}, 10, v{tmp}")
                p.I(f"v_add_u32 v{tmp}, {8*j*1024 - j*1024}, v{tmp}")
                p.I(f"v_add_u32 v{R+LX+j}, s{S_T0}, v{tmp}")
        elif w == "w":
            p.I(f"v_lshl_add_u32 v{tmp}, v{rr}, 13, v{sw}")
            p.I(f"v_lshl_add_u32 v{tmp}, v{hf}, 7, v{tmp}")
            p.I(f"s_lshl_b32 s{S_T0}, s{S_G}, 17")
            p.I(f"v_add_u32 v{tmp}, s{S_T0}, v{tmp}")
            for j in range(4):
                p.I(f"v_add_u32 v{R+LW+j}, {4*j*8192 - j*1024}, v{tmp}")
        elif w == "k":
            for j in range(4):
                p.I(f"v_add_u32 v{tmp}, {2*j}, v{u1}")
                p.I(f"v_xor_b32 v{tmp}, v{tmp}, v{m8}")
                p.I(f"v_lshlrev_b32 v{tmp}, 4, v{tmp}")
                p.I(f"v_lshl_add_u32 v{tmp}, v{rr}, 8, v{tmp}")
                p.I(f"v_lshl_add_u32 v{tmp}, v{hf}, 7, v{tmp}")
                p.I(f"v_add_u32 v{R+LK+j}, s{S_M0B}, v{tmp}")
        elif w == "v":
            p.I(f"v_lshl_add_u32 v{tmp}, v{l8}, 8, v{sw}")
            p.I(f"s_lshl_b32 s{S_T0}, s{S_G}, 13")
            p.I(f"v_add_u32 v{tmp}, s{S_T0}, v{tmp}")
            for j in range(4):
                p.I(f"v_add_u32 v{R+LV+j}, {8*j*256 - j*1024}, v{tmp}")
        elif w == "o":
            p.I(f"v_lshl_add_u32 v{tmp}, v{rr}, 10, v{sw}")
            p.I(f"v_lshl_add_u32 v{tmp}, v{hf}, 7, v{tmp}")
            p.I(f"s_lshl_b32 s{S_T0}, s{S_G}, 14")
            p.I(f"v_add_u32 v{tmp}, s{S_T0}, v{tmp}")
            for j in range(4):
                p.I(f"v_add_u32 v{R+LWO+j}, {4*j*1024 - j*1024}, v{tmp}")
            p.I(f"v_lshlrev_b32 v{R+LOV}, 4, v0")
            p.I(f"v_and_b32 v{tmp}, 3, v0")
            p.I(f"v_lshlrev_b32 v{R+LPA}, 2, v{tmp}")


class E:
    def __init__(self, kind, idx, need, slot=None, rel=None, gate=None):
        self.kind, self.idx, self.need, self.slot, self.rel, self.gate = kind, idx, need, slot, rel, gate
        self.free = -1
        self.at = None
        self.who = None


class Sched:
    def __init__(self, cfg):
        npre, mid, qb = cfg.get("npre", 0), cfg.get("mid", 8), cfg.get("qb", 1)
        self.qb = qb
        self.steps = []
        ents = []
        st = self.steps

        def phase(name, n, mk):
            for i in range(n):
                mk(i, len(st))
                st.append((name, i))

        def ostep(o):
            def mk(i, s):
                g = {0: 1, 8: 2, 12: 3}.get(o + i)
                ents.extend([E("wo", o + i, s, None, s + 1), E("o", o + i, s, None, s + 1, gate=g)])
            return mk

        def qbphase():
            phase("QB", 8, lambda c, s: ents.append(E("wb", c, s, None, s + 1)))

        phase("QA", 8, lambda c, s: ents.extend([E("x", c, s, slot_q(c), s + 1), E("w", c, s, slot_q(c) + 1, s + 1)]))
        if qb == 0:
            qbphase()
        self.ka0 = len(st)
        phase("K", 8, lambda t, s: ents.append(E("k", t, s, slot_k(t), s + 2)))
        phase("V", 8, lambda t, s: ents.append(E("v", t, s, slot_v(t), s + (2 if t < 7 else 1))))
        self.seg1 = len(st)
        if qb == 1:
            qbphase()
            self.hw = len(st) - 1
        else:
            self.hw = self.seg1 - 3
        self.hstep = max(self.hw + 1, self.seg1)
        for i in range(2):
            ents.append(E("hand", i, self.hw, HSLOT + i, self.hstep + 1))
        phase("O", mid, ostep(0))
        self.kb0 = len(st)
        phase("K", 8, lambda t, s: ents.append(E("k", 8 + t, s, slot_k(t), s + 2)))
        phase("V", 8, lambda t, s: ents.append(E("v", 8 + t, s, slot_v(t), s + (2 if t < 7 else 1))))
        self.tail0 = len(st)
        phase("O", 16 - mid, ostep(mid))
        self.n = len(st)
        ents.sort(key=lambda e: e.need)
        sf = {x: -1 for x in range(10)}
        fixed = [e for e in ents if e.slot is not None]
        kroom = cfg.get("kroom", 0)

        def eff(f):
            if f.kind == "k" and f.idx % 8 < KD:
                return f.need - f.idx % 8 - kroom + (f.idx % 8) // 2
            return f.need + 3 if f.kind == "hand" else f.need
        for e in ents:
            if e.slot is None:
                def cost(x):
                    nxt = min((eff(f) for f in fixed if f.slot == x and f.need >= e.need), default=10 ** 6)
                    if sf[x] > e.need - 1:
                        return (1000, 0)
                    pen = max(0, (e.rel + 3) - nxt)
                    return (pen, sf[x])
                e.slot = min(range(10), key=cost)
            e.free = sf[e.slot]
            assert e.free <= e.need - (0 if e.kind == "hand" else 1), (e.kind, e.idx, e.need, e.free)
            sf[e.slot] = e.rel
        self.ents = ents
        order = [e for e in ents if e.kind != "hand"]
        ks = [e for e in order if e.kind == "k"][:npre]
        for e in ks:
            order.remove(e)
        order = ks + order
        for base, kear in ((0, cfg.get("keA", 0)), (8, cfg.get("keB", 0))):
            if kear:
                kk = [e for e in order if e.kind == "k" and base + (npre if base == 0 else 0) <= e.idx < base + KD]
                pos = order.index(kk[0]) - kear
                for e in kk:
                    order.remove(e)
                for i, e in enumerate(kk):
                    order.insert(pos + i, e)
        self.order = order
        lastVB = self.tail0 - 1
        for e in order:
            if e.gate == 1:
                e.free = max(e.free, self.seg1 + 3)
            if e.gate == 2:
                e.free = max(e.free, lastVB)
            if e.gate == 3:
                e.free = max(e.free, lastVB + 1)
        self._plan()

    def consumer(self, s):
        return "A" if self.steps[s][0] in ("QA", "K", "V") else "G"

    def loader(self, s):
        if s < 0:
            return "G"
        return "G" if self.consumer(s) == "A" else "A"

    def _plan(self):
        order = list(self.order)
        issued = []
        landed = set()
        for s in range(-1, self.n):
            for e in issued:
                if e.need <= s:
                    for f in issued[:issued.index(e) + 1]:
                        landed.add(f)
            nstep = 0
            while order:
                infl = sum(1 for e in issued if e not in landed)
                cand = None
                for i, e in enumerate(order[:12]):
                    if i > 0 and not e.kind in ("o", "wo"):
                        break
                    if e.kind == "o" and any(f.kind == "o" for f in order[:i]):
                        continue
                    if e.free <= s and not (e.gate and e.need > s + GLEAD):
                        cand = e
                        break
                    if e.kind != "o":
                        break
                if cand is None:
                    break
                must = any(f.need <= s + 1 for f in order)
                if (infl >= DT or (nstep >= PER and s >= 0)) and not must:
                    break
                who = self.loader(s)
                if who == "A" and cand.kind in ("k", "v") and not (cand.kind == "k" and cand.idx % 8 < KD):
                    break
                nstep += 1
                cand.at, cand.who = s, who
                issued.append(cand)
                order.remove(cand)
            for e in order:
                assert e.need > s + 1 or s == self.n - 1, ("not issued in time", e.kind, e.idx, e.need, s, e.free)
        assert not order
        self.issued = issued


class Loader:
    def __init__(self, p, R, tag):
        self.p, self.R, self.tag = p, R, tag
        self.cnt = 0
        self.mark = {}
        self.dchecked = False

    def I(self, t):
        if t.startswith("buffer_"):
            self.cnt += 1
        self.p.I(t)

    def kappa(self, o):
        p = self.p
        p.I(f"s_add_u32 s{S_T1}, s{S_BL}, {o}")
        if o < 8:
            p.I(f"s_and_b32 s{S_T1}, s{S_T1}, 7")
        else:
            p.I(f"s_and_b32 s{S_T1}, s{S_T1}, 3")
            p.I(f"s_lshl_b32 s{S_T1}, s{S_T1}, 1")
            p.I(f"s_add_u32 s{S_T1}, s{S_T1}, {8 if o < 12 else 9}")

    def spin(self, kind, ev):
        p, R = self.p, self.R
        name = f"{self.tag}{kind}{ev}"
        p.flush_hazards()
        p.I(f"s_mov_b32 s{S_SPIN}, {SPIN}")
        if kind == "d":
            p.I(f"s_lshl_b32 s{S_T0}, s{S_B}, 4")
            p.I(f"v_mov_b32 v{R+LT}, 0")
        else:
            p.I(f"s_add_u32 s{S_T0}, s{S_FLAG}, {ev*512}")
        p.label(f"L_sp_{name}")
        if kind == "d":
            self.I(f"buffer_load_dword v{R+LPOLL}, v{R+LT}, {sr(SRD_DBG,4)}, s{S_T0} offen sc1")
            p.wait(vm=0)
            p.I(f"v_cmp_gt_u32 vcc, 16, v{R+LPOLL}")
        else:
            self.I(f"buffer_load_dword v{R+LPOLL}, v{R+LPA}, {sr(SRD_WS,4)}, s{S_T0} offen sc1")
            p.wait(vm=0)
            p.I(f"v_cmp_ne_u32 vcc, 1, v{R+LPOLL}")
        p.I(f"s_cbranch_vccz L_ok_{name}")
        p.I(f"s_sub_u32 s{S_SPIN}, s{S_SPIN}, 1")
        p.I(f"s_cmp_lg_u32 s{S_SPIN}, 0")
        p.I(f"s_cbranch_scc1 L_sp_{name}")
        p.label(f"L_ok_{name}")

    def issue_at(self, sc, who, s):
        for e in sc.issued:
            if e.who == who and e.at == s:
                self.issue(e)
        for e in sc.issued:
            if e.gate and e.who == who and e.at == s + 1 and sc.loader(s) == who and s > sc.seg1:
                self.p.I(f"s_add_u32 s{S_T0}, s{S_FLAG}, {e.gate*512}")
                self.I(f"buffer_load_dword v{self.R+LPOLL}, v{self.R+LPA}, {sr(SRD_WS,4)}, s{S_T0} offen sc1")
                self.prepolled = e.gate

    def issue(self, e):
        p, R = self.p, self.R
        if e.gate:
            if getattr(self, "prepolled", 0) == e.gate:
                p.I(f"v_cmp_ne_u32 vcc, 1, v{R+LPOLL}")
                p.I(f"s_cbranch_vccz L_ok_{self.tag}f{e.gate}")
                keep = (p.t, list(p.vm), self.cnt)
                self.spin("f", e.gate)
                p.t, p.vm, self.cnt = keep
            else:
                self.spin("f", e.gate)
        k = e.kind
        fl = AUXFLAGS
        if k in ("x", "w", "wb"):
            p.I(f"s_add_u32 s{S_T1}, s{S_C0}, {e.idx}")
            p.I(f"s_and_b32 s{S_T1}, s{S_T1}, 7")
            if k == "x":
                p.I(f"s_lshl_b32 s{S_DS}, s{S_T1}, 7")
                p.I(f"s_add_u32 s{S_DS}, s{S_DS}, s{S_XBASE}")
                vo, srd = [R + LX + j for j in range(4)], SRD_X
            else:
                p.I(f"s_lshl_b32 s{S_DS}, s{S_T1}, 19")
                p.I(f"s_add_u32 s{S_DS}, s{S_DS}, s{S_WQBASE}")
                if k == "wb":
                    p.I(f"s_add_u32 s{S_DS}, s{S_DS}, 1024")
                vo, srd = [R + LW + j for j in range(4)], SRD_WQ
        elif k in ("k", "v"):
            hd, t = e.idx // 8, e.idx % 8
            off = hd * 4 * 131072 + (t * 16384 if k == "k" else (t % 4) * 32768 + (t // 4) * 128)
            p.I(f"s_add_u32 s{S_DS}, s{S_KVBASE}, {off}")
            vo, srd = ([R + LK + j for j in range(4)], SRD_K) if k == "k" else ([R + LV + j for j in range(4)], SRD_V)
            fl = KVFLAGS
        elif k == "wo":
            self.kappa(e.idx)
            p.I(f"s_lshl_b32 s{S_DS}, s{S_T1}, 16")
            p.I(f"s_add_u32 s{S_DS}, s{S_DS}, s{S_WOB}")
            vo, srd = [R + LWO + j for j in range(4)], SRD_WO
        else:
            self.kappa(e.idx)
            p.I(f"s_lshl_b32 s{S_DS}, s{S_T1}, 14")
            p.I(f"s_add_u32 s{S_DS}, s{S_DS}, s{S_OINB}")
            vo, srd, fl = [R + LOV] * 4, SRD_WS, OFLAGS
        p.I(f"s_add_u32 m0, s{S_M0B}, {e.slot * 16384}")
        for j in range(4):
            self.I(f"buffer_load_dwordx4 v{vo[j]}, {sr(srd,4)}, s{S_DS} offen offset:{j*1024} {fl} lds")
        self.mark[e] = self.cnt

    def wait_for(self, s, **kw):
        need = [m for e, m in self.mark.items() if e.need == s]
        if need:
            self.p.wait(vm=self.cnt - max(need), **kw)
        elif kw:
            self.p.wait(**kw)


V_AK, V_AW, V_AV, V_AX, V_ST, V_MX, V_T = 2, 6, 8, 10, 14, 15, 1
V_M = 6
V_HQ = 10
V_FR = 16
NFR = 6
V_S = [40, 56, 72]
V_Q = 88
V_P = 120
V_L = 248
V_SEL = 252
V_QACC = 120
V_X = [184, 200]
V_QFR = 16
NQFR = 12
V_RL = 7
A_R = 120


def lane_setup_A(p):
    t0, t1, t2, t3 = 16, 17, 18, 19
    p.I(f"v_lshrrev_b32 v{t0}, 5, v0")
    p.I(f"v_and_b32 v{t1}, 31, v0")
    p.I(f"v_bfe_u32 v{t2}, v0, 1, 3")
    p.I(f"v_xor_b32 v{t2}, v{t2}, v{t0}")
    p.I(f"v_lshlrev_b32 v{t2}, 4, v{t2}")
    p.I(f"v_lshrrev_b32 v{t3}, 2, v{t1}")
    p.I(f"v_lshlrev_b32 v{t3}, 10, v{t3}")
    p.I(f"v_and_b32 v20, 3, v{t1}")
    p.I(f"v_lshl_add_u32 v{t3}, v20, 7, v{t3}")
    p.I(f"v_add_u32 v{V_AK}, v{t3}, v{t2}")
    for i in range(1, 4):
        p.I(f"v_xor_b32 v{V_AK+i}, {i*32}, v{V_AK}")
    p.I(f"v_lshlrev_b32 v{t3}, 7, v{t1}")
    p.I(f"v_add3_u32 v{V_AX}, v{t3}, v{t2}, s{S_M0B}")
    for i in range(1, 4):
        p.I(f"v_xor_b32 v{V_AX+i}, {i*32}, v{V_AX}")
    tr_lane_base(p, t2, t1, t3)
    p.I(f"v_and_b32 v{t3}, 3, v0")
    p.I(f"v_lshl_add_u32 v20, v{t3}, 3, v{t2}")
    p.I(f"v_lshl_add_u32 v{V_AV}, v{t0}, 9, v20")
    p.I(f"v_xor_b32 v{V_AV+1}, 64, v{V_AV}")
    add_pi(p, 20, t2, t3)
    p.I(f"v_lshl_add_u32 v{V_AW}, v{t0}, 11, v20")
    p.I(f"v_xor_b32 v{V_AW+1}, 64, v{V_AW}")
    p.I(f"v_lshlrev_b32 v{V_ST}, 4, v0")
    p.I(f"v_add_u32 v{V_ST}, s{S_M0B}, v{V_ST}")
    p.I(f"v_bfe_u32 v{t1}, v0, 2, 1")
    p.I(f"v_bfe_u32 v{t2}, v0, 4, 1")
    p.I(f"v_cmp_eq_u32 vcc, v{t1}, v{t2}")
    p.I(f"v_mov_b32 v{t3}, 0x3f803f80")
    p.I(f"v_cndmask_b32 v{V_SEL}, 0, v{t3}, vcc")
    for i in range(1, 4):
        p.I(f"v_mov_b32 v{V_SEL+i}, v{V_SEL}")


def flag_store(p, sreg, I=None):
    I = I or p.I
    p.I(f"v_mov_b32 v{V_T}, 1")
    p.I(f"v_mov_b32 v{V_MX}, 0")
    p.I(f"s_mov_b64 {sr(S_EX,2)}, exec")
    p.I("s_mov_b64 exec, 1")
    I(f"buffer_store_dword v{V_T}, v{V_MX}, {sr(SRD_WS,4)}, s{sreg} offen sc1")
    p.I(f"s_mov_b64 exec, {sr(S_EX,2)}")


def gemm_phase(p, nunits, open_unit, frag_item, mfma, ring_base, nfr, extra=None):
    items = [frag_item(c, s, mb) for c in range(nunits) for s in range(4) for mb in range(4)]
    ring = FragRing(p, items, ring_base, nfr)
    open_unit(0)
    opened = 1
    for _ in range(5):
        ring.issue_next()
    AH = nfr - 1
    idle = 0
    n = 16 * nunits
    for fi in range(n):
        c, s, mb = fi // 16, (fi // 4) % 4, fi % 4
        mfma(c, s, mb, ring.reg(fi))
        for _ in range(2):
            if ring.issued < min(opened * 16, fi + 1 + AH, n):
                ring.issue_next()
        if extra:
            extra(fi)
        if ring.issued == opened * 16 and opened < nunits:
            idle += 1
            if idle >= 3:
                open_unit(opened)
                opened += 1
                idle = 0


def gen_A(p, scheds):
    stamp(p, 0)
    lane_setup_A(p)
    scalars2(p)
    if PRIO_A:
        p.I(f"s_setprio {PRIO_A}")
    p.I(f"s_mov_b32 s{S_HEADCNT}, 0")
    ak, aw, av, ax = AddrSet(p, [V_AK + i for i in range(4)]), AddrSet(p, [V_AW, V_AW + 1]), AddrSet(p, [V_AV, V_AV + 1]), AddrSet(p, [V_AX + i for i in range(4)])

    def open_pair(c):
        p.wait(lgkm=0)
        p.I("s_barrier")
        if c == 0:
            stamp(p, 1)
        off = ax.to(slot_q(c))
        for ss in range(4):
            p.I(f"ds_read_b128 {vr(V_X[c % 2] + 4 * ss, 4)}, v{V_AX + ss} offset:{off}")

    def mk_w(c, s, mb):
        def f(reg):
            off = aw.to(slot_q(c) + 1) + s * 4096 + (mb // 2) * 512
            p.I(f"ds_read_b64_tr_b16 {vr(reg, 2)}, v{V_AW + mb % 2} offset:{off}")
            p.I(f"ds_read_b64_tr_b16 {vr(reg + 2, 2)}, v{V_AW + mb % 2} offset:{off + 1024}")
        return f

    def q_mfma(c, s, mb, reg):
        acc = vr(V_QACC + 16 * mb, 16)
        cin = "0" if (c == 0 and s == 0) else acc
        p.I(f"v_mfma_f32_32x32x16_bf16 {acc}, {vr(reg, 4)}, {vr(V_X[c % 2] + 4 * s, 4)}, {cin}")

    gemm_phase(p, 8, open_pair, mk_w, q_mfma, V_QFR, NQFR)

    def mk_k(j, ks):
        def f(reg):
            t = j // 2
            if j % 2 == 0 and ks == 0:
                if t < KD:
                    p.raw(f"  s_waitcnt vmcnt({4 * (KD - 1 - t)})")
                p.I("s_barrier")
            off = ak.to(slot_k(t)) + (j % 2) * 8192 + (ks // 4) * 512
            p.I(f"ds_read_b128 {vr(reg, 4)}, v{V_AK + ks % 4} offset:{off}")
        return f

    def mk_v(ph, kk, mb):
        def f(reg):
            t4, k8 = kk // 8, kk % 8
            if k8 == 0 and mb == 0:
                p.I("s_barrier")
            off = av.to(slot_v(ph * 4 + t4)) + k8 * 2048
            p.I(f"ds_read_b64_tr_b16 {vr(reg, 2)}, v{V_AV + mb} offset:{off}")
            p.I(f"ds_read_b64_tr_b16 {vr(reg + 2, 2)}, v{V_AV + mb} offset:{off + 1024}")
        return f

    kitems = [mk_k(j, ks) for j in range(16) for ks in range(8)]
    vitems = [mk_v(ph, kk, mb) for ph in range(2) for kk in range(32) for mb in range(2)]

    def k_prefetch():
        r = FragRing(p, kitems + vitems, V_FR, NFR)
        for _ in range(6):
            r.issue_next()
        return r

    p.I(f"s_lshl_b32 s{S_T0}, s{S_G}, 13")
    p.I(f"s_add_u32 s{S_T0}, s{S_T0}, {HSLOT*16384}")
    p.I(f"v_lshlrev_b32 v{V_HQ}, 4, v0")
    p.I(f"v_add_u32 v{V_HQ}, s{S_T0}, v{V_HQ}")
    p.I(f"s_mov_b32 s{S_NEEDPUB}, 0")

    def pack_q():
        for mb in range(4):
            for i in range(16):
                r = V_QACC + 16 * mb + i
                p.I(f"v_mul_f32 v{r}, s{S_SCALE}, v{r}")
            for i in range(8):
                r = V_QACC + 16 * mb + 2 * i
                p.I(f"v_cvt_pk_bf16_f32 v{V_Q + 8 * mb + i}, v{r}, v{r+1}")

    def segment(sc, c, s0, s1, tag, R, first=None, at_step=None):
        ld = Loader(p, R, f"{tag}c{c}")
        for s in range(s0, s1):
            ld.wait_for(s, **({"lgkm": 0} if s == sc.hstep + 1 else {}))
            p.I("s_barrier")
            if s == s0 and first:
                first(ld)
            if at_step:
                at_step(s)
            ld.issue_at(sc, "A", s)
        worst = 0
        for e, m in ld.mark.items():
            if e.kind == "k":
                short = 4 * (KD - 1 - e.idx % 8) - (ld.cnt - m)
                worst = max(worst, short)
        if worst > 0:
            p.I(f"s_mov_b32 s{S_DS}, 0x7f000000")
            for _ in range(worst):
                p.raw(f"  buffer_load_dword v245, v{V_ST}, {sr(SRD_K,4)}, s{S_DS} offen")

    for c in range(1, NCLS):
        p.I(f"s_cmp_eq_u32 s{S_CLS}, {c}")
        p.I(f"s_cbranch_scc1 L_A_s0c{c}")
    st0 = (p.t, dict(p.mfma_w), dict(p.mfma_c), list(p.lgkm))
    for c, sc in enumerate(scheds):
        if c:
            p.label(f"L_A_s0c{c}")
            p.reset_state()
            p.nop(12)
        ak.hi = 0
        if sc.ka0 > 8:
            segment(sc, c, 8, sc.ka0, "a0", 200, first=lambda ld: (loader_setup(p, 200, "wk"), None)[1],
                    at_step=lambda s: pack_q() if s == 9 else None)
            ring = k_prefetch()
        else:
            ring = k_prefetch()
            pack_q()
        stamp(p, 2)
        ak_entry = ak.hi
        p.wait(lgkm=0)
        p.flush_hazards()
        if c < NCLS - 1:
            p.I("s_branch L_A_head")
    p.label("L_A_head")
    p.reset_state()
    fi = 0
    for i in range(4):
        p.I(f"v_mov_b32 v{V_L+i}, 0")
    p.I(f"v_mov_b32 v{V_M}, 0")
    p.I(f"s_mov_b32 s{S_THR}, {THR}")
    p.I(f"s_mov_b32 s{S_FIRST}, 1")

    def max_ops(i):
        S = V_S[i % 3]
        a = (lambda r: f"|v{r}|") if i == 0 else (lambda r: f"v{r}")
        return [f"v_max3_f32 v{V_MX}, {a(S)}, {a(S+1)}, {a(S+2)}",
                f"v_max3_f32 v{V_T}, {a(S+3)}, {a(S+4)}, {a(S+5)}",
                f"v_max3_f32 v{V_MX}, v{V_MX}, {a(S+6)}, {a(S+7)}",
                f"v_max3_f32 v{V_T}, v{V_T}, {a(S+8)}, {a(S+9)}",
                f"v_max3_f32 v{V_MX}, v{V_MX}, {a(S+10)}, {a(S+11)}",
                f"v_max3_f32 v{V_T}, v{V_T}, {a(S+12)}, {a(S+13)}",
                f"v_max3_f32 v{V_MX}, v{V_MX}, {a(S+14)}, {a(S+15)}",
                f"v_max_f32 v{V_MX}, v{V_MX}, v{V_T}"]

    def exp_groups(i):
        S = V_S[i % 3]
        gs = []
        for k in range(8):
            g = [f"v_exp_f32 v{S+2*k}, v{S+2*k}", f"v_exp_f32 v{S+2*k+1}, v{S+2*k+1}"]
            if k >= 1:
                g.append(f"v_cvt_pk_bf16_f32 v{V_P + 8*i + k - 1}, v{S+2*k-2}, v{S+2*k-1}")
            gs.append(g)
        gs[7] = gs[7] + [("late", f"v_cvt_pk_bf16_f32 v{V_P + 8*i + 7}, v{S+14}, v{S+15}")]
        return gs

    def lsum(i, h):
        p.I(f"v_mfma_f32_16x16x32_bf16 {vr(V_L,4)}, {vr(V_SEL,4)}, {vr(V_P + 8*i + 4*h, 4)}, {vr(V_L,4)}")

    def reads():
        if fi % 2 == 0:
            ring.issue_next()
            ring.issue_next()

    OACC = [V_Q, V_S[0]]
    stubs = []
    egq = []
    pend = []
    for m in range(256):
        if m < 128:
            j, ks = m // 8, m % 8
            S = vr(V_S[j % 3], 16)
            if m % 2 == 0:
                p.touch([ring.reg(m + 1) + k for k in range(4)])
            p.I(f"v_mfma_f32_32x32x16_bf16 {S}, {vr(ring.reg(m), 4)}, {vr(V_Q + 4 * ks, 4)}, {S if ks else '0'}")
        else:
            ph, kk, mb = (m - 128) // 64, ((m - 128) // 2) % 32, m % 2
            acc = vr(OACC[ph] + 16 * mb, 16)
            if m % 2 == 0:
                p.touch([ring.reg(m + 1) + k for k in range(4)])
            p.I(f"v_mfma_f32_32x32x16_bf16 {acc}, {vr(ring.reg(m), 4)}, {vr(V_P + 4 * kk, 4)}, {'0' if kk == 0 else acc}")
        fi = m + 1
        j, ks = m // 8, m % 8
        i = j - 1
        if ks == 5 and 0 <= i < 16:
            p.I(f"s_cbranch_vccnz L_A_stub{i}")
            p.label(f"L_A_back{i}")
            if i == 0:
                p.I(f"s_mov_b32 s{S_FIRST}, 0")
            stubs.append(i)
            egq.extend(exp_groups(i))
        reads()
        late = []
        if egq:
            for o in egq.pop(0):
                if isinstance(o, tuple):
                    late.append(o[1])
                else:
                    p.I(o)
        if 0 <= i < 16 and ks in (2, 3, 4):
            mo = max_ops(i)
            sl = {2: mo[0:3], 3: mo[3:6], 4: mo[6:8]}[ks]
            for o in sl:
                p.I(o)
        for o in late:
            p.I(o)
        if 0 <= i < 16 and ks == 4:
            p.I(f"v_cmp_nge_f32 vcc, s{S_THR}, v{V_MX}")
        if 1 <= i <= 16 and ks == 6:
            lsum(i - 1, 0)
        if 2 <= i <= 17 and ks == 0:
            lsum(i - 2, 1)
        if m == 16 * KD + 1:
            p.I(f"s_cmp_eq_u32 s{S_NEEDPUB}, 0")
            p.I("s_cbranch_scc1 L_A_nopub")
            t_keep = p.t
            p.raw("  s_waitcnt vmcnt(0)")
            p.I(f"s_add_u32 s{S_T0}, s{S_PUB}, 512")
            flag_store(p, S_T0)
            p.label("L_A_nopub")
            p.t = t_keep
        if m == 127:
            stamp(p, 3)
        if m == 128 + 30:
            p.I(f"v_rcp_f32 v{V_RL}, v{V_L}")
        if m == 191:
            stamp(p, 4)
            pend = None
        if m >= 192 + 4:
            if pend is None:
                pend = epi_ops(OACC, 0)
            for _ in range(4):
                if pend:
                    p.I(pend.pop(0))
        if m == 192 + 36:
            p.wait(vm=0)
            p.I(f"s_lshl_b32 s{S_T0}, s{S_HEADCNT}, 10")
            p.I(f"s_add_u32 s{S_T0}, s{S_T0}, s{S_PUB}")
            flag_store(p, S_T0)
    assert not egq and not pend
    stamp(p, 5)
    for o in epi_ops(OACC, 1):
        p.I(o)
    av.to(0)
    ak.to(0)
    p.I(f"s_cmp_eq_u32 s{S_HEADCNT}, 1")
    p.I("s_cbranch_scc1 L_A_tail")
    p.I(f"s_add_u32 s{S_OBASE}, s{S_OBASE}, {4*32768}")
    p.I(f"s_mov_b32 s{S_HEADCNT}, 1")
    if STAMP in (1, 2):
        p.raw("  s_waitcnt lgkmcnt(0)")
        for i in range(6):
            p.I(f"s_mov_b32 s{S_STAMP+12+i}, s{S_STAMP+6+i}")
    for c in range(1, NCLS):
        p.I(f"s_cmp_eq_u32 s{S_CLS}, {c}")
        p.I(f"s_cbranch_scc1 L_A_s1c{c}")

    def read_q():
        for q in range(8):
            p.I(f"ds_read_b128 {vr(V_Q + 4*q, 4)}, v{V_HQ} offset:{q*1024}")

    for c, sc in enumerate(scheds):
        if c:
            p.label(f"L_A_s1c{c}")
        p.reset_state()
        p.nop(2)
        ak.hi = 0
        if sc.kb0 > sc.seg1:
            def first(ld):
                loader_setup(p, A_R, "wko")
                p.wait(vm=0)
                p.I(f"s_add_u32 s{S_T0}, s{S_PUB}, 512")
                flag_store(p, S_T0, ld.I)
            segment(sc, c, sc.seg1, sc.kb0, "a1", A_R, first=first, at_step=lambda s: read_q() if s == sc.hstep else None)
        else:
            p.I(f"s_mov_b32 s{S_NEEDPUB}, 1")
        k_prefetch()
        if sc.hstep == sc.kb0:
            read_q()
        assert ak.hi == ak_entry
        p.wait(lgkm=0)
        p.flush_hazards()
        p.I("s_branch L_A_head")
    p.label("L_A_tail")
    p.reset_state()
    p.nop(2)
    loader_setup(p, A_R, "o")
    p.wait(vm=0)
    p.I(f"s_add_u32 s{S_T0}, s{S_PUB}, {3*512}")
    flag_store(p, S_T0)
    stamp(p, 9)
    for c in range(1, NCLS):
        p.I(f"s_cmp_eq_u32 s{S_CLS}, {c}")
        p.I(f"s_cbranch_scc1 L_A_s2c{c}")
    for c, sc in enumerate(scheds):
        if c:
            p.label(f"L_A_s2c{c}")
        p.reset_state()
        p.nop(2)
        ld = Loader(p, A_R, f"a2c{c}")
        for s in range(sc.tail0, sc.n):
            ld.wait_for(s)
            p.I("s_barrier")
            ld.issue_at(sc, "A", s)
        if STAMP in (1, 2):
            p.I(f"s_cmp_lg_u32 s{S_WAVE}, 0")
            p.I("s_cbranch_scc1 L_exit")
            stamp_store(p, 10, 1)
        p.I("s_endpgm")

    for i in stubs:
        p.label(f"L_A_stub{i}")
        p.raw(f"  s_call_b64 {sr(S_RET,2)}, L_A_fix{i % 3}")
        if i == 15:
            for k in range(32):
                p.raw(f"  v_mul_f32 v{OACC[0]+k}, v{OACC[0]+k}, v{V_MX}")
            p.raw("  s_nop 3")
        p.raw(f"  s_branch L_A_back{i}")
    for par in range(3):
        S = V_S[par]
        p.label(f"L_A_fix{par}")
        p.reset_state()
        p.nop(16)
        p.I(f"s_mov_b32 s{S_THR}, 0xff800000")
        for k in range(16):
            p.I(f"v_sub_f32 v{S+k}, v{S+k}, v{V_M}")
        p.I(f"v_max3_f32 v{V_MX}, v{S}, v{S+1}, v{S+2}")
        for k in range(3, 15, 2):
            p.I(f"v_max3_f32 v{V_MX}, v{V_MX}, v{S+k}, v{S+k+1}")
        p.I(f"v_max_f32 v{V_MX}, v{V_MX}, v{S+15}")
        p.I(f"v_mov_b32 v{V_T}, v{V_MX}")
        p.I(f"v_permlane32_swap_b32 v{V_T}, v{V_MX}")
        p.I(f"v_max_f32 v{V_MX}, v{V_MX}, v{V_T}")
        p.I(f"v_ceil_f32 v{V_MX}, v{V_MX}")
        p.I(f"s_cmp_eq_u32 s{S_FIRST}, 1")
        p.I(f"s_cbranch_scc1 L_A_fixa{par}")
        p.I(f"v_max_f32 v{V_MX}, 0, v{V_MX}")
        p.label(f"L_A_fixa{par}")
        p.nop(2)
        for k in range(16):
            p.I(f"v_sub_f32 v{S+k}, v{S+k}, v{V_MX}")
        p.I(f"s_branch L_A_fixc")
    p.label("L_A_fixc")
    p.reset_state()
    p.nop(2)
    p.I(f"v_add_f32 v{V_M}, v{V_M}, v{V_MX}")
    p.I(f"v_cmp_neq_f32 vcc, 0, v{V_MX}")
    p.I(f"v_exp_f32 v{V_MX}, -v{V_MX}")
    p.I("s_cbranch_vccz L_A_fixd")
    p.I(f"s_cmp_eq_u32 s{S_FIRST}, 1")
    p.I("s_cbranch_scc1 L_A_fixd")
    for k in range(4):
        p.I(f"v_mul_f32 v{V_L+k}, v{V_L+k}, v{V_MX}")
    for k in range(128):
        r = V_P + k
        p.I(f"v_lshlrev_b32 v{V_T}, 16, v{r}")
        p.I(f"v_and_b32 v{r}, 0xffff0000, v{r}")
        p.I(f"v_mul_f32 v{V_T}, v{V_T}, v{V_MX}")
        p.I(f"v_mul_f32 v{r}, v{r}, v{V_MX}")
        p.I(f"v_cvt_pk_bf16_f32 v{r}, v{V_T}, v{r}")
    p.label("L_A_fixd")
    p.nop(4)
    p.raw(f"  s_setpc_b64 {sr(S_RET,2)}")


OACC_FIX = 0


def epi_ops(OACC, ph):
    a = OACC[ph]
    ops = []
    for f in range(4):
        for i in range(8):
            ops.append(f"v_mul_f32 v{a+8*f+i}, v{V_RL}, v{a+8*f+i}")
        for i in range(4):
            ops.append(f"v_cvt_pk_bf16_f32 v{a+8*f+i}, v{a+8*f+2*i}, v{a+8*f+2*i+1}")
        if f == 0:
            ops.append(f"s_add_u32 s{S_T0}, s{S_OBASE}, {ph*16384}")
        ops.append(f"buffer_store_dwordx4 {vr(a+8*f,4)}, v{V_ST}, {sr(SRD_WS,4)}, s{S_T0} offen offset:{f*1024} {STFLAGS}")
    return ops


G_R = 8
G_AX = 1
G_AW = 5
G_AWO = 7
G_AO = G_R + LT + 7
G_ACC = 64
G_XF = 128
G_B = 128
G_W = [128, 144]
G_FR = 40
G_FR2 = 160


def gen_G_setup2(p):
    loader_setup(p, G_R, "vo")
    scalars2(p)
    tr_lane_base(p, 40, 41, 42)
    add_pi(p, 40, 40, 42)
    p.I("v_lshrrev_b32 v43, 5, v0")
    p.I(f"v_lshl_add_u32 v{G_AWO}, v43, 10, v40")
    p.I(f"s_and_b32 s{S_T0}, s{S_G}, 1")
    p.I(f"s_lshl_b32 s{S_T0}, s{S_T0}, 6")
    p.I(f"v_xor_b32 v{G_AWO}, s{S_T0}, v{G_AWO}")
    p.I(f"s_lshr_b32 s{S_T0}, s{S_G}, 1")
    p.I(f"s_lshl_b32 s{S_T0}, s{S_T0}, 9")
    p.I(f"v_add_u32 v{G_AWO}, s{S_T0}, v{G_AWO}")
    p.I(f"v_lshlrev_b32 v{G_AO}, 4, v0")
    p.I(f"v_lshl_add_u32 v{G_AW}, v43, 11, v40")
    p.I(f"v_xor_b32 v{G_AW+1}, 64, v{G_AW}")
    p.I(f"v_bfe_u32 v42, v0, 1, 3")
    p.I(f"v_xor_b32 v42, v42, v43")
    p.I(f"v_lshlrev_b32 v42, 4, v42")
    p.I(f"v_and_b32 v40, 31, v0")
    p.I(f"v_lshlrev_b32 v40, 7, v40")
    p.I(f"v_add3_u32 v{G_AX}, v40, v42, s{S_M0B}")
    for i in range(1, 4):
        p.I(f"v_xor_b32 v{G_AX+i}, {i*32}, v{G_AX}")


def gen_reset(p, tag):
    p.I(f"s_cmp_lg_u32 s{S_WAVE}, 4")
    p.I(f"s_cbranch_scc1 L_G_norst{tag}")
    p.I(f"s_lshl_b32 s{S_T0}, s{S_B}, 2")
    p.I(f"s_add_u32 s{S_T0}, s{S_T0}, s{S_HG}")
    p.I(f"s_lshl_b32 s{S_T0}, s{S_T0}, 11")
    p.I(f"s_lshl_b32 s{S_T1}, s{S_P}, 2")
    p.I(f"s_add_u32 s{S_T0}, s{S_T0}, s{S_T1}")
    p.I(f"s_add_u32 s{S_T0}, s{S_T0}, {WS_F1}")
    p.I(f"v_lshlrev_b32 v48, 7, v0")
    p.I(f"v_add_u32 v48, s{S_T0}, v48")
    p.I(f"s_lshl_b32 s{S_T0}, s{S_B}, 2")
    p.I(f"s_add_u32 s{S_T0}, s{S_T0}, s{S_P}")
    p.I(f"s_lshl_b32 s{S_T0}, s{S_T0}, 11")
    p.I(f"s_lshl_b32 s{S_T1}, s{S_HG}, 2")
    p.I(f"s_add_u32 s{S_T0}, s{S_T0}, s{S_T1}")
    p.I(f"s_add_u32 s{S_T0}, s{S_T0}, {WS_F2 - 16*128}")
    p.I(f"v_lshlrev_b32 v49, 7, v0")
    p.I(f"v_add_u32 v49, s{S_T0}, v49")
    p.I("v_cmp_gt_u32 vcc, 16, v0")
    p.I("v_cndmask_b32 v48, v49, v48, vcc")
    p.I("v_mov_b32 v49, 0")
    p.I(f"s_mov_b64 {sr(S_EX,2)}, exec")
    p.I("s_mov_b32 exec_hi, 0")
    p.raw(f"  buffer_store_dword v49, v48, {sr(SRD_WS,4)}, 0 offen sc1")
    p.I(f"s_mov_b64 exec, {sr(S_EX,2)}")
    p.label(f"L_G_norst{tag}")


def gen_reset_done(p, tag):
    p.I(f"s_cmp_lg_u32 s{S_WAVE}, 4")
    p.I(f"s_cbranch_scc1 L_G_nord{tag}")
    p.I("v_mov_b32 v49, 1")
    p.I(f"s_lshl_b32 s{S_T0}, s{S_B}, 4")
    p.I(f"v_mov_b32 v48, s{S_T0}")
    p.I(f"s_mov_b64 {sr(S_EX,2)}, exec")
    p.I("s_mov_b64 exec, 1")
    p.raw(f"  buffer_atomic_add v49, v48, {sr(SRD_DBG,4)}, 0 offen sc1")
    p.I(f"s_mov_b64 exec, {sr(S_EX,2)}")
    p.label(f"L_G_nord{tag}")


def gen_G_class(p, c, sc):
    tag = f"c{c}"
    ld = Loader(p, G_R, f"g{tag}")
    awo, ao = AddrSet(p, [G_AWO]), AddrSet(p, [G_AO])
    aw, ax = AddrSet(p, [G_AW, G_AW + 1]), AddrSet(p, [G_AX + i for i in range(4)])
    by = {(e.kind, e.idx): e for e in sc.ents}

    def issue_at(s):
        ld.issue_at(sc, "G", s)

    def handoff():
        p.I(f"s_lshl_b32 s{S_T0}, s{S_G}, 13")
        p.I(f"s_add_u32 s{S_T0}, s{S_T0}, {HSLOT*16384}")
        p.I(f"v_add_u32 v48, s{S_T0}, v{G_R+LOV}")
        for mb in range(4):
            for h in range(2):
                p.I(f"ds_write_b128 v48, {vr(G_ACC + 16*mb + 4*h, 4)} offset:{(2*mb+h)*1024}")

    stamp(p, 0)
    gen_reset(p, tag)
    issue_at(-1)
    gen_G_setup2(p)
    if PRIO_G:
        p.I(f"s_setprio {PRIO_G}")
    nm = [1]

    def mark():
        if nm[0] < 10:
            stamp(p, nm[0])
            nm[0] += 1

    s = 0
    later = []
    first_o = True
    while s < sc.n:
        name, idx = sc.steps[s]
        if name in ("QA", "K", "V"):
            ld.wait_for(s, **({"lgkm": 0} if (s <= 8 or s == sc.hw + 1) else {}))
            p.I("s_barrier")
            if idx == 0:
                mark()
            if name == "QA":
                off = ax.to(slot_q(idx))
                for ss in range(4):
                    p.I(f"ds_read_b128 {vr(G_XF + 16*idx + 4*ss, 4)}, v{G_AX + ss} offset:{off}")
                if idx == 1:
                    gen_reset_done(p, tag)
            if s == sc.hw:
                handoff()
            if s == sc.ka0 + 6:
                p.I(f"s_lshl_b32 s{S_T0}, s{S_B}, 4")
                p.I(f"v_mov_b32 v48, 0")
                ld.I(f"buffer_load_dword v{G_R+LDPOLL}, v48, {sr(SRD_DBG,4)}, s{S_T0} offen sc1")
            if s == sc.ka0 + 14:
                p.I(f"v_cmp_gt_u32 vcc, 16, v{G_R+LDPOLL}")
                p.I(f"s_cbranch_vccz L_dok{tag}")
                t_keep, saved, ck = p.t, list(p.vm), ld.cnt
                ld.spin("d", 0)
                p.label(f"L_dok{tag}")
                p.t, p.vm, ld.cnt = t_keep, saved, ck
            issue_at(s)
            while later:
                later.pop()()
            s += 1
        elif name == "QB":
            s0 = s

            def open_u(u):
                ld.wait_for(s0 + u, lgkm=0)
                p.I("s_barrier")
                if u == 0:
                    mark()

            def item(u, s4, mb):
                def f(reg):
                    off = aw.to(by[("wb", u)].slot) + s4 * 4096 + (mb // 2) * 512
                    p.I(f"ds_read_b64_tr_b16 {vr(reg,2)}, v{G_AW + mb % 2} offset:{off}")
                    p.I(f"ds_read_b64_tr_b16 {vr(reg+2,2)}, v{G_AW + mb % 2} offset:{off+1024}")
                return f

            def mf(u, s4, mb, reg):
                acc = vr(G_ACC + 16 * mb, 16)
                cin = "0" if (u == 0 and s4 == 0) else acc
                p.I(f"v_mfma_f32_32x32x16_bf16 {acc}, {vr(reg,4)}, {vr(G_XF + 16*u + 4*s4, 4)}, {cin}")
            gemm_phase(p, 8, open_u, item, mf, G_FR, 6)
            def pack():
                for mb in range(4):
                    for i in range(16):
                        r = G_ACC + 16 * mb + i
                        p.I(f"v_mul_f32 v{r}, s{S_SCALE}, v{r}")
                    for i in range(8):
                        r = G_ACC + 16 * mb + 2 * i
                        p.I(f"v_cvt_pk_bf16_f32 v{G_ACC + 16 * mb + i}, v{r}, v{r+1}")
            if sc.qb == 1:
                pack()
                handoff()
            else:
                later.append(pack)
            s += 8
        else:
            s0 = s
            n = 0
            while s + n < sc.n and sc.steps[s + n][0] == "O":
                n += 1
            o0 = [e.idx for e in sc.ents if e.kind == "o" and e.need == s0][0]
            fz = first_o
            first_o = False

            def open_u(u):
                ld.wait_for(s0 + u, lgkm=0)
                p.I("s_barrier")
                if u == 0 or (o0 + u) in (8, 12):
                    mark()
                off = awo.to(by[("wo", o0 + u)].slot)
                for s4 in range(4):
                    r = G_W[u % 2] + 4 * s4
                    p.I(f"ds_read_b64_tr_b16 {vr(r,2)}, v{G_AWO} offset:{off + s4*4096}")
                    p.I(f"ds_read_b64_tr_b16 {vr(r+2,2)}, v{G_AWO} offset:{off + s4*4096 + 2048}")

            def item(u, s4, mb):
                def f(reg):
                    off = ao.to(by[("o", o0 + u)].slot) + mb * 4096 + s4 * 1024
                    p.I(f"ds_read_b128 {vr(reg,4)}, v{G_AO} offset:{off}")
                return f

            def mf(u, s4, mb, reg):
                acc = vr(G_ACC + 16 * mb, 16)
                cin = "0" if (fz and u == 0 and s4 == 0) else acc
                p.I(f"v_mfma_f32_32x32x16_bf16 {acc}, {vr(G_W[u % 2] + 4*s4, 4)}, {vr(reg,4)}, {cin}")
            gemm_phase(p, n, open_u, item, mf, G_FR2, 12)
            s += n
    while nm[0] < 10:
        mark()
    p.flush_hazards()
    p.I("s_branch L_G_final")


def gen_G_final(p):
    p.label("L_G_final")
    p.reset_state()
    stamp(p, 10)
    SG = S_G
    OV, PA, POLL = G_R + LOV, G_R + LPA, G_R + LPOLL
    p.I(f"s_lshl_b32 s{S_T0}, s{S_B}, 2")
    p.I(f"s_add_u32 s{S_T2}, s{S_T0}, s{S_P}")
    p.I(f"s_lshl_b32 s{S_T3}, s{S_T2}, 18")
    p.I(f"s_add_u32 s{S_T3}, s{S_T3}, {WS_PART}")
    p.I(f"s_add_u32 s{S_T3}, s{S_T3}, s{S_M0B}")
    p.I(f"s_lshl_b32 s{S_T2}, s{S_T2}, 11")
    p.I(f"s_add_u32 s{S_T2}, s{S_T2}, {WS_F2}")
    p.I(f"s_lshl_b32 s{S_T0}, s{SG}, 7")
    p.I(f"s_add_u32 s{S_T2}, s{S_T2}, s{S_T0}")
    p.I(f"s_lshl_b32 s{S_T1}, s{S_HG}, 14")
    p.I(f"s_add_u32 s{S_DS}, s{S_T3}, s{S_T1}")
    for d in range(4):
        p.I(f"s_cmp_eq_u32 s{S_HG}, {d}")
        p.I(f"s_cbranch_scc1 L_G_own{d}")
        for j in range(4):
            p.I(f"buffer_store_dwordx4 {vr(G_ACC + 16*d + 4*j, 4)}, v{OV}, {sr(SRD_WS,4)}, s{S_DS} offen offset:{j*1024} {STFLAGS}")
        p.I(f"s_branch L_G_nx{d}")
        p.label(f"L_G_own{d}")
        for k in range(16):
            p.I(f"v_mov_b32 v{G_B+k}, v{G_ACC+16*d+k}")
        p.label(f"L_G_nx{d}")
        if d < 3:
            p.I(f"s_add_u32 s{S_DS}, s{S_DS}, 65536")
    p.I(f"v_lshlrev_b32 v49, 7, v{PA}")
    p.I(f"s_lshl_b32 s{S_T1}, s{S_HG}, 2")
    p.I(f"s_add_u32 s{S_T0}, s{S_T2}, s{S_T1}")
    p.I("v_mov_b32 v48, 1")
    p.I(f"s_mov_b64 {sr(S_EX,2)}, exec")
    p.I("s_mov_b64 exec, 15")
    p.wait(vm=0)
    p.I(f"buffer_store_dword v48, v49, {sr(SRD_WS,4)}, s{S_T0} offen sc1")
    p.I(f"s_mov_b64 exec, {sr(S_EX,2)}")
    stamp(p, 11)
    p.I(f"s_lshl_b32 s{S_T0}, s{S_HG}, 9")
    p.I(f"s_add_u32 s{S_T2}, s{S_T2}, s{S_T0}")
    p.I(f"v_cmp_ne_u32 {sr(S_EX,2)}, s{S_T1}, v{PA}")
    p.I(f"s_mov_b32 s{S_SPIN}, {SPIN}")
    p.label("L_G_sp2")
    p.I(f"buffer_load_dword v{POLL}, v{PA}, {sr(SRD_WS,4)}, s{S_T2} offen sc1")
    p.I(f"v_cmp_ne_u32 vcc, 1, v{POLL}")
    p.I(f"s_and_b64 vcc, vcc, {sr(S_EX,2)}")
    p.I("s_cbranch_vccz L_G_ok2")
    p.I(f"s_sub_u32 s{S_SPIN}, s{S_SPIN}, 1")
    p.I(f"s_cmp_lg_u32 s{S_SPIN}, 0")
    p.I("s_cbranch_scc1 L_G_sp2")
    p.label("L_G_ok2")
    stamp(p, 12)
    p.I(f"s_lshl_b32 s{S_T0}, s{S_HG}, 16")
    p.I(f"s_add_u32 s{S_T3}, s{S_T3}, s{S_T0}")
    for i in range(3):
        p.I(f"s_add_u32 s{S_T0}, s{S_HG}, {i+1}")
        p.I(f"s_and_b32 s{S_T0}, s{S_T0}, 3")
        p.I(f"s_lshl_b32 s{S_T0}, s{S_T0}, 14")
        p.I(f"s_add_u32 s{S_T0}, s{S_T0}, s{S_T3}")
        for j in range(4):
            p.I(f"buffer_load_dwordx4 {vr(G_B + 16*(i+1) + 4*j, 4)}, v{OV}, {sr(SRD_WS,4)}, s{S_T0} offen offset:{j*1024} sc1")
    p.I("v_and_b32 v48, 31, v0")
    p.I("v_lshlrev_b32 v48, 10, v48")
    p.I("v_lshrrev_b32 v49, 5, v0")
    p.I("v_lshl_add_u32 v48, v49, 4, v48")
    p.I(f"s_lshl_b32 s{S_T0}, s{S_B}, 17")
    p.I(f"s_lshl_b32 s{S_T1}, s{S_HG}, 15")
    p.I(f"s_add_u32 s{S_T0}, s{S_T0}, s{S_T1}")
    p.I(f"s_lshl_b32 s{S_T1}, s{S_P}, 8")
    p.I(f"s_add_u32 s{S_T0}, s{S_T0}, s{S_T1}")
    p.I(f"s_lshl_b32 s{S_T1}, s{SG}, 6")
    p.I(f"s_add_u32 s{S_T0}, s{S_T0}, s{S_T1}")
    for i in range(3):
        for k in range(16):
            p.I(f"v_add_f32 v{G_B+k}, v{G_B+k}, v{G_B+16*(i+1)+k}")
    for k in range(8):
        p.I(f"v_cvt_pk_bf16_f32 v{G_B+k}, v{G_B+2*k}, v{G_B+2*k+1}")
    p.I(f"buffer_store_dwordx4 {vr(G_B,4)}, v48, {sr(SRD_OUT,4)}, s{S_T0} offen")
    p.I(f"buffer_store_dwordx4 {vr(G_B+4,4)}, v48, {sr(SRD_OUT,4)}, s{S_T0} offen offset:32")
    if STAMP in (1, 2):
        p.wait(vm=0)
        stamp(p, 13)
        p.I(f"s_cmp_lg_u32 s{S_WAVE}, 4")
        p.I("s_cbranch_scc1 L_exit")
        stamp_store(p, 14, 0)
    p.I("s_endpgm")


def main():
    out = sys.argv[1]
    scheds = [Sched(c) for c in CLASSES]
    if os.environ.get("SHOW"):
        for sc in scheds:
            print(" ".join(f"{e.kind}{e.idx}@{e.at}{e.who}>{e.need}[{e.slot}]" for e in sc.issued))
    p = Prog()
    prologue(p, 256)
    p.I(f"s_cmp_lt_u32 s{S_WAVE}, 4")
    p.I("s_cbranch_scc1 L_A")
    loader_setup(p, G_R, "xwk")
    for c in range(1, NCLS):
        p.I(f"s_cmp_eq_u32 s{S_CLS}, {c}")
        p.I(f"s_cbranch_scc1 L_G_cls{c}")
    for c in range(NCLS):
        if c:
            p.label(f"L_G_cls{c}")
        p.reset_state()
        p.nop(2)
        gen_G_class(p, c, scheds[c])
    gen_G_final(p)
    p.label("L_A")
    p.reset_state()
    gen_A(p, scheds)
    p.label("L_exit")
    p.I("s_endpgm")
    s = "; @launch grid=(256,1,1) block=(512,1,1) lds=163840\n"
    s += '.amdgcn_target "amdgcn-amd-amdhsa--gfx950"\n.text\n'
    s += kernel_header(KNAME) + p.text()
    s += '.section .rodata,"a"\n'
    s += kernel_desc(KNAME, 256, 102, 256)
    open(out, "w").write(s)
    print("nops inserted:", p.nops_inserted, "lines", len(p.lines))


main()
```

```python
import sys, math, struct, os
from asmlib import Prog, vr, sr, kernel_header, kernel_desc

STAMP = int(os.environ.get("STAMP", "0"))
KVFLAGS = os.environ.get("KVFLAGS", "nt")
AUXFLAGS = os.environ.get("AUXFLAGS", "")
OFLAGS = os.environ.get("OFLAGS", "sc1")
STFLAGS = os.environ.get("STFLAGS", "sc1")
PRIO_A = int(os.environ.get("PRIO_A", "0"))
PRIO_G = int(os.environ.get("PRIO_G", "0"))
ROT = int(os.environ.get("ROT", "1"))
DT = int(os.environ.get("DT", "4"))
CLASSES = eval(os.environ.get("CLASSES", "[dict(npre=0,qb=1,mid=8),dict(npre=0,qb=0,mid=0)]"))
NCLS = len(CLASSES)
KD = int(os.environ.get("KD", "4"))
GLEAD = int(os.environ.get("GLEAD", "2"))
PER = int(os.environ.get("PER", "3"))
KEARLY = int(os.environ.get("KEARLY", "0"))
KNAME = "standalone__mha_block_cached__near_ridge_kernel"
if KVFLAGS == "-":
    KVFLAGS = ""

WS_PART = 16 << 20
WS_STAMP = 32 << 20
WS_F1 = 48 << 20
WS_F2 = 49 << 20
SPIN = "0x20000"
HSLOT = 2


def f32bits(x):
    return struct.unpack("<I", struct.pack("<f", x))[0]


QSCALE = hex(f32bits(math.log2(math.e) / math.sqrt(128.0)))
THR = hex(f32bits(40.0))

S_WAVE = 3
SRD_X, SRD_K, SRD_V, SRD_WQ, SRD_WO, SRD_OUT, SRD_WS, SRD_DBG = 8, 12, 16, 20, 24, 28, 32, 4
S_B, S_H, S_T0, S_T1, S_T2, S_T3 = 36, 37, 38, 39, 56, 57
S_HEADCNT = 58
S_XBASE, S_WQBASE, S_KVBASE, S_OBASE = 59, 60, 61, 62
S_HG = 63
S_RET = 64
S_SCALE, S_THR = 66, 67
S_M0B = 68
S_P = 69
S_CLS = 70
S_BL = 71
S_DS = 54
S_FLAG = 46
S_PUB = 45
S_G = 47
S_C0 = 48
S_WOB = 49
S_OINB = 50
S_SPIN = 51
S_EX = 52
S_FIRST = 44
S_NEEDPUB = 43
S_STAMP = 72


def stamp(p, idx):
    if STAMP in (1, 2):
        p.raw(f"  {'s_memtime' if STAMP == 2 else 's_memrealtime'} s[{S_STAMP+2*idx}:{S_STAMP+1+2*idx}]")


def stamp_store(p, n, kern):
    p.raw("  s_waitcnt lgkmcnt(0)")
    p.I(f"s_lshl_b32 s{S_T0}, s2, 8")
    p.I(f"s_add_u32 s{S_T0}, s{S_T0}, {WS_STAMP + kern*65536}")
    p.I("v_mov_b32 v30, 0")
    for i in range(n):
        p.I(f"v_mov_b32 v32, s{S_STAMP+2*i}")
        p.I(f"v_mov_b32 v33, s{S_STAMP+1+2*i}")
        p.I(f"buffer_store_dwordx2 v[32:33], v30, {sr(SRD_WS,4)}, s{S_T0} offen offset:{8*i}")
        p.nop(2)


def prologue(p, nwg):
    p.I(f"s_cmp_ge_u32 s2, {nwg}")
    p.I("s_cbranch_scc1 L_exit")
    p.I("s_load_dwordx8 s[40:47], s[0:1], 0")
    p.I("s_load_dwordx8 s[48:55], s[0:1], 32")
    p.I("v_lshrrev_b32 v1, 6, v0")
    p.I(f"v_readfirstlane_b32 s{S_WAVE}, v1")
    p.I("v_and_b32 v0, 63, v0")
    p.I(f"s_bfe_u32 s{S_BL}, s2, {(3 << 16) | 3}")
    p.I(f"s_and_b32 s{S_T0}, s2, 1")
    p.I(f"s_lshl_b32 s{S_T0}, s{S_T0}, 3")
    p.I(f"s_add_u32 s{S_B}, s{S_T0}, s{S_BL}")
    p.I(f"s_bfe_u32 s{S_HG}, s2, {(2 << 16) | 1}")
    p.I(f"s_lshr_b32 s{S_P}, s2, 6")
    p.I(f"s_lshl_b32 s{S_T0}, s{S_HG}, 3")
    p.I(f"s_add_u32 s{S_H}, s{S_T0}, s{S_P}")
    p.I(f"s_and_b32 s{S_CLS}, s{S_BL}, {NCLS-1}")
    p.raw("  s_waitcnt lgkmcnt(0)")
    for srd, src, size in ((SRD_X, 40, 2 << 20), (SRD_WQ, 46, 4 << 20), (SRD_K, 42, 64 << 20), (SRD_V, 44, 64 << 20),
                           (SRD_WO, 48, 4 << 20), (SRD_OUT, 50, 2 << 20), (SRD_DBG, 52, 256), (SRD_WS, 54, 256 << 20)):
        p.I(f"s_mov_b32 s{srd}, s{src}")
        p.I(f"s_and_b32 s{srd+1}, s{src+1}, 0xffff")
        p.I(f"s_mov_b32 s{srd+2}, {size}")
        p.I(f"s_mov_b32 s{srd+3}, 0x20000")
    p.I(f"s_and_b32 s{S_G}, s{S_WAVE}, 3")
    p.I(f"s_lshl_b32 s{S_M0B}, s{S_G}, 12")
    p.I(f"s_lshl_b32 s{S_XBASE}, s{S_B}, 17")
    p.I(f"s_lshl_b32 s{S_WQBASE}, s{S_H}, 8")
    p.I(f"s_lshl_b32 s{S_T0}, s{S_B}, 5")
    p.I(f"s_add_u32 s{S_T0}, s{S_T0}, s{S_H}")
    p.I(f"s_lshl_b32 s{S_KVBASE}, s{S_T0}, 17")
    p.I(f"s_lshl_b32 s{S_OBASE}, s{S_T0}, 15")
    if ROT == 1:
        p.I(f"s_lshl_b32 s{S_T0}, s{S_P}, 1")
        p.I(f"s_add_u32 s{S_C0}, s{S_BL}, s{S_T0}")
    elif ROT == 2:
        p.I(f"s_add_u32 s{S_T0}, s{S_BL}, s{S_P}")
        p.I(f"s_and_b32 s{S_T0}, s{S_T0}, 1")
        p.I(f"s_lshl_b32 s{S_C0}, s{S_T0}, 2")
    else:
        p.I(f"s_mov_b32 s{S_C0}, 0")


def scalars2(p):
    p.I(f"s_lshl_b32 s{S_WOB}, s{S_HG}, 20")
    p.I(f"s_lshl_b32 s{S_T0}, s{S_P}, 8")
    p.I(f"s_add_u32 s{S_WOB}, s{S_WOB}, s{S_T0}")
    p.I(f"s_lshl_b32 s{S_OINB}, s{S_B}, 20")
    p.I(f"s_lshl_b32 s{S_T0}, s{S_HG}, 18")
    p.I(f"s_add_u32 s{S_OINB}, s{S_OINB}, s{S_T0}")
    p.I(f"s_add_u32 s{S_OINB}, s{S_OINB}, s{S_M0B}")
    p.I(f"s_lshl_b32 s{S_T0}, s{S_B}, 2")
    p.I(f"s_add_u32 s{S_T0}, s{S_T0}, s{S_HG}")
    p.I(f"s_lshl_b32 s{S_T0}, s{S_T0}, 11")
    p.I(f"s_lshl_b32 s{S_T1}, s{S_G}, 7")
    p.I(f"s_add_u32 s{S_T0}, s{S_T0}, s{S_T1}")
    p.I(f"s_add_u32 s{S_FLAG}, s{S_T0}, {WS_F1}")
    p.I(f"s_lshl_b32 s{S_T1}, s{S_P}, 2")
    p.I(f"s_add_u32 s{S_PUB}, s{S_FLAG}, s{S_T1}")
    p.I(f"s_mov_b32 s{S_SCALE}, {QSCALE}")


def slot_q(c):
    return [2, 4, 0][c % 3]


def slot_k(t):
    return (6 + t) % 10


def slot_v(t):
    return (4 + t) % 10


class AddrSet:
    def __init__(self, p, regs):
        self.p, self.regs, self.hi = p, regs, 0

    def to(self, slot):
        hi = slot // 4
        if hi != self.hi:
            d = (hi - self.hi) * 65536
            for r in self.regs:
                if d > 0:
                    self.p.I(f"v_add_u32 v{r}, {d}, v{r}")
                else:
                    self.p.I(f"v_subrev_u32 v{r}, {-d}, v{r}")
            self.hi = hi
        return (slot % 4) * 16384


def tr_lane_base(p, dst, t1, t3):
    p.I(f"v_bfe_u32 v{t1}, v0, 2, 2")
    p.I(f"v_bfe_u32 v{dst}, v0, 3, 1")
    p.I(f"v_lshlrev_b32 v{dst}, 6, v{dst}")
    p.I(f"v_lshl_add_u32 v{dst}, v{t1}, 7, v{dst}")
    p.I(f"v_bfe_u32 v{t3}, v0, 4, 1")
    p.I(f"v_lshl_add_u32 v{dst}, v{t3}, 5, v{dst}")


def add_pi(p, dst, src, t3):
    p.I(f"v_and_b32 v{t3}, 1, v0")
    p.I(f"v_lshl_add_u32 v{dst}, v{t3}, 4, v{src}")
    p.I(f"v_bfe_u32 v{t3}, v0, 1, 1")
    p.I(f"v_lshl_add_u32 v{dst}, v{t3}, 3, v{dst}")


class FragRing:
    def __init__(self, p, items, base, n):
        self.p, self.items, self.base, self.n = p, items, base, n
        self.issued = 0

    def reg(self, i):
        return self.base + 4 * (i % self.n)

    def issue_next(self):
        if self.issued >= len(self.items):
            return False
        i = self.issued
        self.items[i](self.reg(i))
        self.issued += 1
        return True


LX, LW, LK, LV, LWO, LOV, LPA, LPOLL, LDPOLL, LT = 0, 4, 8, 12, 16, 20, 21, 22, 23, 24


def loader_setup(p, R, which):
    t = lambda i: R + LT + i
    l8, m8, u1, l16, rr, hf, sw, tmp = [t(i) for i in range(8)]
    p.I(f"v_lshrrev_b32 v{l8}, 3, v0")
    p.I(f"v_and_b32 v{m8}, 7, v0")
    p.I(f"v_bfe_u32 v{u1}, v0, 4, 1")
    p.I(f"v_lshrrev_b32 v{l16}, 4, v0")
    p.I(f"v_bfe_u32 v{rr}, v0, 3, 2")
    p.I(f"v_lshrrev_b32 v{hf}, 5, v0")
    p.I(f"v_lshlrev_b32 v{sw}, 2, v{u1}")
    p.I(f"v_xor_b32 v{sw}, v{sw}, v{m8}")
    p.I(f"v_lshlrev_b32 v{sw}, 4, v{sw}")
    for w in which:
        if w == "x":
            p.I(f"s_lshl_b32 s{S_T0}, s{S_G}, 15")
            for j in range(4):
                p.I(f"v_add_u32 v{tmp}, {4*j}, v{l16}")
                p.I(f"v_and_b32 v{tmp}, 7, v{tmp}")
                p.I(f"v_xor_b32 v{tmp}, v{tmp}, v{m8}")
                p.I(f"v_lshlrev_b32 v{tmp}, 4, v{tmp}")
                p.I(f"v_lshl_add_u32 v{tmp}, v{l8}, 10, v{tmp}")
                p.I(f"v_add_u32 v{tmp}, {8*j*1024 - j*1024}, v{tmp}")
                p.I(f"v_add_u32 v{R+LX+j}, s{S_T0}, v{tmp}")
        elif w == "w":
            p.I(f"v_lshl_add_u32 v{tmp}, v{rr}, 13, v{sw}")
            p.I(f"v_lshl_add_u32 v{tmp}, v{hf}, 7, v{tmp}")
            p.I(f"s_lshl_b32 s{S_T0}, s{S_G}, 17")
            p.I(f"v_add_u32 v{tmp}, s{S_T0}, v{tmp}")
            for j in range(4):
                p.I(f"v_add_u32 v{R+LW+j}, {4*j*8192 - j*1024}, v{tmp}")
        elif w == "k":
            for j in range(4):
                p.I(f"v_add_u32 v{tmp}, {2*j}, v{u1}")
                p.I(f"v_xor_b32 v{tmp}, v{tmp}, v{m8}")
                p.I(f"v_lshlrev_b32 v{tmp}, 4, v{tmp}")
                p.I(f"v_lshl_add_u32 v{tmp}, v{rr}, 8, v{tmp}")
                p.I(f"v_lshl_add_u32 v{tmp}, v{hf}, 7, v{tmp}")
                p.I(f"v_add_u32 v{R+LK+j}, s{S_M0B}, v{tmp}")
        elif w == "v":
            p.I(f"v_lshl_add_u32 v{tmp}, v{l8}, 8, v{sw}")
            p.I(f"s_lshl_b32 s{S_T0}, s{S_G}, 13")
            p.I(f"v_add_u32 v{tmp}, s{S_T0}, v{tmp}")
            for j in range(4):
                p.I(f"v_add_u32 v{R+LV+j}, {8*j*256 - j*1024}, v{tmp}")
        elif w == "o":
            p.I(f"v_lshl_add_u32 v{tmp}, v{rr}, 10, v{sw}")
            p.I(f"v_lshl_add_u32 v{tmp}, v{hf}, 7, v{tmp}")
            p.I(f"s_lshl_b32 s{S_T0}, s{S_G}, 14")
            p.I(f"v_add_u32 v{tmp}, s{S_T0}, v{tmp}")
            for j in range(4):
                p.I(f"v_add_u32 v{R+LWO+j}, {4*j*1024 - j*1024}, v{tmp}")
            p.I(f"v_lshlrev_b32 v{R+LOV}, 4, v0")
            p.I(f"v_and_b32 v{tmp}, 3, v0")
            p.I(f"v_lshlrev_b32 v{R+LPA}, 2, v{tmp}")


class E:
    def __init__(self, kind, idx, need, slot=None, rel=None, gate=None):
        self.kind, self.idx, self.need, self.slot, self.rel, self.gate = kind, idx, need, slot, rel, gate
        self.free = -1
        self.at = None
        self.who = None


class Sched:
    def __init__(self, cfg):
        npre, mid, qb = cfg.get("npre", 0), cfg.get("mid", 8), cfg.get("qb", 1)
        self.qb = qb
        self.steps = []
        ents = []
        st = self.steps

        def phase(name, n, mk):
            for i in range(n):
                mk(i, len(st))
                st.append((name, i))

        def ostep(o):
            def mk(i, s):
                g = {0: 1, 8: 2, 12: 3}.get(o + i)
                ents.extend([E("wo", o + i, s, None, s + 1), E("o", o + i, s, None, s + 1, gate=g)])
            return mk

        def qbphase():
            phase("QB", 8, lambda c, s: ents.append(E("wb", c, s, None, s + 1)))

        phase("QA", 8, lambda c, s: ents.extend([E("x", c, s, slot_q(c), s + 1), E("w", c, s, slot_q(c) + 1, s + 1)]))
        if qb == 0:
            qbphase()
        self.ka0 = len(st)
        phase("K", 8, lambda t, s: ents.append(E("k", t, s, slot_k(t), s + 2)))
        phase("V", 8, lambda t, s: ents.append(E("v", t, s, slot_v(t), s + (2 if t < 7 else 1))))
        self.seg1 = len(st)
        if qb == 1:
            qbphase()
            self.hw = len(st) - 1
        else:
            self.hw = self.seg1 - 3
        self.hstep = max(self.hw + 1, self.seg1)
        for i in range(2):
            ents.append(E("hand", i, self.hw, HSLOT + i, self.hstep + 1))
        phase("O", mid, ostep(0))
        self.kb0 = len(st)
        phase("K", 8, lambda t, s: ents.append(E("k", 8 + t, s, slot_k(t), s + 2)))
        phase("V", 8, lambda t, s: ents.append(E("v", 8 + t, s, slot_v(t), s + (2 if t < 7 else 1))))
        self.tail0 = len(st)
        phase("O", 16 - mid, ostep(mid))
        self.n = len(st)
        ents.sort(key=lambda e: e.need)
        sf = {x: -1 for x in range(10)}
        fixed = [e for e in ents if e.slot is not None]
        kroom = cfg.get("kroom", 0)

        def eff(f):
            if f.kind == "k" and f.idx % 8 < KD:
                return f.need - f.idx % 8 - kroom + (f.idx % 8) // 2
            return f.need + 3 if f.kind == "hand" else f.need
        for e in ents:
            if e.slot is None:
                def cost(x):
                    nxt = min((eff(f) for f in fixed if f.slot == x and f.need >= e.need), default=10 ** 6)
                    if sf[x] > e.need - 1:
                        return (1000, 0)
                    pen = max(0, (e.rel + 3) - nxt)
                    return (pen, sf[x])
                e.slot = min(range(10), key=cost)
            e.free = sf[e.slot]
            assert e.free <= e.need - (0 if e.kind == "hand" else 1), (e.kind, e.idx, e.need, e.free)
            sf[e.slot] = e.rel
        self.ents = ents
        order = [e for e in ents if e.kind != "hand"]
        ks = [e for e in order if e.kind == "k"][:npre]
        for e in ks:
            order.remove(e)
        order = ks + order
        for base, kear in ((0, cfg.get("keA", 0)), (8, cfg.get("keB", 0))):
            if kear:
                kk = [e for e in order if e.kind == "k" and base + (npre if base == 0 else 0) <= e.idx < base + KD]
                pos = order.index(kk[0]) - kear
                for e in kk:
                    order.remove(e)
                for i, e in enumerate(kk):
                    order.insert(pos + i, e)
        self.order = order
        lastVB = self.tail0 - 1
        for e in order:
            if e.gate == 1:
                e.free = max(e.free, self.seg1 + 3)
            if e.gate == 2:
                e.free = max(e.free, lastVB)
            if e.gate == 3:
                e.free = max(e.free, lastVB + 1)
        self._plan()

    def consumer(self, s):
        return "A" if self.steps[s][0] in ("QA", "K", "V") else "G"

    def loader(self, s):
        if s < 0:
            return "G"
        return "G" if self.consumer(s) == "A" else "A"

    def _plan(self):
        order = list(self.order)
        issued = []
        landed = set()
        for s in range(-1, self.n):
            for e in issued:
                if e.need <= s:
                    for f in issued[:issued.index(e) + 1]:
                        landed.add(f)
            nstep = 0
            while order:
                infl = sum(1 for e in issued if e not in landed)
                cand = None
                for i, e in enumerate(order[:12]):
                    if i > 0 and not e.kind in ("o", "wo"):
                        break
                    if e.kind == "o" and any(f.kind == "o" for f in order[:i]):
                        continue
                    if e.free <= s and not (e.gate and e.need > s + GLEAD):
                        cand = e
                        break
                    if e.kind != "o":
                        break
                if cand is None:
                    break
                must = any(f.need <= s + 1 for f in order)
                if (infl >= DT or (nstep >= PER and s >= 0)) and not must:
                    break
                who = self.loader(s)
                if who == "A" and cand.kind in ("k", "v") and not (cand.kind == "k" and cand.idx % 8 < KD):
                    break
                nstep += 1
                cand.at, cand.who = s, who
                issued.append(cand)
                order.remove(cand)
            for e in order:
                assert e.need > s + 1 or s == self.n - 1, ("not issued in time", e.kind, e.idx, e.need, s, e.free)
        assert not order
        self.issued = issued


class Loader:
    def __init__(self, p, R, tag):
        self.p, self.R, self.tag = p, R, tag
        self.cnt = 0
        self.mark = {}
        self.dchecked = False

    def I(self, t):
        if t.startswith("buffer_"):
            self.cnt += 1
        self.p.I(t)

    def kappa(self, o):
        p = self.p
        p.I(f"s_add_u32 s{S_T1}, s{S_BL}, {o}")
        if o < 8:
            p.I(f"s_and_b32 s{S_T1}, s{S_T1}, 7")
        else:
            p.I(f"s_and_b32 s{S_T1}, s{S_T1}, 3")
            p.I(f"s_lshl_b32 s{S_T1}, s{S_T1}, 1")
            p.I(f"s_add_u32 s{S_T1}, s{S_T1}, {8 if o < 12 else 9}")

    def spin(self, kind, ev):
        p, R = self.p, self.R
        name = f"{self.tag}{kind}{ev}"
        p.flush_hazards()
        p.I(f"s_mov_b32 s{S_SPIN}, {SPIN}")
        if kind == "d":
            p.I(f"s_lshl_b32 s{S_T0}, s{S_B}, 4")
            p.I(f"v_mov_b32 v{R+LT}, 0")
        else:
            p.I(f"s_add_u32 s{S_T0}, s{S_FLAG}, {ev*512}")
        p.label(f"L_sp_{name}")
        if kind == "d":
            self.I(f"buffer_load_dword v{R+LPOLL}, v{R+LT}, {sr(SRD_DBG,4)}, s{S_T0} offen sc1")
            p.wait(vm=0)
            p.I(f"v_cmp_gt_u32 vcc, 16, v{R+LPOLL}")
        else:
            self.I(f"buffer_load_dword v{R+LPOLL}, v{R+LPA}, {sr(SRD_WS,4)}, s{S_T0} offen sc1")
            p.wait(vm=0)
            p.I(f"v_cmp_ne_u32 vcc, 1, v{R+LPOLL}")
        p.I(f"s_cbranch_vccz L_ok_{name}")
        p.I(f"s_sub_u32 s{S_SPIN}, s{S_SPIN}, 1")
        p.I(f"s_cmp_lg_u32 s{S_SPIN}, 0")
        p.I(f"s_cbranch_scc1 L_sp_{name}")
        p.label(f"L_ok_{name}")

    def issue_at(self, sc, who, s):
        for e in sc.issued:
            if e.who == who and e.at == s:
                self.issue(e)
        for e in sc.issued:
            if e.gate and e.who == who and e.at == s + 1 and sc.loader(s) == who and s > sc.seg1:
                self.p.I(f"s_add_u32 s{S_T0}, s{S_FLAG}, {e.gate*512}")
                self.I(f"buffer_load_dword v{self.R+LPOLL}, v{self.R+LPA}, {sr(SRD_WS,4)}, s{S_T0} offen sc1")
                self.prepolled = e.gate

    def issue(self, e):
        p, R = self.p, self.R
        if e.gate:
            if getattr(self, "prepolled", 0) == e.gate:
                p.I(f"v_cmp_ne_u32 vcc, 1, v{R+LPOLL}")
                p.I(f"s_cbranch_vccz L_ok_{self.tag}f{e.gate}")
                keep = (p.t, list(p.vm), self.cnt)
                self.spin("f", e.gate)
                p.t, p.vm, self.cnt = keep
            else:
                self.spin("f", e.gate)
        k = e.kind
        fl = AUXFLAGS
        if k in ("x", "w", "wb"):
            p.I(f"s_add_u32 s{S_T1}, s{S_C0}, {e.idx}")
            p.I(f"s_and_b32 s{S_T1}, s{S_T1}, 7")
            if k == "x":
                p.I(f"s_lshl_b32 s{S_DS}, s{S_T1}, 7")
                p.I(f"s_add_u32 s{S_DS}, s{S_DS}, s{S_XBASE}")
                vo, srd = [R + LX + j for j in range(4)], SRD_X
            else:
                p.I(f"s_lshl_b32 s{S_DS}, s{S_T1}, 19")
                p.I(f"s_add_u32 s{S_DS}, s{S_DS}, s{S_WQBASE}")
                if k == "wb":
                    p.I(f"s_add_u32 s{S_DS}, s{S_DS}, 1024")
                vo, srd = [R + LW + j for j in range(4)], SRD_WQ
        elif k in ("k", "v"):
            hd, t = e.idx // 8, e.idx % 8
            off = hd * 4 * 131072 + (t * 16384 if k == "k" else (t % 4) * 32768 + (t // 4) * 128)
            p.I(f"s_add_u32 s{S_DS}, s{S_KVBASE}, {off}")
            vo, srd = ([R + LK + j for j in range(4)], SRD_K) if k == "k" else ([R + LV + j for j in range(4)], SRD_V)
            fl = KVFLAGS
        elif k == "wo":
            self.kappa(e.idx)
            p.I(f"s_lshl_b32 s{S_DS}, s{S_T1}, 16")
            p.I(f"s_add_u32 s{S_DS}, s{S_DS}, s{S_WOB}")
            vo, srd = [R + LWO + j for j in range(4)], SRD_WO
        else:
            self.kappa(e.idx)
            p.I(f"s_lshl_b32 s{S_DS}, s{S_T1}, 14")
            p.I(f"s_add_u32 s{S_DS}, s{S_DS}, s{S_OINB}")
            vo, srd, fl = [R + LOV] * 4, SRD_WS, OFLAGS
        p.I(f"s_add_u32 m0, s{S_M0B}, {e.slot * 16384}")
        for j in range(4):
            self.I(f"buffer_load_dwordx4 v{vo[j]}, {sr(srd,4)}, s{S_DS} offen offset:{j*1024} {fl} lds")
        self.mark[e] = self.cnt

    def wait_for(self, s, **kw):
        need = [m for e, m in self.mark.items() if e.need == s]
        if need:
            self.p.wait(vm=self.cnt - max(need), **kw)
        elif kw:
            self.p.wait(**kw)


V_AK, V_AW, V_AV, V_AX, V_ST, V_MX, V_T = 2, 6, 8, 10, 14, 15, 1
V_M = 6
V_HQ = 10
V_FR = 16
NFR = 6
V_S = [40, 56, 72]
V_Q = 88
V_P = 120
V_L = 248
V_SEL = 252
V_QACC = 120
V_X = [184, 200]
V_QFR = 16
NQFR = 12
V_RL = 7
A_R = 120


def lane_setup_A(p):
    t0, t1, t2, t3 = 16, 17, 18, 19
    p.I(f"v_lshrrev_b32 v{t0}, 5, v0")
    p.I(f"v_and_b32 v{t1}, 31, v0")
    p.I(f"v_bfe_u32 v{t2}, v0, 1, 3")
    p.I(f"v_xor_b32 v{t2}, v{t2}, v{t0}")
    p.I(f"v_lshlrev_b32 v{t2}, 4, v{t2}")
    p.I(f"v_lshrrev_b32 v{t3}, 2, v{t1}")
    p.I(f"v_lshlrev_b32 v{t3}, 10, v{t3}")
    p.I(f"v_and_b32 v20, 3, v{t1}")
    p.I(f"v_lshl_add_u32 v{t3}, v20, 7, v{t3}")
    p.I(f"v_add_u32 v{V_AK}, v{t3}, v{t2}")
    for i in range(1, 4):
        p.I(f"v_xor_b32 v{V_AK+i}, {i*32}, v{V_AK}")
    p.I(f"v_lshlrev_b32 v{t3}, 7, v{t1}")
    p.I(f"v_add3_u32 v{V_AX}, v{t3}, v{t2}, s{S_M0B}")
    for i in range(1, 4):
        p.I(f"v_xor_b32 v{V_AX+i}, {i*32}, v{V_AX}")
    tr_lane_base(p, t2, t1, t3)
    p.I(f"v_and_b32 v{t3}, 3, v0")
    p.I(f"v_lshl_add_u32 v20, v{t3}, 3, v{t2}")
    p.I(f"v_lshl_add_u32 v{V_AV}, v{t0}, 9, v20")
    p.I(f"v_xor_b32 v{V_AV+1}, 64, v{V_AV}")
    add_pi(p, 20, t2, t3)
    p.I(f"v_lshl_add_u32 v{V_AW}, v{t0}, 11, v20")
    p.I(f"v_xor_b32 v{V_AW+1}, 64, v{V_AW}")
    p.I(f"v_lshlrev_b32 v{V_ST}, 4, v0")
    p.I(f"v_add_u32 v{V_ST}, s{S_M0B}, v{V_ST}")
    p.I(f"v_bfe_u32 v{t1}, v0, 2, 1")
    p.I(f"v_bfe_u32 v{t2}, v0, 4, 1")
    p.I(f"v_cmp_eq_u32 vcc, v{t1}, v{t2}")
    p.I(f"v_mov_b32 v{t3}, 0x3f803f80")
    p.I(f"v_cndmask_b32 v{V_SEL}, 0, v{t3}, vcc")
    for i in range(1, 4):
        p.I(f"v_mov_b32 v{V_SEL+i}, v{V_SEL}")


def flag_store(p, sreg, I=None):
    I = I or p.I
    p.I(f"v_mov_b32 v{V_T}, 1")
    p.I(f"v_mov_b32 v{V_MX}, 0")
    p.I(f"s_mov_b64 {sr(S_EX,2)}, exec")
    p.I("s_mov_b64 exec, 1")
    I(f"buffer_store_dword v{V_T}, v{V_MX}, {sr(SRD_WS,4)}, s{sreg} offen sc1")
    p.I(f"s_mov_b64 exec, {sr(S_EX,2)}")


def gemm_phase(p, nunits, open_unit, frag_item, mfma, ring_base, nfr, extra=None):
    items = [frag_item(c, s, mb) for c in range(nunits) for s in range(4) for mb in range(4)]
    ring = FragRing(p, items, ring_base, nfr)
    open_unit(0)
    opened = 1
    for _ in range(5):
        ring.issue_next()
    AH = nfr - 1
    idle = 0
    n = 16 * nunits
    for fi in range(n):
        c, s, mb = fi // 16, (fi // 4) % 4, fi % 4
        mfma(c, s, mb, ring.reg(fi))
        for _ in range(2):
            if ring.issued < min(opened * 16, fi + 1 + AH, n):
                ring.issue_next()
        if extra:
            extra(fi)
        if ring.issued == opened * 16 and opened < nunits:
            idle += 1
            if idle >= 3:
                open_unit(opened)
                opened += 1
                idle = 0


def gen_A(p, scheds):
    stamp(p, 0)
    lane_setup_A(p)
    scalars2(p)
    if PRIO_A:
        p.I(f"s_setprio {PRIO_A}")
    p.I(f"s_mov_b32 s{S_HEADCNT}, 0")
    ak, aw, av, ax = AddrSet(p, [V_AK + i for i in range(4)]), AddrSet(p, [V_AW, V_AW + 1]), AddrSet(p, [V_AV, V_AV + 1]), AddrSet(p, [V_AX + i for i in range(4)])

    def open_pair(c):
        p.wait(lgkm=0)
        p.I("s_barrier")
        if c == 0:
            stamp(p, 1)
        off = ax.to(slot_q(c))
        for ss in range(4):
            p.I(f"ds_read_b128 {vr(V_X[c % 2] + 4 * ss, 4)}, v{V_AX + ss} offset:{off}")

    def mk_w(c, s, mb):
        def f(reg):
            off = aw.to(slot_q(c) + 1) + s * 4096 + (mb // 2) * 512
            p.I(f"ds_read_b64_tr_b16 {vr(reg, 2)}, v{V_AW + mb % 2} offset:{off}")
            p.I(f"ds_read_b64_tr_b16 {vr(reg + 2, 2)}, v{V_AW + mb % 2} offset:{off + 1024}")
        return f

    def q_mfma(c, s, mb, reg):
        acc = vr(V_QACC + 16 * mb, 16)
        cin = "0" if (c == 0 and s == 0) else acc
        p.I(f"v_mfma_f32_32x32x16_bf16 {acc}, {vr(reg, 4)}, {vr(V_X[c % 2] + 4 * s, 4)}, {cin}")

    gemm_phase(p, 8, open_pair, mk_w, q_mfma, V_QFR, NQFR)

    def mk_k(j, ks):
        def f(reg):
            t = j // 2
            if j % 2 == 0 and ks == 0:
                if t < KD:
                    p.raw(f"  s_waitcnt vmcnt({4 * (KD - 1 - t)})")
                p.I("s_barrier")
            off = ak.to(slot_k(t)) + (j % 2) * 8192 + (ks // 4) * 512
            p.I(f"ds_read_b128 {vr(reg, 4)}, v{V_AK + ks % 4} offset:{off}")
        return f

    def mk_v(ph, kk, mb):
        def f(reg):
            t4, k8 = kk // 8, kk % 8
            if k8 == 0 and mb == 0:
                p.I("s_barrier")
            off = av.to(slot_v(ph * 4 + t4)) + k8 * 2048
            p.I(f"ds_read_b64_tr_b16 {vr(reg, 2)}, v{V_AV + mb} offset:{off}")
            p.I(f"ds_read_b64_tr_b16 {vr(reg + 2, 2)}, v{V_AV + mb} offset:{off + 1024}")
        return f

    kitems = [mk_k(j, ks) for j in range(16) for ks in range(8)]
    vitems = [mk_v(ph, kk, mb) for ph in range(2) for kk in range(32) for mb in range(2)]

    def k_prefetch():
        r = FragRing(p, kitems + vitems, V_FR, NFR)
        for _ in range(6):
            r.issue_next()
        return r

    p.I(f"s_lshl_b32 s{S_T0}, s{S_G}, 13")
    p.I(f"s_add_u32 s{S_T0}, s{S_T0}, {HSLOT*16384}")
    p.I(f"v_lshlrev_b32 v{V_HQ}, 4, v0")
    p.I(f"v_add_u32 v{V_HQ}, s{S_T0}, v{V_HQ}")
    p.I(f"s_mov_b32 s{S_NEEDPUB}, 0")

    def pack_q():
        for mb in range(4):
            for i in range(16):
                r = V_QACC + 16 * mb + i
                p.I(f"v_mul_f32 v{r}, s{S_SCALE}, v{r}")
            for i in range(8):
                r = V_QACC + 16 * mb + 2 * i
                p.I(f"v_cvt_pk_bf16_f32 v{V_Q + 8 * mb + i}, v{r}, v{r+1}")

    def segment(sc, c, s0, s1, tag, R, first=None, at_step=None):
        ld = Loader(p, R, f"{tag}c{c}")
        for s in range(s0, s1):
            ld.wait_for(s, **({"lgkm": 0} if s == sc.hstep + 1 else {}))
            p.I("s_barrier")
            if s == s0 and first:
                first(ld)
            if at_step:
                at_step(s)
            ld.issue_at(sc, "A", s)
        worst = 0
        for e, m in ld.mark.items():
            if e.kind == "k":
                short = 4 * (KD - 1 - e.idx % 8) - (ld.cnt - m)
                worst = max(worst, short)
        if worst > 0:
            p.I(f"s_mov_b32 s{S_DS}, 0x7f000000")
            for _ in range(worst):
                p.raw(f"  buffer_load_dword v245, v{V_ST}, {sr(SRD_K,4)}, s{S_DS} offen")

    for c in range(1, NCLS):
        p.I(f"s_cmp_eq_u32 s{S_CLS}, {c}")
        p.I(f"s_cbranch_scc1 L_A_s0c{c}")
    st0 = (p.t, dict(p.mfma_w), dict(p.mfma_c), list(p.lgkm))
    for c, sc in enumerate(scheds):
        if c:
            p.label(f"L_A_s0c{c}")
            p.reset_state()
            p.nop(12)
        ak.hi = 0
        if sc.ka0 > 8:
            segment(sc, c, 8, sc.ka0, "a0", 200, first=lambda ld: (loader_setup(p, 200, "wk"), None)[1],
                    at_step=lambda s: pack_q() if s == 9 else None)
            ring = k_prefetch()
        else:
            ring = k_prefetch()
            pack_q()
        stamp(p, 2)
        ak_entry = ak.hi
        p.wait(lgkm=0)
        p.flush_hazards()
        if c < NCLS - 1:
            p.I("s_branch L_A_head")
    p.label("L_A_head")
    p.reset_state()
    fi = 0
    for i in range(4):
        p.I(f"v_mov_b32 v{V_L+i}, 0")
    p.I(f"v_mov_b32 v{V_M}, 0")
    p.I(f"s_mov_b32 s{S_THR}, {THR}")
    p.I(f"s_mov_b32 s{S_FIRST}, 1")

    def max_ops(i):
        S = V_S[i % 3]
        a = (lambda r: f"|v{r}|") if i == 0 else (lambda r: f"v{r}")
        return [f"v_max3_f32 v{V_MX}, {a(S)}, {a(S+1)}, {a(S+2)}",
                f"v_max3_f32 v{V_T}, {a(S+3)}, {a(S+4)}, {a(S+5)}",
                f"v_max3_f32 v{V_MX}, v{V_MX}, {a(S+6)}, {a(S+7)}",
                f"v_max3_f32 v{V_T}, v{V_T}, {a(S+8)}, {a(S+9)}",
                f"v_max3_f32 v{V_MX}, v{V_MX}, {a(S+10)}, {a(S+11)}",
                f"v_max3_f32 v{V_T}, v{V_T}, {a(S+12)}, {a(S+13)}",
                f"v_max3_f32 v{V_MX}, v{V_MX}, {a(S+14)}, {a(S+15)}",
                f"v_max_f32 v{V_MX}, v{V_MX}, v{V_T}"]

    def exp_groups(i):
        S = V_S[i % 3]
        gs = []
        for k in range(8):
            g = [f"v_exp_f32 v{S+2*k}, v{S+2*k}", f"v_exp_f32 v{S+2*k+1}, v{S+2*k+1}"]
            if k >= 1:
                g.append(f"v_cvt_pk_bf16_f32 v{V_P + 8*i + k - 1}, v{S+2*k-2}, v{S+2*k-1}")
            gs.append(g)
        gs[7] = gs[7] + [("late", f"v_cvt_pk_bf16_f32 v{V_P + 8*i + 7}, v{S+14}, v{S+15}")]
        return gs

    def lsum(i, h):
        p.I(f"v_mfma_f32_16x16x32_bf16 {vr(V_L,4)}, {vr(V_SEL,4)}, {vr(V_P + 8*i + 4*h, 4)}, {vr(V_L,4)}")

    def reads():
        if fi % 2 == 0:
            ring.issue_next()
            ring.issue_next()

    OACC = [V_Q, V_S[0]]
    stubs = []
    egq = []
    pend = []
    for m in range(256):
        if m < 128:
            j, ks = m // 8, m % 8
            S = vr(V_S[j % 3], 16)
            if m % 2 == 0:
                p.touch([ring.reg(m + 1) + k for k in range(4)])
            p.I(f"v_mfma_f32_32x32x16_bf16 {S}, {vr(ring.reg(m), 4)}, {vr(V_Q + 4 * ks, 4)}, {S if ks else '0'}")
        else:
            ph, kk, mb = (m - 128) // 64, ((m - 128) // 2) % 32, m % 2
            acc = vr(OACC[ph] + 16 * mb, 16)
            if m % 2 == 0:
                p.touch([ring.reg(m + 1) + k for k in range(4)])
            p.I(f"v_mfma_f32_32x32x16_bf16 {acc}, {vr(ring.reg(m), 4)}, {vr(V_P + 4 * kk, 4)}, {'0' if kk == 0 else acc}")
        fi = m + 1
        j, ks = m // 8, m % 8
        i = j - 1
        if ks == 5 and 0 <= i < 16:
            p.I(f"s_cbranch_vccnz L_A_stub{i}")
            p.label(f"L_A_back{i}")
            if i == 0:
                p.I(f"s_mov_b32 s{S_FIRST}, 0")
            stubs.append(i)
            egq.extend(exp_groups(i))
        reads()
        late = []
        if egq:
            for o in egq.pop(0):
                if isinstance(o, tuple):
                    late.append(o[1])
                else:
                    p.I(o)
        if 0 <= i < 16 and ks in (2, 3, 4):
            mo = max_ops(i)
            sl = {2: mo[0:3], 3: mo[3:6], 4: mo[6:8]}[ks]
            for o in sl:
                p.I(o)
        for o in late:
            p.I(o)
        if 0 <= i < 16 and ks == 4:
            p.I(f"v_cmp_nge_f32 vcc, s{S_THR}, v{V_MX}")
        if 1 <= i <= 16 and ks == 6:
            lsum(i - 1, 0)
        if 2 <= i <= 17 and ks == 0:
            lsum(i - 2, 1)
        if m == 16 * KD + 1:
            p.I(f"s_cmp_eq_u32 s{S_NEEDPUB}, 0")
            p.I("s_cbranch_scc1 L_A_nopub")
            t_keep = p.t
            p.raw("  s_waitcnt vmcnt(0)")
            p.I(f"s_add_u32 s{S_T0}, s{S_PUB}, 512")
            flag_store(p, S_T0)
            p.label("L_A_nopub")
            p.t = t_keep
        if m == 127:
            stamp(p, 3)
        if m == 128 + 30:
            p.I(f"v_rcp_f32 v{V_RL}, v{V_L}")
        if m == 191:
            stamp(p, 4)
            pend = None
        if m >= 192 + 4:
            if pend is None:
                pend = epi_ops(OACC, 0)
            for _ in range(4):
                if pend:
                    p.I(pend.pop(0))
        if m == 192 + 36:
            p.wait(vm=0)
            p.I(f"s_lshl_b32 s{S_T0}, s{S_HEADCNT}, 10")
            p.I(f"s_add_u32 s{S_T0}, s{S_T0}, s{S_PUB}")
            flag_store(p, S_T0)
    assert not egq and not pend
    stamp(p, 5)
    for o in epi_ops(OACC, 1):
        p.I(o)
    av.to(0)
    ak.to(0)
    p.I(f"s_cmp_eq_u32 s{S_HEADCNT}, 1")
    p.I("s_cbranch_scc1 L_A_tail")
    p.I(f"s_add_u32 s{S_OBASE}, s{S_OBASE}, {4*32768}")
    p.I(f"s_mov_b32 s{S_HEADCNT}, 1")
    if STAMP in (1, 2):
        p.raw("  s_waitcnt lgkmcnt(0)")
        for i in range(6):
            p.I(f"s_mov_b32 s{S_STAMP+12+i}, s{S_STAMP+6+i}")
    for c in range(1, NCLS):
        p.I(f"s_cmp_eq_u32 s{S_CLS}, {c}")
        p.I(f"s_cbranch_scc1 L_A_s1c{c}")

    def read_q():
        for q in range(8):
            p.I(f"ds_read_b128 {vr(V_Q + 4*q, 4)}, v{V_HQ} offset:{q*1024}")

    for c, sc in enumerate(scheds):
        if c:
            p.label(f"L_A_s1c{c}")
        p.reset_state()
        p.nop(2)
        ak.hi = 0
        if sc.kb0 > sc.seg1:
            def first(ld):
                loader_setup(p, A_R, "wko")
                p.wait(vm=0)
                p.I(f"s_add_u32 s{S_T0}, s{S_PUB}, 512")
                flag_store(p, S_T0, ld.I)
            segment(sc, c, sc.seg1, sc.kb0, "a1", A_R, first=first, at_step=lambda s: read_q() if s == sc.hstep else None)
        else:
            p.I(f"s_mov_b32 s{S_NEEDPUB}, 1")
        k_prefetch()
        if sc.hstep == sc.kb0:
            read_q()
        assert ak.hi == ak_entry
        p.wait(lgkm=0)
        p.flush_hazards()
        p.I("s_branch L_A_head")
    p.label("L_A_tail")
    p.reset_state()
    p.nop(2)
    loader_setup(p, A_R, "o")
    p.wait(vm=0)
    p.I(f"s_add_u32 s{S_T0}, s{S_PUB}, {3*512}")
    flag_store(p, S_T0)
    stamp(p, 9)
    for c in range(1, NCLS):
        p.I(f"s_cmp_eq_u32 s{S_CLS}, {c}")
        p.I(f"s_cbranch_scc1 L_A_s2c{c}")
    for c, sc in enumerate(scheds):
        if c:
            p.label(f"L_A_s2c{c}")
        p.reset_state()
        p.nop(2)
        ld = Loader(p, A_R, f"a2c{c}")
        for s in range(sc.tail0, sc.n):
            ld.wait_for(s)
            p.I("s_barrier")
            ld.issue_at(sc, "A", s)
        if STAMP in (1, 2):
            p.I(f"s_cmp_lg_u32 s{S_WAVE}, 0")
            p.I("s_cbranch_scc1 L_exit")
            stamp_store(p, 10, 1)
        p.I("s_endpgm")

    for i in stubs:
        p.label(f"L_A_stub{i}")
        p.raw(f"  s_call_b64 {sr(S_RET,2)}, L_A_fix{i % 3}")
        if i == 15:
            for k in range(32):
                p.raw(f"  v_mul_f32 v{OACC[0]+k}, v{OACC[0]+k}, v{V_MX}")
            p.raw("  s_nop 3")
        p.raw(f"  s_branch L_A_back{i}")
    for par in range(3):
        S = V_S[par]
        p.label(f"L_A_fix{par}")
        p.reset_state()
        p.nop(16)
        p.I(f"s_mov_b32 s{S_THR}, 0xff800000")
        for k in range(16):
            p.I(f"v_sub_f32 v{S+k}, v{S+k}, v{V_M}")
        p.I(f"v_max3_f32 v{V_MX}, v{S}, v{S+1}, v{S+2}")
        for k in range(3, 15, 2):
            p.I(f"v_max3_f32 v{V_MX}, v{V_MX}, v{S+k}, v{S+k+1}")
        p.I(f"v_max_f32 v{V_MX}, v{V_MX}, v{S+15}")
        p.I(f"v_mov_b32 v{V_T}, v{V_MX}")
        p.I(f"v_permlane32_swap_b32 v{V_T}, v{V_MX}")
        p.I(f"v_max_f32 v{V_MX}, v{V_MX}, v{V_T}")
        p.I(f"v_ceil_f32 v{V_MX}, v{V_MX}")
        p.I(f"s_cmp_eq_u32 s{S_FIRST}, 1")
        p.I(f"s_cbranch_scc1 L_A_fixa{par}")
        p.I(f"v_max_f32 v{V_MX}, 0, v{V_MX}")
        p.label(f"L_A_fixa{par}")
        p.nop(2)
        for k in range(16):
            p.I(f"v_sub_f32 v{S+k}, v{S+k}, v{V_MX}")
        p.I(f"s_branch L_A_fixc")
    p.label("L_A_fixc")
    p.reset_state()
    p.nop(2)
    p.I(f"v_add_f32 v{V_M}, v{V_M}, v{V_MX}")
    p.I(f"v_cmp_neq_f32 vcc, 0, v{V_MX}")
    p.I(f"v_exp_f32 v{V_MX}, -v{V_MX}")
    p.I("s_cbranch_vccz L_A_fixd")
    p.I(f"s_cmp_eq_u32 s{S_FIRST}, 1")
    p.I("s_cbranch_scc1 L_A_fixd")
    for k in range(4):
        p.I(f"v_mul_f32 v{V_L+k}, v{V_L+k}, v{V_MX}")
    for k in range(128):
        r = V_P + k
        p.I(f"v_lshlrev_b32 v{V_T}, 16, v{r}")
        p.I(f"v_and_b32 v{r}, 0xffff0000, v{r}")
        p.I(f"v_mul_f32 v{V_T}, v{V_T}, v{V_MX}")
        p.I(f"v_mul_f32 v{r}, v{r}, v{V_MX}")
        p.I(f"v_cvt_pk_bf16_f32 v{r}, v{V_T}, v{r}")
    p.label("L_A_fixd")
    p.nop(4)
    p.raw(f"  s_setpc_b64 {sr(S_RET,2)}")


OACC_FIX = 0


def epi_ops(OACC, ph):
    a = OACC[ph]
    ops = []
    for f in range(4):
        for i in range(8):
            ops.append(f"v_mul_f32 v{a+8*f+i}, v{V_RL}, v{a+8*f+i}")
        for i in range(4):
            ops.append(f"v_cvt_pk_bf16_f32 v{a+8*f+i}, v{a+8*f+2*i}, v{a+8*f+2*i+1}")
        if f == 0:
            ops.append(f"s_add_u32 s{S_T0}, s{S_OBASE}, {ph*16384}")
        ops.append(f"buffer_store_dwordx4 {vr(a+8*f,4)}, v{V_ST}, {sr(SRD_WS,4)}, s{S_T0} offen offset:{f*1024} {STFLAGS}")
    return ops


G_R = 8
G_AX = 1
G_AW = 5
G_AWO = 7
G_AO = G_R + LT + 7
G_ACC = 64
G_XF = 128
G_B = 128
G_W = [128, 144]
G_FR = 40
G_FR2 = 160


def gen_G_setup2(p):
    loader_setup(p, G_R, "vo")
    scalars2(p)
    tr_lane_base(p, 40, 41, 42)
    add_pi(p, 40, 40, 42)
    p.I("v_lshrrev_b32 v43, 5, v0")
    p.I(f"v_lshl_add_u32 v{G_AWO}, v43, 10, v40")
    p.I(f"s_and_b32 s{S_T0}, s{S_G}, 1")
    p.I(f"s_lshl_b32 s{S_T0}, s{S_T0}, 6")
    p.I(f"v_xor_b32 v{G_AWO}, s{S_T0}, v{G_AWO}")
    p.I(f"s_lshr_b32 s{S_T0}, s{S_G}, 1")
    p.I(f"s_lshl_b32 s{S_T0}, s{S_T0}, 9")
    p.I(f"v_add_u32 v{G_AWO}, s{S_T0}, v{G_AWO}")
    p.I(f"v_lshlrev_b32 v{G_AO}, 4, v0")
    p.I(f"v_lshl_add_u32 v{G_AW}, v43, 11, v40")
    p.I(f"v_xor_b32 v{G_AW+1}, 64, v{G_AW}")
    p.I(f"v_bfe_u32 v42, v0, 1, 3")
    p.I(f"v_xor_b32 v42, v42, v43")
    p.I(f"v_lshlrev_b32 v42, 4, v42")
    p.I(f"v_and_b32 v40, 31, v0")
    p.I(f"v_lshlrev_b32 v40, 7, v40")
    p.I(f"v_add3_u32 v{G_AX}, v40, v42, s{S_M0B}")
    for i in range(1, 4):
        p.I(f"v_xor_b32 v{G_AX+i}, {i*32}, v{G_AX}")


def gen_reset(p, tag):
    p.I(f"s_cmp_lg_u32 s{S_WAVE}, 4")
    p.I(f"s_cbranch_scc1 L_G_norst{tag}")
    p.I(f"s_lshl_b32 s{S_T0}, s{S_B}, 2")
    p.I(f"s_add_u32 s{S_T0}, s{S_T0}, s{S_HG}")
    p.I(f"s_lshl_b32 s{S_T0}, s{S_T0}, 11")
    p.I(f"s_lshl_b32 s{S_T1}, s{S_P}, 2")
    p.I(f"s_add_u32 s{S_T0}, s{S_T0}, s{S_T1}")
    p.I(f"s_add_u32 s{S_T0}, s{S_T0}, {WS_F1}")
    p.I(f"v_lshlrev_b32 v48, 7, v0")
    p.I(f"v_add_u32 v48, s{S_T0}, v48")
    p.I(f"s_lshl_b32 s{S_T0}, s{S_B}, 2")
    p.I(f"s_add_u32 s{S_T0}, s{S_T0}, s{S_P}")
    p.I(f"s_lshl_b32 s{S_T0}, s{S_T0}, 11")
    p.I(f"s_lshl_b32 s{S_T1}, s{S_HG}, 2")
    p.I(f"s_add_u32 s{S_T0}, s{S_T0}, s{S_T1}")
    p.I(f"s_add_u32 s{S_T0}, s{S_T0}, {WS_F2 - 16*128}")
    p.I(f"v_lshlrev_b32 v49, 7, v0")
    p.I(f"v_add_u32 v49, s{S_T0}, v49")
    p.I("v_cmp_gt_u32 vcc, 16, v0")
    p.I("v_cndmask_b32 v48, v49, v48, vcc")
    p.I("v_mov_b32 v49, 0")
    p.I(f"s_mov_b64 {sr(S_EX,2)}, exec")
    p.I("s_mov_b32 exec_hi, 0")
    p.raw(f"  buffer_store_dword v49, v48, {sr(SRD_WS,4)}, 0 offen sc1")
    p.I(f"s_mov_b64 exec, {sr(S_EX,2)}")
    p.label(f"L_G_norst{tag}")


def gen_reset_done(p, tag):
    p.I(f"s_cmp_lg_u32 s{S_WAVE}, 4")
    p.I(f"s_cbranch_scc1 L_G_nord{tag}")
    p.I("v_mov_b32 v49, 1")
    p.I(f"s_lshl_b32 s{S_T0}, s{S_B}, 4")
    p.I(f"v_mov_b32 v48, s{S_T0}")
    p.I(f"s_mov_b64 {sr(S_EX,2)}, exec")
    p.I("s_mov_b64 exec, 1")
    p.raw(f"  buffer_atomic_add v49, v48, {sr(SRD_DBG,4)}, 0 offen sc1")
    p.I(f"s_mov_b64 exec, {sr(S_EX,2)}")
    p.label(f"L_G_nord{tag}")


def gen_G_class(p, c, sc):
    tag = f"c{c}"
    ld = Loader(p, G_R, f"g{tag}")
    awo, ao = AddrSet(p, [G_AWO]), AddrSet(p, [G_AO])
    aw, ax = AddrSet(p, [G_AW, G_AW + 1]), AddrSet(p, [G_AX + i for i in range(4)])
    by = {(e.kind, e.idx): e for e in sc.ents}

    def issue_at(s):
        ld.issue_at(sc, "G", s)

    def handoff():
        p.I(f"s_lshl_b32 s{S_T0}, s{S_G}, 13")
        p.I(f"s_add_u32 s{S_T0}, s{S_T0}, {HSLOT*16384}")
        p.I(f"v_add_u32 v48, s{S_T0}, v{G_R+LOV}")
        for mb in range(4):
            for h in range(2):
                p.I(f"ds_write_b128 v48, {vr(G_ACC + 16*mb + 4*h, 4)} offset:{(2*mb+h)*1024}")

    stamp(p, 0)
    gen_reset(p, tag)
    issue_at(-1)
    gen_G_setup2(p)
    if PRIO_G:
        p.I(f"s_setprio {PRIO_G}")
    nm = [1]

    def mark():
        if nm[0] < 10:
            stamp(p, nm[0])
            nm[0] += 1

    s = 0
    later = []
    first_o = True
    while s < sc.n:
        name, idx = sc.steps[s]
        if name in ("QA", "K", "V"):
            ld.wait_for(s, **({"lgkm": 0} if (s <= 8 or s == sc.hw + 1) else {}))
            p.I("s_barrier")
            if idx == 0:
                mark()
            if name == "QA":
                off = ax.to(slot_q(idx))
                for ss in range(4):
                    p.I(f"ds_read_b128 {vr(G_XF + 16*idx + 4*ss, 4)}, v{G_AX + ss} offset:{off}")
                if idx == 1:
                    gen_reset_done(p, tag)
            if s == sc.hw:
                handoff()
            if s == sc.ka0 + 6:
                p.I(f"s_lshl_b32 s{S_T0}, s{S_B}, 4")
                p.I(f"v_mov_b32 v48, 0")
                ld.I(f"buffer_load_dword v{G_R+LDPOLL}, v48, {sr(SRD_DBG,4)}, s{S_T0} offen sc1")
            if s == sc.ka0 + 14:
                p.I(f"v_cmp_gt_u32 vcc, 16, v{G_R+LDPOLL}")
                p.I(f"s_cbranch_vccz L_dok{tag}")
                t_keep, saved, ck = p.t, list(p.vm), ld.cnt
                ld.spin("d", 0)
                p.label(f"L_dok{tag}")
                p.t, p.vm, ld.cnt = t_keep, saved, ck
            issue_at(s)
            while later:
                later.pop()()
            s += 1
        elif name == "QB":
            s0 = s

            def open_u(u):
                ld.wait_for(s0 + u, lgkm=0)
                p.I("s_barrier")
                if u == 0:
                    mark()

            def item(u, s4, mb):
                def f(reg):
                    off = aw.to(by[("wb", u)].slot) + s4 * 4096 + (mb // 2) * 512
                    p.I(f"ds_read_b64_tr_b16 {vr(reg,2)}, v{G_AW + mb % 2} offset:{off}")
                    p.I(f"ds_read_b64_tr_b16 {vr(reg+2,2)}, v{G_AW + mb % 2} offset:{off+1024}")
                return f

            def mf(u, s4, mb, reg):
                acc = vr(G_ACC + 16 * mb, 16)
                cin = "0" if (u == 0 and s4 == 0) else acc
                p.I(f"v_mfma_f32_32x32x16_bf16 {acc}, {vr(reg,4)}, {vr(G_XF + 16*u + 4*s4, 4)}, {cin}")
            gemm_phase(p, 8, open_u, item, mf, G_FR, 6)
            def pack():
                for mb in range(4):
                    for i in range(16):
                        r = G_ACC + 16 * mb + i
                        p.I(f"v_mul_f32 v{r}, s{S_SCALE}, v{r}")
                    for i in range(8):
                        r = G_ACC + 16 * mb + 2 * i
                        p.I(f"v_cvt_pk_bf16_f32 v{G_ACC + 16 * mb + i}, v{r}, v{r+1}")
            if sc.qb == 1:
                pack()
                handoff()
            else:
                later.append(pack)
            s += 8
        else:
            s0 = s
            n = 0
            while s + n < sc.n and sc.steps[s + n][0] == "O":
                n += 1
            o0 = [e.idx for e in sc.ents if e.kind == "o" and e.need == s0][0]
            fz = first_o
            first_o = False

            def open_u(u):
                ld.wait_for(s0 + u, lgkm=0)
                p.I("s_barrier")
                if u == 0 or (o0 + u) in (8, 12):
                    mark()
                off = awo.to(by[("wo", o0 + u)].slot)
                for s4 in range(4):
                    r = G_W[u % 2] + 4 * s4
                    p.I(f"ds_read_b64_tr_b16 {vr(r,2)}, v{G_AWO} offset:{off + s4*4096}")
                    p.I(f"ds_read_b64_tr_b16 {vr(r+2,2)}, v{G_AWO} offset:{off + s4*4096 + 2048}")

            def item(u, s4, mb):
                def f(reg):
                    off = ao.to(by[("o", o0 + u)].slot) + mb * 4096 + s4 * 1024
                    p.I(f"ds_read_b128 {vr(reg,4)}, v{G_AO} offset:{off}")
                return f

            def mf(u, s4, mb, reg):
                acc = vr(G_ACC + 16 * mb, 16)
                cin = "0" if (fz and u == 0 and s4 == 0) else acc
                p.I(f"v_mfma_f32_32x32x16_bf16 {acc}, {vr(G_W[u % 2] + 4*s4, 4)}, {vr(reg,4)}, {cin}")
            gemm_phase(p, n, open_u, item, mf, G_FR2, 12)
            s += n
    while nm[0] < 10:
        mark()
    p.flush_hazards()
    p.I("s_branch L_G_final")


def gen_G_final(p):
    p.label("L_G_final")
    p.reset_state()
    stamp(p, 10)
    SG = S_G
    OV, PA, POLL = G_R + LOV, G_R + LPA, G_R + LPOLL
    p.I(f"s_lshl_b32 s{S_T0}, s{S_B}, 2")
    p.I(f"s_add_u32 s{S_T2}, s{S_T0}, s{S_P}")
    p.I(f"s_lshl_b32 s{S_T3}, s{S_T2}, 18")
    p.I(f"s_add_u32 s{S_T3}, s{S_T3}, {WS_PART}")
    p.I(f"s_add_u32 s{S_T3}, s{S_T3}, s{S_M0B}")
    p.I(f"s_lshl_b32 s{S_T2}, s{S_T2}, 11")
    p.I(f"s_add_u32 s{S_T2}, s{S_T2}, {WS_F2}")
    p.I(f"s_lshl_b32 s{S_T0}, s{SG}, 7")
    p.I(f"s_add_u32 s{S_T2}, s{S_T2}, s{S_T0}")
    p.I(f"s_lshl_b32 s{S_T1}, s{S_HG}, 14")
    p.I(f"s_add_u32 s{S_DS}, s{S_T3}, s{S_T1}")
    for d in range(4):
        p.I(f"s_cmp_eq_u32 s{S_HG}, {d}")
        p.I(f"s_cbranch_scc1 L_G_own{d}")
        for j in range(4):
            p.I(f"buffer_store_dwordx4 {vr(G_ACC + 16*d + 4*j, 4)}, v{OV}, {sr(SRD_WS,4)}, s{S_DS} offen offset:{j*1024} {STFLAGS}")
        p.I(f"s_branch L_G_nx{d}")
        p.label(f"L_G_own{d}")
        for k in range(16):
            p.I(f"v_mov_b32 v{G_B+k}, v{G_ACC+16*d+k}")
        p.label(f"L_G_nx{d}")
        if d < 3:
            p.I(f"s_add_u32 s{S_DS}, s{S_DS}, 65536")
    p.I(f"v_lshlrev_b32 v49, 7, v{PA}")
    p.I(f"s_lshl_b32 s{S_T1}, s{S_HG}, 2")
    p.I(f"s_add_u32 s{S_T0}, s{S_T2}, s{S_T1}")
    p.I("v_mov_b32 v48, 1")
    p.I(f"s_mov_b64 {sr(S_EX,2)}, exec")
    p.I("s_mov_b64 exec, 15")
    p.wait(vm=0)
    p.I(f"buffer_store_dword v48, v49, {sr(SRD_WS,4)}, s{S_T0} offen sc1")
    p.I(f"s_mov_b64 exec, {sr(S_EX,2)}")
    stamp(p, 11)
    p.I(f"s_lshl_b32 s{S_T0}, s{S_HG}, 9")
    p.I(f"s_add_u32 s{S_T2}, s{S_T2}, s{S_T0}")
    p.I(f"v_cmp_ne_u32 {sr(S_EX,2)}, s{S_T1}, v{PA}")
    p.I(f"s_mov_b32 s{S_SPIN}, {SPIN}")
    p.label("L_G_sp2")
    p.I(f"buffer_load_dword v{POLL}, v{PA}, {sr(SRD_WS,4)}, s{S_T2} offen sc1")
    p.I(f"v_cmp_ne_u32 vcc, 1, v{POLL}")
    p.I(f"s_and_b64 vcc, vcc, {sr(S_EX,2)}")
    p.I("s_cbranch_vccz L_G_ok2")
    p.I(f"s_sub_u32 s{S_SPIN}, s{S_SPIN}, 1")
    p.I(f"s_cmp_lg_u32 s{S_SPIN}, 0")
    p.I("s_cbranch_scc1 L_G_sp2")
    p.label("L_G_ok2")
    stamp(p, 12)
    p.I(f"s_lshl_b32 s{S_T0}, s{S_HG}, 16")
    p.I(f"s_add_u32 s{S_T3}, s{S_T3}, s{S_T0}")
    for i in range(3):
        p.I(f"s_add_u32 s{S_T0}, s{S_HG}, {i+1}")
        p.I(f"s_and_b32 s{S_T0}, s{S_T0}, 3")
        p.I(f"s_lshl_b32 s{S_T0}, s{S_T0}, 14")
        p.I(f"s_add_u32 s{S_T0}, s{S_T0}, s{S_T3}")
        for j in range(4):
            p.I(f"buffer_load_dwordx4 {vr(G_B + 16*(i+1) + 4*j, 4)}, v{OV}, {sr(SRD_WS,4)}, s{S_T0} offen offset:{j*1024} sc1")
    p.I("v_and_b32 v48, 31, v0")
    p.I("v_lshlrev_b32 v48, 10, v48")
    p.I("v_lshrrev_b32 v49, 5, v0")
    p.I("v_lshl_add_u32 v48, v49, 4, v48")
    p.I(f"s_lshl_b32 s{S_T0}, s{S_B}, 17")
    p.I(f"s_lshl_b32 s{S_T1}, s{S_HG}, 15")
    p.I(f"s_add_u32 s{S_T0}, s{S_T0}, s{S_T1}")
    p.I(f"s_lshl_b32 s{S_T1}, s{S_P}, 8")
    p.I(f"s_add_u32 s{S_T0}, s{S_T0}, s{S_T1}")
    p.I(f"s_lshl_b32 s{S_T1}, s{SG}, 6")
    p.I(f"s_add_u32 s{S_T0}, s{S_T0}, s{S_T1}")
    for i in range(3):
        for k in range(16):
            p.I(f"v_add_f32 v{G_B+k}, v{G_B+k}, v{G_B+16*(i+1)+k}")
    for k in range(8):
        p.I(f"v_cvt_pk_bf16_f32 v{G_B+k}, v{G_B+2*k}, v{G_B+2*k+1}")
    p.I(f"buffer_store_dwordx4 {vr(G_B,4)}, v48, {sr(SRD_OUT,4)}, s{S_T0} offen")
    p.I(f"buffer_store_dwordx4 {vr(G_B+4,4)}, v48, {sr(SRD_OUT,4)}, s{S_T0} offen offset:32")
    if STAMP in (1, 2):
        p.wait(vm=0)
        stamp(p, 13)
        p.I(f"s_cmp_lg_u32 s{S_WAVE}, 4")
        p.I("s_cbranch_scc1 L_exit")
        if os.environ.get("DBGOUT"):
            p.raw("  s_waitcnt lgkmcnt(0)")
            p.I("s_mov_b64 exec, 1")
            words = [1, 2, 3, 5, 6, 7, 9, 10, 11, 13, 14, 15]
            p.I(f"s_not_b32 s{S_T0}, s{S_STAMP}")
            p.I(f"v_mov_b32 v32, s{S_T0}")
            p.I(f"v_mov_b32 v30, {4*words[0]}")
            p.I(f"buffer_atomic_umax v32, v30, {sr(SRD_DBG,4)}, 0 offen sc1")
            for w, i in zip(words[1:], [0, 1, 2, 3, 4, 5, 6, 7, 10, 12, 13]):
                p.nop(2)
                p.I(f"v_mov_b32 v32, s{S_STAMP+2*i}")
                p.I(f"v_mov_b32 v30, {4*w}")
                p.I(f"buffer_atomic_umax v32, v30, {sr(SRD_DBG,4)}, 0 offen sc1")
        else:
            stamp_store(p, 14, 0)
    p.I("s_endpgm")


def main():
    out = sys.argv[1]
    scheds = [Sched(c) for c in CLASSES]
    if os.environ.get("SHOW"):
        for sc in scheds:
            print(" ".join(f"{e.kind}{e.idx}@{e.at}{e.who}>{e.need}[{e.slot}]" for e in sc.issued))
    p = Prog()
    prologue(p, 256)
    p.I(f"s_cmp_lt_u32 s{S_WAVE}, 4")
    p.I("s_cbranch_scc1 L_A")
    loader_setup(p, G_R, "xwk")
    for c in range(1, NCLS):
        p.I(f"s_cmp_eq_u32 s{S_CLS}, {c}")
        p.I(f"s_cbranch_scc1 L_G_cls{c}")
    for c in range(NCLS):
        if c:
            p.label(f"L_G_cls{c}")
        p.reset_state()
        p.nop(2)
        gen_G_class(p, c, scheds[c])
    gen_G_final(p)
    p.label("L_A")
    p.reset_state()
    gen_A(p, scheds)
    p.label("L_exit")
    p.I("s_endpgm")
    s = "; @launch grid=(256,1,1) block=(512,1,1) lds=163840\n"
    s += '.amdgcn_target "amdgcn-amd-amdhsa--gfx950"\n.text\n'
    s += kernel_header(KNAME) + p.text()
    s += '.section .rodata,"a"\n'
    s += kernel_desc(KNAME, 256, 102, 256)
    open(out, "w").write(s)
    print("nops inserted:", p.nops_inserted, "lines", len(p.lines))


main()
```

```python
import sys, math, struct, os
from asmlib import Prog, vr, sr, kernel_header, kernel_desc

STAMP = int(os.environ.get("STAMP", "0"))
KVFLAGS = os.environ.get("KVFLAGS", "nt")
AUXFLAGS = os.environ.get("AUXFLAGS", "")
OFLAGS = os.environ.get("OFLAGS", "sc1")
STFLAGS = os.environ.get("STFLAGS", "sc1")
PRIO_A = int(os.environ.get("PRIO_A", "0"))
PRIO_G = int(os.environ.get("PRIO_G", "0"))
ROT = int(os.environ.get("ROT", "1"))
DT = int(os.environ.get("DT", "4"))
CLASSES = eval(os.environ.get("CLASSES", "[dict()]"))
NCLS = len(CLASSES)
KD = int(os.environ.get("KD", "4"))
GLEAD = int(os.environ.get("GLEAD", "2"))
PER = int(os.environ.get("PER", "3"))
KEARLY = int(os.environ.get("KEARLY", "0"))
KNAME = "standalone__mha_block_cached__near_ridge_kernel"
if KVFLAGS == "-":
    KVFLAGS = ""

WS_PART = 16 << 20
WS_STAMP = 32 << 20
WS_F1 = 48 << 20
WS_F2 = 49 << 20
SPIN = "0x20000"
HSLOT = 2


def f32bits(x):
    return struct.unpack("<I", struct.pack("<f", x))[0]


QSCALE = hex(f32bits(math.log2(math.e) / math.sqrt(128.0)))
THR = hex(f32bits(40.0))

S_WAVE = 3
SRD_X, SRD_K, SRD_V, SRD_WQ, SRD_WO, SRD_OUT, SRD_WS, SRD_DBG = 8, 12, 16, 20, 24, 28, 32, 4
S_B, S_H, S_T0, S_T1, S_T2, S_T3 = 36, 37, 38, 39, 56, 57
S_HEADCNT = 58
S_XBASE, S_WQBASE, S_KVBASE, S_OBASE = 59, 60, 61, 62
S_HG = 63
S_RET = 64
S_SCALE, S_THR = 66, 67
S_M0B = 68
S_P = 69
S_CLS = 70
S_BL = 71
S_DS = 54
S_FLAG = 46
S_PUB = 45
S_G = 47
S_C0 = 48
S_WOB = 49
S_OINB = 50
S_SPIN = 51
S_EX = 52
S_FIRST = 44
S_SEG = 43
S_SRET = 40
HOLD = int(os.environ.get("HOLD", "3"))
PRE = eval(os.environ.get("PRE", "[]"))
PRE0, PRED = int(os.environ.get("PRE0", "3")), int(os.environ.get("PRED", "3"))
KPOS = eval(os.environ.get("KPOS", "[]"))
PBF = int(os.environ.get("PBF", "0"))
DTH = int(os.environ.get("DTH", "5"))
PUBJ = int(os.environ.get("PUBJ", "3"))
SPREAD = int(os.environ.get("SPREAD", "0"))
SP0 = int(os.environ.get("SP0", "1"))
S_STAMP = 72


def stamp(p, idx):
    if STAMP in (1, 2):
        p.raw(f"  {'s_memtime' if STAMP == 2 else 's_memrealtime'} s[{S_STAMP+2*idx}:{S_STAMP+1+2*idx}]")


def stamp_store(p, n, kern):
    p.raw("  s_waitcnt lgkmcnt(0)")
    p.I(f"s_lshl_b32 s{S_T0}, s2, 8")
    p.I(f"s_add_u32 s{S_T0}, s{S_T0}, {WS_STAMP + kern*65536}")
    p.I("v_mov_b32 v30, 0")
    for i in range(n):
        p.I(f"v_mov_b32 v32, s{S_STAMP+2*i}")
        p.I(f"v_mov_b32 v33, s{S_STAMP+1+2*i}")
        p.I(f"buffer_store_dwordx2 v[32:33], v30, {sr(SRD_WS,4)}, s{S_T0} offen offset:{8*i}")
        p.nop(2)


def prologue(p, nwg):
    p.I(f"s_cmp_ge_u32 s2, {nwg}")
    p.I("s_cbranch_scc1 L_exit")
    p.I("s_load_dwordx8 s[40:47], s[0:1], 0")
    p.I("s_load_dwordx8 s[48:55], s[0:1], 32")
    p.I("v_lshrrev_b32 v1, 6, v0")
    p.I(f"v_readfirstlane_b32 s{S_WAVE}, v1")
    p.I("v_and_b32 v0, 63, v0")
    p.I(f"s_bfe_u32 s{S_BL}, s2, {(3 << 16) | 3}")
    p.I(f"s_and_b32 s{S_T0}, s2, 1")
    p.I(f"s_lshl_b32 s{S_T0}, s{S_T0}, 3")
    p.I(f"s_add_u32 s{S_B}, s{S_T0}, s{S_BL}")
    p.I(f"s_bfe_u32 s{S_HG}, s2, {(2 << 16) | 1}")
    p.I(f"s_lshr_b32 s{S_P}, s2, 6")
    p.I(f"s_lshl_b32 s{S_T0}, s{S_HG}, 3")
    p.I(f"s_add_u32 s{S_H}, s{S_T0}, s{S_P}")
    p.I(f"s_and_b32 s{S_CLS}, s{S_BL}, {NCLS-1}")
    p.raw("  s_waitcnt lgkmcnt(0)")
    for srd, src, size in ((SRD_X, 40, 2 << 20), (SRD_WQ, 46, 4 << 20), (SRD_K, 42, 64 << 20), (SRD_V, 44, 64 << 20),
                           (SRD_WO, 48, 4 << 20), (SRD_OUT, 50, 2 << 20), (SRD_DBG, 52, 256), (SRD_WS, 54, 256 << 20)):
        p.I(f"s_mov_b32 s{srd}, s{src}")
        p.I(f"s_and_b32 s{srd+1}, s{src+1}, 0xffff")
        p.I(f"s_mov_b32 s{srd+2}, {size}")
        p.I(f"s_mov_b32 s{srd+3}, 0x20000")
    WSB = int(os.environ.get("WSB", "0")) << 20
    if WSB:
        p.I(f"s_add_u32 s{SRD_WS}, s{SRD_WS}, {WSB}")
        p.I(f"s_addc_u32 s{SRD_WS+1}, s{SRD_WS+1}, 0")
        p.I(f"s_mov_b32 s{SRD_WS+2}, {(256 << 20) - WSB}")
    p.I(f"s_and_b32 s{S_G}, s{S_WAVE}, 3")
    p.I(f"s_lshl_b32 s{S_M0B}, s{S_G}, 12")
    p.I(f"s_lshl_b32 s{S_XBASE}, s{S_B}, 17")
    p.I(f"s_lshl_b32 s{S_WQBASE}, s{S_H}, 8")
    p.I(f"s_lshl_b32 s{S_T0}, s{S_B}, 5")
    p.I(f"s_add_u32 s{S_T0}, s{S_T0}, s{S_H}")
    p.I(f"s_lshl_b32 s{S_KVBASE}, s{S_T0}, 17")
    p.I(f"s_lshl_b32 s{S_OBASE}, s{S_T0}, 15")
    if ROT == 1:
        p.I(f"s_lshl_b32 s{S_T0}, s{S_P}, 1")
        p.I(f"s_add_u32 s{S_C0}, s{S_BL}, s{S_T0}")
    elif ROT == 2:
        p.I(f"s_add_u32 s{S_T0}, s{S_BL}, s{S_P}")
        p.I(f"s_and_b32 s{S_T0}, s{S_T0}, 1")
        p.I(f"s_lshl_b32 s{S_C0}, s{S_T0}, 2")
    else:
        p.I(f"s_mov_b32 s{S_C0}, 0")


def scalars2(p):
    p.I(f"s_lshl_b32 s{S_WOB}, s{S_HG}, 20")
    p.I(f"s_lshl_b32 s{S_T0}, s{S_P}, 8")
    p.I(f"s_add_u32 s{S_WOB}, s{S_WOB}, s{S_T0}")
    p.I(f"s_lshl_b32 s{S_OINB}, s{S_B}, 20")
    p.I(f"s_lshl_b32 s{S_T0}, s{S_HG}, 18")
    p.I(f"s_add_u32 s{S_OINB}, s{S_OINB}, s{S_T0}")
    p.I(f"s_add_u32 s{S_OINB}, s{S_OINB}, s{S_M0B}")
    p.I(f"s_lshl_b32 s{S_T0}, s{S_B}, 2")
    p.I(f"s_add_u32 s{S_T0}, s{S_T0}, s{S_HG}")
    p.I(f"s_lshl_b32 s{S_T0}, s{S_T0}, 11")
    p.I(f"s_lshl_b32 s{S_T1}, s{S_G}, 7")
    p.I(f"s_add_u32 s{S_T0}, s{S_T0}, s{S_T1}")
    p.I(f"s_add_u32 s{S_FLAG}, s{S_T0}, {WS_F1}")
    p.I(f"s_lshl_b32 s{S_T1}, s{S_P}, 2")
    p.I(f"s_add_u32 s{S_PUB}, s{S_FLAG}, s{S_T1}")
    p.I(f"s_mov_b32 s{S_SCALE}, {QSCALE}")


QSL = [(3 * c) % 7 for c in range(8)], [(3 * c + 1) % 7 for c in range(8)], [(3 * c + 2) % 7 for c in range(8)]


def slot_kv(T):
    return [7, 8, 9, 3, 4, 5, 6, 0][T % 8]


class AddrSet:
    def __init__(self, p, regs):
        self.p, self.regs, self.hi = p, regs, 0

    def to(self, slot):
        hi = slot // 4
        if hi != self.hi:
            d = (hi - self.hi) * 65536
            for r in self.regs:
                if d > 0:
                    self.p.I(f"v_add_u32 v{r}, {d}, v{r}")
                else:
                    self.p.I(f"v_subrev_u32 v{r}, {-d}, v{r}")
            self.hi = hi
        return (slot % 4) * 16384


def tr_lane_base(p, dst, t1, t3):
    p.I(f"v_bfe_u32 v{t1}, v0, 2, 2")
    p.I(f"v_bfe_u32 v{dst}, v0, 3, 1")
    p.I(f"v_lshlrev_b32 v{dst}, 6, v{dst}")
    p.I(f"v_lshl_add_u32 v{dst}, v{t1}, 7, v{dst}")
    p.I(f"v_bfe_u32 v{t3}, v0, 4, 1")
    p.I(f"v_lshl_add_u32 v{dst}, v{t3}, 5, v{dst}")


def add_pi(p, dst, src, t3):
    p.I(f"v_and_b32 v{t3}, 1, v0")
    p.I(f"v_lshl_add_u32 v{dst}, v{t3}, 4, v{src}")
    p.I(f"v_bfe_u32 v{t3}, v0, 1, 1")
    p.I(f"v_lshl_add_u32 v{dst}, v{t3}, 3, v{dst}")


class FragRing:
    def __init__(self, p, items, base, n):
        self.p, self.items, self.base, self.n = p, items, base, n
        self.issued = 0

    def reg(self, i):
        return self.base + 4 * (i % self.n)

    def issue_next(self):
        if self.issued >= len(self.items):
            return False
        i = self.issued
        self.items[i](self.reg(i))
        self.issued += 1
        return True


class Pref:
    def __init__(self, p, items, groups, ops):
        self.p, self.items, self.groups, self.ops = p, items, groups, ops
        self.issued = 0
        self.regs = []
        self.busy = {g: -1 for g in groups}
        self.force = {}

    def reg(self, i):
        return self.regs[i]

    def fill(self, m, lim=10 ** 9, maxn=2, cap=15):
        n = 0
        while n < maxn and self.issued < min(lim, len(self.items)):
            i = self.issued
            if len(self.p.lgkm) + self.ops(i) > cap and i > m + 2:
                break
            c = [g for g in self.groups if self.busy[g] <= m and self.force.get(i, g) == g]
            if not c:
                break
            g = min(c, key=lambda g: self.busy[g])
            self.busy[g] = i
            self.regs.append(g)
            self.issued += 1
            self.items[i](g)
            n += 1


LX, LW, LK, LV, LWO, LOV, LPA, LPOLL, LDPOLL, LT = 0, 4, 8, 12, 16, 20, 21, 22, 23, 24


def loader_setup(p, R, which):
    t = lambda i: R + LT + i
    l8, m8, u1, l16, rr, hf, sw, tmp = [t(i) for i in range(8)]
    p.I(f"v_lshrrev_b32 v{l8}, 3, v0")
    p.I(f"v_and_b32 v{m8}, 7, v0")
    p.I(f"v_bfe_u32 v{u1}, v0, 4, 1")
    p.I(f"v_lshrrev_b32 v{l16}, 4, v0")
    p.I(f"v_bfe_u32 v{rr}, v0, 3, 2")
    p.I(f"v_lshrrev_b32 v{hf}, 5, v0")
    p.I(f"v_lshlrev_b32 v{sw}, 2, v{u1}")
    p.I(f"v_xor_b32 v{sw}, v{sw}, v{m8}")
    p.I(f"v_lshlrev_b32 v{sw}, 4, v{sw}")
    for w in which:
        if w == "x":
            p.I(f"s_lshl_b32 s{S_T0}, s{S_G}, 15")
            for j in range(4):
                p.I(f"v_add_u32 v{tmp}, {4*j}, v{l16}")
                p.I(f"v_and_b32 v{tmp}, 7, v{tmp}")
                p.I(f"v_xor_b32 v{tmp}, v{tmp}, v{m8}")
                p.I(f"v_lshlrev_b32 v{tmp}, 4, v{tmp}")
                p.I(f"v_lshl_add_u32 v{tmp}, v{l8}, 10, v{tmp}")
                p.I(f"v_add_u32 v{tmp}, {8*j*1024 - j*1024}, v{tmp}")
                p.I(f"v_add_u32 v{R+LX+j}, s{S_T0}, v{tmp}")
        elif w == "w":
            p.I(f"v_lshl_add_u32 v{tmp}, v{rr}, 13, v{sw}")
            p.I(f"v_lshl_add_u32 v{tmp}, v{hf}, 7, v{tmp}")
            p.I(f"s_lshl_b32 s{S_T0}, s{S_G}, 17")
            p.I(f"v_add_u32 v{tmp}, s{S_T0}, v{tmp}")
            for j in range(4):
                p.I(f"v_add_u32 v{R+LW+j}, {4*j*8192 - j*1024}, v{tmp}")
        elif w == "k":
            for j in range(4):
                p.I(f"v_add_u32 v{tmp}, {2*j}, v{u1}")
                p.I(f"v_xor_b32 v{tmp}, v{tmp}, v{m8}")
                p.I(f"v_lshlrev_b32 v{tmp}, 4, v{tmp}")
                p.I(f"v_lshl_add_u32 v{tmp}, v{rr}, 8, v{tmp}")
                p.I(f"v_lshl_add_u32 v{tmp}, v{hf}, 7, v{tmp}")
                p.I(f"v_add_u32 v{R+LK+j}, s{S_M0B}, v{tmp}")
        elif w == "v":
            p.I(f"v_lshl_add_u32 v{tmp}, v{rr}, 8, v{sw}")
            p.I(f"v_lshl_add_u32 v{tmp}, v{hf}, 7, v{tmp}")
            p.I(f"v_add_u32 v{R+LV}, s{S_M0B}, v{tmp}")
        elif w == "o":
            p.I(f"v_lshl_add_u32 v{tmp}, v{rr}, 10, v{sw}")
            p.I(f"v_lshl_add_u32 v{tmp}, v{hf}, 7, v{tmp}")
            p.I(f"s_lshl_b32 s{S_T0}, s{S_G}, 14")
            p.I(f"v_add_u32 v{tmp}, s{S_T0}, v{tmp}")
            for j in range(4):
                p.I(f"v_add_u32 v{R+LWO+j}, {4*j*1024 - j*1024}, v{tmp}")
            p.I(f"v_lshlrev_b32 v{R+LOV}, 4, v0")
            p.I(f"v_and_b32 v{tmp}, 3, v0")
            p.I(f"v_lshlrev_b32 v{R+LPA}, 2, v{tmp}")


class E:
    def __init__(self, kind, idx, need, slot=None, rel=None, gate=None):
        self.kind, self.idx, self.need, self.slot, self.rel, self.gate = kind, idx, need, slot, rel, gate
        self.free = -1
        self.at = None
        self.who = None


class Sched:
    def __init__(self, cfg):
        npre, mid, at = cfg.get("npre", 0), cfg.get("mid", 0), cfg.get("at", 16)
        self.at = at if mid else 99
        self.steps = []
        ents = []
        st = self.steps

        def ostep(o, n):
            for i in range(n):
                s = len(st)
                g = {0: 1, 8: 3}.get(o + i)
                if o + i not in PRE:
                    ents.append(E("wo", o + i, s, None, s + 1))
                ents.append(E("o", o + i, s, None, s + 1, gate=g))
                st.append(("O", i))
        for c in range(8):
            s = len(st)
            ents.extend([E("x", c, s, QSL[0][c], s + 1), E("w", c, s, QSL[1][c], s + 1), E("wb", c, s + 1, QSL[2][c], s + 2)])
            st += [("QA", 2 * c), ("QA", 2 * c + 1)]
        self.ka0 = len(st)
        kvs = []
        for g in range(32):
            if mid and g == 16 + at:
                self.seg = len(st)
                ostep(0, mid)
                self.seg_end = len(st)
            s = len(st)
            e = E("k" if g % 2 == 0 else "v", g // 2, s, slot_kv(g), None)
            kvs.append(e)
            ents.append(e)
            st.append(("K", g))
        for g, e in enumerate(kvs):
            e.rel = kvs[g + 2].need if g + 2 < 32 else len(st)
            if mid and g == 16 + at - 2:
                e.rel = self.seg
        for i, u in enumerate(PRE):
            n = kvs[PRE0 + PRED * i].need
            ents.append(E("wp", u, n, None, n + 1))
        self.seg1 = kvs[16].need
        self.tail0 = len(st)
        ostep(mid, 16 - mid)
        self.n = len(st)
        ents.sort(key=lambda e: e.need)
        held = [kvs[g] for g in range(16 + at, min(32, 16 + at + HOLD))] if mid else []
        sf = {x: -1 for x in range(10)}
        fixed = [e for e in ents if e.slot is not None]
        for e in ents:
            if e.slot is None:
                def cost(x):
                    if any(h.slot == x and h.need > e.need for h in held):
                        return (2000, 0)
                    nxt = min((f.need for f in fixed if f.slot == x and f.need >= e.need), default=10 ** 6)
                    if sf[x] > e.need - 1:
                        return (1000, 0)
                    return (max(0, (e.rel + 2) - nxt), sf[x])
                e.slot = min(range(10), key=cost)
            e.free = sf[e.slot]
            assert e.free <= e.need - 1, (e.kind, e.idx, e.need, e.free)
            sf[e.slot] = e.rel
        self.ents = ents
        order = list(ents)
        for e in kvs[:npre]:
            order.remove(e)
        order = kvs[:npre] + order
        for e, q in zip(kvs, KPOS):
            order.remove(e)
            order.insert(q, e)
            held.append(e)
        held0 = list(held)
        held = [h for h in held if h.need > self.seg1]
        self.held = held0
        if held:
            for e in held:
                order.remove(e)
            pos = order.index([e for e in order if e.kind == "wo"][0])
            order[pos:pos] = held
        self.order = order
        for e in order:
            if e.gate == 1:
                e.free = max(e.free, self.seg1 + PUBJ + 1)
            if e.gate == 3:
                e.free = max(e.free, self.tail0)
        self._plan()

    def consumer(self, s):
        return "A" if self.steps[s][0] in ("QA", "K", "V") else "G"

    def loader(self, s):
        if s < 0:
            return "G"
        return "G" if self.consumer(s) == "A" else "A"

    def _plan(self):
        order = list(self.order)
        self.pre_tail = []
        for e in list(order):
            if e.kind == "o" and e.idx >= 8 and e.need <= self.tail0 + 1 and any(f.gate == 3 and f.need == self.tail0 for f in self.order):
                order.remove(e)
                e.at, e.who = self.tail0 - 0.5, "A"
                self.pre_tail.append(e)
        if self.pre_tail:
            for e in order:
                if e.kind == "o" and e.idx >= 8:
                    e.free = max(e.free, self.tail0)
        issued = []
        landed = set()
        for s in range(-1, self.n):
            for e in issued:
                if e.need <= s:
                    for f in issued[:issued.index(e) + 1]:
                        landed.add(f)
            nstep = 0
            while order:
                infl = sum(1 for e in issued if e not in landed)
                cand = None
                for i, e in enumerate(order[:12]):
                    if i > 0 and not e.kind in ("o", "wo"):
                        break
                    if e.kind == "o" and any(f.kind == "o" for f in order[:i]):
                        continue
                    if e.free <= s and not (e.gate and e.need > s + GLEAD):
                        cand = e
                        break
                    if e.kind != "o":
                        break
                if cand is None:
                    break
                must = any(f.need <= s + 1 for f in order)
                infl -= sum(1 for e in issued if e in self.held and e not in landed and s - e.at >= 2)
                if (infl >= (DTH if cand.kind in ("k", "v") and s >= self.ka0 else DT) or (nstep >= PER and s >= 0)) and not must:
                    break
                who = self.loader(s)
                if who == "A" and cand.kind in ("k", "v"):
                    break
                nstep += 1
                cand.at, cand.who = s, who
                issued.append(cand)
                order.remove(cand)
            for e in order:
                assert e.need > s + 1 or s == self.n - 1, ("not issued in time", e.kind, e.idx, e.need, s, e.free)
        assert not order
        self.issued = issued + self.pre_tail


class Loader:
    def __init__(self, p, R, tag):
        self.p, self.R, self.tag = p, R, tag
        self.cnt = 0
        self.mark = {}
        self.dchecked = False

    def I(self, t):
        if t.startswith("buffer_"):
            self.cnt += 1
        self.p.I(t)

    def kappa(self, o):
        p = self.p
        p.I(f"s_add_u32 s{S_T1}, s{S_BL}, {o}")
        p.I(f"s_and_b32 s{S_T1}, s{S_T1}, 7")
        if o >= 8:
            p.I(f"s_add_u32 s{S_T1}, s{S_T1}, 8")

    def spin(self, kind, ev):
        p, R = self.p, self.R
        name = f"{self.tag}{kind}{ev}"
        p.flush_hazards()
        p.I(f"s_mov_b32 s{S_SPIN}, {SPIN}")
        if kind == "d":
            p.I(f"s_lshl_b32 s{S_T0}, s{S_B}, 4")
            p.I(f"v_mov_b32 v{R+LT}, 0")
        else:
            p.I(f"s_add_u32 s{S_T0}, s{S_FLAG}, {ev*512}")
        p.label(f"L_sp_{name}")
        if kind == "d":
            self.I(f"buffer_load_dword v{R+LPOLL}, v{R+LT}, {sr(SRD_DBG,4)}, s{S_T0} offen sc1")
            p.wait(vm=0)
            p.I(f"v_cmp_gt_u32 vcc, 16, v{R+LPOLL}")
        else:
            self.I(f"buffer_load_dword v{R+LPOLL}, v{R+LPA}, {sr(SRD_WS,4)}, s{S_T0} offen sc1")
            p.wait(vm=0)
            p.I(f"v_cmp_ne_u32 vcc, 1, v{R+LPOLL}")
        p.I(f"s_cbranch_vccz L_ok_{name}")
        p.I(f"s_sub_u32 s{S_SPIN}, s{S_SPIN}, 1")
        p.I(f"s_cmp_lg_u32 s{S_SPIN}, 0")
        p.I(f"s_cbranch_scc1 L_sp_{name}")
        p.label(f"L_ok_{name}")

    def issue_at(self, sc, who, s):
        for e in sc.issued:
            if e.who == who and e.at == s:
                self.issue(e)
        for e in sc.issued:
            if e.gate and e.who == who and e.at == s + 1 and sc.loader(s) == who and s > sc.seg1:
                self.p.I(f"s_add_u32 s{S_T0}, s{S_FLAG}, {e.gate*512}")
                self.I(f"buffer_load_dword v{self.R+LPOLL}, v{self.R+LPA}, {sr(SRD_WS,4)}, s{S_T0} offen sc1")
                self.prepolled = e.gate

    def issue(self, e):
        p, R = self.p, self.R
        if e.gate:
            if getattr(self, "prepolled", 0) == e.gate:
                p.I(f"v_cmp_ne_u32 vcc, 1, v{R+LPOLL}")
                p.I(f"s_cbranch_vccz L_ok_{self.tag}f{e.gate}")
                keep = (p.t, list(p.vm), self.cnt)
                self.spin("f", e.gate)
                p.t, p.vm, self.cnt = keep
            else:
                self.spin("f", e.gate)
        k = e.kind
        fl = AUXFLAGS
        if k in ("x", "w", "wb"):
            p.I(f"s_add_u32 s{S_T1}, s{S_C0}, {e.idx}")
            p.I(f"s_and_b32 s{S_T1}, s{S_T1}, 7")
            if k == "x":
                p.I(f"s_lshl_b32 s{S_DS}, s{S_T1}, 7")
                p.I(f"s_add_u32 s{S_DS}, s{S_DS}, s{S_XBASE}")
                vo, srd = [R + LX + j for j in range(4)], SRD_X
            else:
                p.I(f"s_lshl_b32 s{S_DS}, s{S_T1}, 19")
                p.I(f"s_add_u32 s{S_DS}, s{S_DS}, s{S_WQBASE}")
                if k == "wb":
                    p.I(f"s_add_u32 s{S_DS}, s{S_DS}, 1024")
                vo, srd = [R + LW + j for j in range(4)], SRD_WQ
        elif k in ("k", "v"):
            hd, t = e.idx // 8, e.idx % 8
            off = hd * 4 * 131072 + t * 16384
            p.I(f"s_add_u32 s{S_DS}, s{S_KVBASE}, {off}")
            vo, srd = ([R + LK + j for j in range(4)], SRD_K) if k == "k" else ([R + LV] * 4, SRD_V)
            fl = KVFLAGS
        elif k in ("wo", "wp"):
            self.kappa(e.idx)
            p.I(f"s_lshl_b32 s{S_DS}, s{S_T1}, 16")
            p.I(f"s_add_u32 s{S_DS}, s{S_DS}, s{S_WOB}")
            vo, srd = [R + LWO + j for j in range(4)], SRD_WO
        else:
            self.kappa(e.idx)
            p.I(f"s_lshl_b32 s{S_DS}, s{S_T1}, 14")
            p.I(f"s_add_u32 s{S_DS}, s{S_DS}, s{S_OINB}")
            vo, srd, fl = [R + LOV] * 4, SRD_WS, OFLAGS
        p.I(f"s_add_u32 m0, s{S_M0B}, {e.slot * 16384}")
        for j in range(4):
            self.I(f"buffer_load_dwordx4 v{vo[j]}, {sr(srd,4)}, s{S_DS} offen offset:{j*1024} {fl} lds")
        self.mark[e] = self.cnt

    def wait_for(self, s, **kw):
        need = [m for e, m in self.mark.items() if e.need == s]
        if need:
            self.p.wait(vm=self.cnt - max(need), **kw)
        elif kw:
            self.p.wait(**kw)


V_T, V_AK, V_AV, V_M, V_L, V_ST, V_MX = 1, 2, 6, 8, 9, 14, 15
V_AW, V_AX = 11, 250
V_FR = 16
V_S = [40, 56]
V_Q = 72
V_O = 104
V_QB = 168
V_FR2 = 200
A_R = 216


def lane_setup_A(p):
    t0, t1, t2, t3 = 16, 17, 18, 19
    p.I(f"v_lshrrev_b32 v{t0}, 5, v0")
    p.I(f"v_and_b32 v{t1}, 31, v0")
    p.I(f"v_bfe_u32 v{t2}, v0, 1, 3")
    p.I(f"v_xor_b32 v{t2}, v{t2}, v{t0}")
    p.I(f"v_lshlrev_b32 v{t2}, 4, v{t2}")
    p.I(f"v_lshrrev_b32 v{t3}, 2, v{t1}")
    p.I(f"v_lshlrev_b32 v{t3}, 10, v{t3}")
    p.I(f"v_and_b32 v20, 3, v{t1}")
    p.I(f"v_lshl_add_u32 v{t3}, v20, 7, v{t3}")
    p.I(f"v_add_u32 v{V_AK}, v{t3}, v{t2}")
    for i in range(1, 4):
        p.I(f"v_xor_b32 v{V_AK+i}, {i*32}, v{V_AK}")
    p.I(f"v_lshlrev_b32 v{t3}, 7, v{t1}")
    p.I(f"v_add3_u32 v{V_AX}, v{t3}, v{t2}, s{S_M0B}")
    for i in range(1, 4):
        p.I(f"v_xor_b32 v{V_AX+i}, {i*32}, v{V_AX}")
    tr_lane_base(p, t2, t1, t3)
    p.I(f"v_and_b32 v{t3}, 3, v0")
    p.I(f"v_lshl_add_u32 v20, v{t3}, 3, v{t2}")
    p.I(f"v_lshl_add_u32 v{V_AV}, v{t0}, 10, v20")
    p.I(f"v_xor_b32 v{V_AV+1}, 64, v{V_AV}")
    add_pi(p, 20, t2, t3)
    p.I(f"v_lshl_add_u32 v{V_AW}, v{t0}, 11, v20")
    p.I(f"v_xor_b32 v{V_AW+1}, 64, v{V_AW}")
    p.I(f"v_lshlrev_b32 v{V_ST}, 4, v0")
    p.I(f"v_add_u32 v{V_ST}, s{S_M0B}, v{V_ST}")


def flag_store(p, sreg, I=None):
    I = I or p.I
    p.I(f"v_mov_b32 v{V_T}, 1")
    p.I(f"v_mov_b32 v{V_MX}, 0")
    p.I(f"s_mov_b64 {sr(S_EX,2)}, exec")
    p.I("s_mov_b64 exec, 1")
    I(f"buffer_store_dword v{V_T}, v{V_MX}, {sr(SRD_WS,4)}, s{sreg} offen sc1")
    p.I(f"s_mov_b64 exec, {sr(S_EX,2)}")


def gemm_phase(p, nunits, open_unit, frag_item, mfma, ring_base, nfr, extra=None, cls=None):
    items = [frag_item(c, s, mb) for c in range(nunits) for s in range(4) for mb in range(4)]
    ring = (cls or FragRing)(p, items, ring_base, nfr)
    open_unit(0)
    opened = 1
    for _ in range(5):
        ring.issue_next()
    AH = nfr - 1
    idle = 0
    n = 16 * nunits
    for fi in range(n):
        c, s, mb = fi // 16, (fi // 4) % 4, fi % 4
        mfma(c, s, mb, ring.reg(fi))
        for _ in range(2):
            if ring.issued < min(opened * 16, fi + 1 + AH, n):
                ring.issue_next()
        if extra:
            extra(fi)
        if ring.issued == opened * 16 and opened < nunits:
            idle += 1
            if idle >= 3:
                open_unit(opened)
                opened += 1
                idle = 0


def gen_A(p, scheds):
    stamp(p, 0)
    lane_setup_A(p)
    scalars2(p)
    if PRIO_A:
        p.I(f"s_setprio {PRIO_A}")
    p.I(f"s_mov_b32 s{S_HEADCNT}, 0")
    p.I(f"s_mov_b32 s{S_SEG}, 99")
    p.I(f"s_mov_b32 s{SRD_X}, s{SRD_WS}")
    p.I(f"s_mov_b32 s{SRD_X+1}, s{SRD_WS+1}")
    p.I(f"s_mov_b32 s{SRD_X+2}, 0")
    ak, aw, av, ax = AddrSet(p, [V_AK + i for i in range(4)]), AddrSet(p, [V_AW, V_AW + 1]), AddrSet(p, [V_AV, V_AV + 1]), AddrSet(p, [V_AX + i for i in range(4)])

    def open_u(u):
        c, h = u // 2, u % 2
        p.wait(lgkm=0)
        p.I("s_barrier")
        if u == 0:
            stamp(p, 1)
        if h == 0:
            off = ax.to(QSL[0][c])
            for ss in range(4):
                p.I(f"ds_read_b128 {vr(V_S[c % 2] + 4 * ss, 4)}, v{V_AX + ss} offset:{off}")

    def mk_w(u, s, mb):
        def f(reg):
            off = aw.to(QSL[1 + u % 2][u // 2]) + s * 4096 + (mb // 2) * 512
            p.I(f"ds_read_b64_tr_b16 {vr(reg, 2)}, v{V_AW + mb % 2} offset:{off}")
            p.I(f"ds_read_b64_tr_b16 {vr(reg + 2, 2)}, v{V_AW + mb % 2} offset:{off + 1024}")
        return f

    def q_mfma(u, s, mb, reg):
        acc = vr((V_O, V_QB)[u % 2] + 16 * mb, 16)
        p.I(f"v_mfma_f32_32x32x16_bf16 {acc}, {vr(reg, 4)}, {vr(V_S[(u // 2) % 2] + 4 * s, 4)}, {'0' if (u < 2 and s == 0) else acc}")

    def pack_ops(src, dst):
        ops = []
        for mb in range(4):
            for i in range(16):
                ops.append(f"v_mul_f32 v{src+16*mb+i}, s{S_SCALE}, v{src+16*mb+i}")
            for i in range(8):
                ops.append(f"v_cvt_pk_bf16_f32 v{dst+8*mb+i}, v{src+16*mb+2*i}, v{src+16*mb+2*i+1}")
        return ops

    qring = [V_FR + 4 * i for i in range(6)] + [232 + 4 * i for i in range(4)]

    class RR(FragRing):
        def reg(self, i):
            return qring[i % len(qring)]
    pk = pack_ops(V_O, V_Q)

    def qextra(fi):
        if fi >= 243:
            for _ in range(8):
                if pk:
                    p.I(pk.pop(0))
    gemm_phase(p, 16, open_u, mk_w, q_mfma, V_FR, len(qring), extra=qextra, cls=RR)
    while pk:
        p.I(pk.pop(0))

    segs = sorted(set(sc.at for sc in scheds if sc.at < 16))

    def open_tile(T):
        if T in segs:
            p.I(f"s_cmp_eq_u32 s{S_SEG}, {T}")
            p.I(f"s_cbranch_scc1 L_A_seg{T}")
            p.label(f"L_A_segb{T}")
        if T == 16:
            p.I(f"s_cmp_eq_u32 s{S_HEADCNT}, 1")
            p.I("s_cbranch_scc1 L_A_nobar")
            p.I("s_barrier")
            p.label("L_A_nobar")
        else:
            p.I("s_barrier")

    def mk_k(j, ks):
        def f(reg):
            if j % 2 == 0 and ks == 0:
                open_tile(j)
            off = ak.to(slot_kv(j - j % 2)) + (j % 2) * 8192 + (ks // 4) * 512
            p.I(f"ds_read_b128 {vr(reg, 4)}, v{V_AK + ks % 4} offset:{off}")
        f.n = 1
        return f

    def mk_v(j, h, mb):
        def f(reg):
            if j % 2 == 0 and h == 0 and mb == 0:
                open_tile(j + 1)
            off = av.to(slot_kv(j - j % 2 + 1)) + ((j % 2) * 2 + h) * 4096 + (mb // 2) * 512
            p.I(f"ds_read_b64_tr_b16 {vr(reg, 2)}, v{V_AV + mb % 2} offset:{off}")
            p.I(f"ds_read_b64_tr_b16 {vr(reg + 2, 2)}, v{V_AV + mb % 2} offset:{off + 2048}")
        f.n = 2
        return f

    seq = []
    for j in range(1, 16):
        seq += [("k", j, ks) for ks in range(8)]
        seq += [("v", j - 1, x) for x in range(8)]
    seq += [("v", 15, x) for x in range(8)]
    seq += [("k", 16, ks) for ks in range(8)]
    item = lambda e: mk_k(e[1], e[2]) if e[0] == "k" else mk_v(e[1], e[2] // 4, e[2] % 4)
    g6 = [V_FR + 4 * i for i in range(6)]
    r0 = Pref(p, [mk_k(0, ks) for ks in range(8)] + [item(e) for e in seq[:6]], g6, lambda i: 1)
    r0.fill(-1, maxn=6, cap=99)
    stamp(p, 2)
    pk = pack_ops(V_QB, V_QB)
    for ks in range(8):
        S = vr(V_S[0], 16)
        p.I(f"v_mfma_f32_32x32x16_bf16 {S}, {vr(r0.reg(ks), 4)}, {vr(V_Q + 4 * ks, 4)}, {S if ks else '0'}")
        r0.fill(ks, maxn=1, cap=99)
        for _ in range(12):
            p.I(pk.pop(0))
    entry_regs = r0.regs[8:14]
    av.to(slot_kv(15))
    ent = (ak.hi, av.hi)
    p.wait(lgkm=0)
    p.flush_hazards()
    p.label("L_A_head")
    p.reset_state()
    p.I(f"v_mov_b32 v{V_L}, 0")
    p.I(f"v_mov_b32 v{V_L+1}, 0")
    p.I(f"v_mov_b32 v{V_M}, 0")
    p.I(f"s_mov_b32 s{S_THR}, {THR}")
    p.I(f"s_mov_b32 s{S_FIRST}, 1")
    items = [item(e) for e in seq] + [item(e) for e in seq[:6]]
    ring = Pref(p, items, g6 + [V_FR2 + 4 * i for i in range(2)], lambda i: items[i].n)
    ring.regs = list(entry_regs)
    ring.issued = 6
    for i, g in enumerate(entry_regs):
        ring.busy[g] = i
        ring.force[len(seq) + i] = g

    def max_ops(i):
        S = V_S[i % 2]
        a = (lambda r: f"|v{r}|") if i == 0 else (lambda r: f"v{r}")
        return [f"v_max3_f32 v{V_MX}, {a(S)}, {a(S+1)}, {a(S+2)}",
                f"v_max3_f32 v{V_T}, {a(S+3)}, {a(S+4)}, {a(S+5)}",
                f"v_max3_f32 v{V_MX}, v{V_MX}, {a(S+6)}, {a(S+7)}",
                f"v_max3_f32 v{V_T}, v{V_T}, {a(S+8)}, {a(S+9)}",
                f"v_max3_f32 v{V_MX}, v{V_MX}, {a(S+10)}, {a(S+11)}",
                f"v_max3_f32 v{V_T}, v{V_T}, {a(S+12)}, {a(S+13)}",
                f"v_max3_f32 v{V_MX}, v{V_MX}, {a(S+14)}, {a(S+15)}",
                f"v_max_f32 v{V_MX}, v{V_MX}, v{V_T}",
                f"v_cmp_nge_f32 vcc, s{S_THR}, v{V_MX}"]

    def exp_ops(i):
        S = V_S[i % 2]
        ops = []
        for k in range(9):
            if k < 8:
                ops.append(f"v_exp_f32 v{S+2*k}, v{S+2*k}")
            if k >= 1:
                a = S + 2 * k - 2
                ops.append(f"v_add_f32 v{V_L}, v{V_L}, v{a}")
            if k < 8:
                ops.append(f"v_exp_f32 v{S+2*k+1}, v{S+2*k+1}")
            if k >= 1:
                ops.append(f"v_add_f32 v{V_L+1}, v{V_L+1}, v{a+1}")
                ops.append(f"v_cvt_pk_bf16_f32 v{S+k-1}, v{a}, v{a+1}")
        return ops

    cost = lambda o: 2 if o.startswith("v_exp") else 1
    stubs, q = [], []
    start_at, end_at = {0: -1}, {}
    for m, e in enumerate(seq):
        if e[0] == "k" and e[2] == 7 and e[1] < 16:
            start_at[e[1]] = m + 2
        if e[0] == "v" and e[2] == 0:
            end_at[e[1]] = m
    epi, cur, nseq = None, 0, len(seq)
    brk = [False]

    def run_valu(budget):
        while q and budget > 0:
            o = q[0]
            if o.startswith("BR"):
                if brk[0] and budget < 10 ** 5:
                    brk[0] = False
                    return
                q.pop(0)
                i = int(o[3:])
                p.I(f"s_cbranch_vccnz L_A_stub{i}")
                p.label(f"L_A_back{i}")
                if i == 0:
                    p.I(f"s_mov_b32 s{S_FIRST}, 0")
                stubs.append(i)
            else:
                q.pop(0)
                budget -= cost(o)
                p.I(o)
                if o.startswith("v_cmp"):
                    brk[0] = budget > 0

    q += max_ops(0) + ["BR 0"] + exp_ops(0)
    run_valu(12)
    for m, e in enumerate(seq):
        kind, j, x = e
        if m == nseq - 8:
            p.I(f"s_cmp_eq_u32 s{S_HEADCNT}, 1")
            p.I("s_cbranch_scc1 L_A_tail")
            epi = epi_ops()
            if SPREAD:
                epi = []
                for f in range(8):
                    a = V_O + 8 * f
                    for i in range(8):
                        epi.append(f"v_mul_f32 v{a+i}, v{V_M}, v{a+i}")
                    for i in range(4):
                        epi.append(f"v_cvt_pk_bf16_f32 v{V_QB+4*f+i}, v{a+2*i}, v{a+2*i+1}")
            if os.environ.get("NOST"):
                epi = [o for o in epi if not o.startswith("buffer_store")]
        if kind == "v" and x == 0 and cur == j:
            run_valu(10 ** 6)
        if m % 2 == 0:
            p.touch([ring.reg(m + 1) + k for k in range(4)])
        if kind == "k":
            S = vr(V_S[j % 2], 16)
            p.I(f"v_mfma_f32_32x32x16_bf16 {S}, {vr(ring.reg(m), 4)}, {vr(V_Q + 4 * x, 4)}, {S if x else '0'}")
        else:
            h, mb = x // 4, x % 4
            acc = vr(V_O + 16 * mb, 16)
            p.I(f"v_mfma_f32_32x32x16_bf16 {acc}, {vr(ring.reg(m), 4)}, {vr(V_S[j % 2] + 4 * h, 4)}, {'0' if (j == 0 and h == 0) else acc}")
        if q and q[0].startswith("BR"):
            run_valu(1)
        ring.fill(m, maxn=2)
        for i, s0 in start_at.items():
            if s0 == m:
                assert not q
                q += max_ops(i) + [f"BR {i}"] + exp_ops(i)
                cur = i
        if q:
            slots = max(1, end_at[cur] - m)
            tot = sum(cost(o) for o in q if not o.startswith("BR"))
            run_valu(-(-tot // slots))
        if SPREAD and kind == "k" and SP0 <= j < SP0 + 8 and x == 3:
            f = j - SP0
            if f % 4 == 0:
                p.I(f"s_sub_u32 s{S_T2}, s{S_OBASE}, {4*32768 - (f // 4) * 16384}")
            p.I(f"buffer_store_dwordx4 {vr(V_QB + 4*f, 4)}, v{V_ST}, {sr(SRD_X,4)}, s{S_T2} offen offset:{(f % 4)*1024} {STFLAGS}")
        if kind == "k" and j == PUBJ and x == 1:
            p.I(f"s_cmp_eq_u32 s{S_HEADCNT}, 0")
            p.I("s_cbranch_scc1 L_A_nopub")
            t_keep = p.t
            p.raw("  s_waitcnt vmcnt(0)")
            p.I(f"s_add_u32 s{S_T0}, s{S_PUB}, 512")
            flag_store(p, S_T0)
            p.label("L_A_nopub")
            p.t = t_keep
        if kind == "v" and j == 15 and x == 1:
            p.I(f"v_add_f32 v{V_L}, v{V_L}, v{V_L+1}")
            p.I(f"v_mov_b32 v{V_T}, v{V_L}")
            p.I(f"v_permlane32_swap_b32 v{V_T}, v{V_L}")
            p.I(f"v_add_f32 v{V_L}, v{V_L}, v{V_T}")
            p.I(f"v_rcp_f32 v{V_M}, v{V_L}")
        if kind == "v" and j == 15 and x >= 2:
            for k in range(6):
                r = (x - 2) * 6 + k
                if r < 32:
                    p.I(f"v_mov_b32 v{V_Q+r}, v{V_QB+r}")
        if epi is not None and m >= nseq - 7:
            for _ in range(16):
                if epi:
                    p.I(epi.pop(0))
        if m in (119, 247):
            stamp(p, 3 if m == 119 else 4)
    ring.fill(nseq - 1, maxn=6, cap=99)
    while epi:
        p.I(epi.pop(0))
    assert ring.regs[nseq:nseq + 6] == entry_regs
    assert (ak.hi, av.hi) == ent, ((ak.hi, av.hi), ent)
    p.I(f"s_add_u32 s{S_OBASE}, s{S_OBASE}, {4*32768}")
    p.I(f"s_mov_b32 s{S_HEADCNT}, 1")
    p.I(f"s_mov_b32 s{SRD_X+2}, s{SRD_WS+2}")
    p.I(f"s_mov_b32 s{S_SEG}, {scheds[0].at}")
    for c in range(1, NCLS):
        p.I(f"s_cmp_eq_u32 s{S_CLS}, {c}")
        p.I(f"s_cselect_b32 s{S_SEG}, {scheds[c].at}, s{S_SEG}")
    loader_setup(p, A_R, "o")
    p.wait(lgkm=0)
    if STAMP in (1, 2):
        for i in range(4):
            p.I(f"s_mov_b32 s{S_STAMP+10+i}, s{S_STAMP+6+i}")
    p.flush_hazards()
    p.I("s_branch L_A_head")
    for c, sc in enumerate(scheds):
        if sc.at < 16:
            assert sum(1 for x in scheds if x.at == sc.at) == 1
            p.label(f"L_A_seg{sc.at}")
            p.reset_state()
            p.I(f"s_mov_b64 {sr(S_SRET,2)}, vcc")
            ld = Loader(p, A_R, f"a1c{c}")
            for s in range(sc.seg, sc.seg_end):
                ld.wait_for(s)
                p.I("s_barrier")
                ld.issue_at(sc, "A", s)
            p.I(f"s_mov_b64 vcc, {sr(S_SRET,2)}")
            p.flush_hazards()
            p.I(f"s_branch L_A_segb{sc.at}")
    p.label("L_A_tail")
    p.reset_state()
    p.nop(12)
    for o in epi_ops():
        p.I(o)
    for c in range(1, NCLS):
        p.I(f"s_cmp_eq_u32 s{S_CLS}, {c}")
        p.I(f"s_cbranch_scc1 L_A_s2c{c}")
    for c, sc in enumerate(scheds):
        if c:
            p.label(f"L_A_s2c{c}")
        p.reset_state()
        p.nop(2)
        ld = Loader(p, A_R, f"a2c{c}")

        def pub():
            p.wait(vm=ld.cnt)
            p.I(f"s_add_u32 s{S_T0}, s{S_PUB}, {3*512}")
            flag_store(p, S_T0, ld.I)
            stamp(p, 7)
        early = any(e.gate == 3 and e.at <= sc.tail0 + 1 for e in sc.issued)
        if early:
            pub()
        if sc.pre_tail:
            for e in sc.pre_tail:
                ld.issue(e)
        for s in range(sc.tail0, sc.n):
            ld.wait_for(s)
            p.I("s_barrier")
            ld.issue_at(sc, "A", s)
            if s == sc.tail0 and not early:
                pub()
        if STAMP in (1, 2):
            p.I(f"s_cmp_lg_u32 s{S_WAVE}, 0")
            p.I("s_cbranch_scc1 L_exit")
            stamp_store(p, 8, 1)
        p.I("s_endpgm")

    for i in stubs:
        p.label(f"L_A_stub{i}")
        p.raw(f"  s_call_b64 {sr(S_RET,2)}, L_A_fix{i % 2}")
        p.raw(f"  s_branch L_A_back{i}")
    for par in range(2):
        S, Pp = V_S[par], V_S[1 - par]
        p.label(f"L_A_fix{par}")
        p.reset_state()
        p.nop(16)
        p.I(f"s_mov_b32 s{S_THR}, 0xff800000")
        for k in range(16):
            p.I(f"v_sub_f32 v{S+k}, v{S+k}, v{V_M}")
        p.I(f"v_max3_f32 v{V_MX}, v{S}, v{S+1}, v{S+2}")
        for k in range(3, 15, 2):
            p.I(f"v_max3_f32 v{V_MX}, v{V_MX}, v{S+k}, v{S+k+1}")
        p.I(f"v_max_f32 v{V_MX}, v{V_MX}, v{S+15}")
        p.I(f"v_mov_b32 v{V_T}, v{V_MX}")
        p.I(f"v_permlane32_swap_b32 v{V_T}, v{V_MX}")
        p.I(f"v_max_f32 v{V_MX}, v{V_MX}, v{V_T}")
        p.I(f"v_ceil_f32 v{V_MX}, v{V_MX}")
        p.I(f"s_cmp_eq_u32 s{S_FIRST}, 1")
        p.I(f"s_cbranch_scc1 L_A_fixa{par}")
        p.I(f"v_max_f32 v{V_MX}, 0, v{V_MX}")
        p.label(f"L_A_fixa{par}")
        p.nop(2)
        for k in range(16):
            p.I(f"v_sub_f32 v{S+k}, v{S+k}, v{V_MX}")
        p.I(f"v_add_f32 v{V_M}, v{V_M}, v{V_MX}")
        p.I(f"s_cbranch_scc1 L_A_fixd{par}")
        p.I(f"v_exp_f32 v{V_MX}, -v{V_MX}")
        for k in range(2):
            p.I(f"v_mul_f32 v{V_L+k}, v{V_L+k}, v{V_MX}")
        for k in range(64):
            p.I(f"v_mul_f32 v{V_O+k}, v{V_O+k}, v{V_MX}")
        for k in range(8):
            r = Pp + k
            p.I(f"v_lshlrev_b32 v{V_T}, 16, v{r}")
            p.I(f"v_and_b32 v{r}, 0xffff0000, v{r}")
            p.I(f"v_mul_f32 v{V_T}, v{V_T}, v{V_MX}")
            p.I(f"v_mul_f32 v{r}, v{r}, v{V_MX}")
            p.I(f"v_cvt_pk_bf16_f32 v{r}, v{V_T}, v{r}")
        p.label(f"L_A_fixd{par}")
        p.nop(4)
        p.raw(f"  s_setpc_b64 {sr(S_RET,2)}")


def epi_ops():
    ops = []
    for f in range(8):
        a = V_O + 8 * f
        for i in range(8):
            ops.append(f"v_mul_f32 v{a+i}, v{V_M}, v{a+i}")
        for i in range(4):
            ops.append(f"v_cvt_pk_bf16_f32 v{a+i}, v{a+2*i}, v{a+2*i+1}")
        if f % 4 == 0:
            ops.append(f"s_add_u32 s{S_T0}, s{S_OBASE}, {(f // 4) * 16384}")
        ops.append(f"buffer_store_dwordx4 {vr(a,4)}, v{V_ST}, {sr(SRD_WS,4)}, s{S_T0} offen offset:{(f % 4)*1024} {STFLAGS}")
    return ops


G_R = 8
G_AX = 1
G_AW = 5
G_AWO = 7
G_AO = G_R + LT + 7
G_ACC = 64
G_XF = 128
G_B = 128
G_W = [128, 144]
G_FR = 40
G_FR2 = 160


def gen_G_setup2(p):
    loader_setup(p, G_R, "o")
    scalars2(p)
    tr_lane_base(p, 40, 41, 42)
    add_pi(p, 40, 40, 42)
    p.I("v_lshrrev_b32 v43, 5, v0")
    p.I(f"v_lshl_add_u32 v{G_AWO}, v43, 10, v40")
    p.I(f"s_and_b32 s{S_T0}, s{S_G}, 1")
    p.I(f"s_lshl_b32 s{S_T0}, s{S_T0}, 6")
    p.I(f"v_xor_b32 v{G_AWO}, s{S_T0}, v{G_AWO}")
    p.I(f"s_lshr_b32 s{S_T0}, s{S_G}, 1")
    p.I(f"s_lshl_b32 s{S_T0}, s{S_T0}, 9")
    p.I(f"v_add_u32 v{G_AWO}, s{S_T0}, v{G_AWO}")
    p.I(f"v_lshlrev_b32 v{G_AO}, 4, v0")
    p.I(f"v_lshl_add_u32 v{G_AW}, v43, 11, v40")
    p.I(f"v_xor_b32 v{G_AW+1}, 64, v{G_AW}")
    p.I(f"v_bfe_u32 v42, v0, 1, 3")
    p.I(f"v_xor_b32 v42, v42, v43")
    p.I(f"v_lshlrev_b32 v42, 4, v42")
    p.I(f"v_and_b32 v40, 31, v0")
    p.I(f"v_lshlrev_b32 v40, 7, v40")
    p.I(f"v_add3_u32 v{G_AX}, v40, v42, s{S_M0B}")
    for i in range(1, 4):
        p.I(f"v_xor_b32 v{G_AX+i}, {i*32}, v{G_AX}")


def gen_reset(p, tag):
    p.I(f"s_cmp_lg_u32 s{S_WAVE}, 4")
    p.I(f"s_cbranch_scc1 L_G_norst{tag}")
    p.I(f"s_lshl_b32 s{S_T0}, s{S_B}, 2")
    p.I(f"s_add_u32 s{S_T0}, s{S_T0}, s{S_HG}")
    p.I(f"s_lshl_b32 s{S_T0}, s{S_T0}, 11")
    p.I(f"s_lshl_b32 s{S_T1}, s{S_P}, 2")
    p.I(f"s_add_u32 s{S_T0}, s{S_T0}, s{S_T1}")
    p.I(f"s_add_u32 s{S_T0}, s{S_T0}, {WS_F1}")
    p.I(f"v_lshlrev_b32 v48, 7, v0")
    p.I(f"v_add_u32 v48, s{S_T0}, v48")
    p.I(f"s_lshl_b32 s{S_T0}, s{S_B}, 2")
    p.I(f"s_add_u32 s{S_T0}, s{S_T0}, s{S_P}")
    p.I(f"s_lshl_b32 s{S_T0}, s{S_T0}, 11")
    p.I(f"s_lshl_b32 s{S_T1}, s{S_HG}, 2")
    p.I(f"s_add_u32 s{S_T0}, s{S_T0}, s{S_T1}")
    p.I(f"s_add_u32 s{S_T0}, s{S_T0}, {WS_F2 - 16*128}")
    p.I(f"v_lshlrev_b32 v49, 7, v0")
    p.I(f"v_add_u32 v49, s{S_T0}, v49")
    p.I("v_cmp_gt_u32 vcc, 16, v0")
    p.I("v_cndmask_b32 v48, v49, v48, vcc")
    p.I("v_mov_b32 v49, 0")
    p.I(f"s_mov_b64 {sr(S_EX,2)}, exec")
    p.I("s_mov_b32 exec_hi, 0")
    p.raw(f"  buffer_store_dword v49, v48, {sr(SRD_WS,4)}, 0 offen sc1")
    p.I(f"s_mov_b64 exec, {sr(S_EX,2)}")
    p.label(f"L_G_norst{tag}")


def gen_reset_done(p, tag):
    p.I(f"s_cmp_lg_u32 s{S_WAVE}, 4")
    p.I(f"s_cbranch_scc1 L_G_nord{tag}")
    p.I("v_mov_b32 v49, 1")
    p.I(f"s_lshl_b32 s{S_T0}, s{S_B}, 4")
    p.I(f"v_mov_b32 v48, s{S_T0}")
    p.I(f"s_mov_b64 {sr(S_EX,2)}, exec")
    p.I("s_mov_b64 exec, 1")
    p.raw(f"  buffer_atomic_add v49, v48, {sr(SRD_DBG,4)}, 0 offen sc1")
    p.I(f"s_mov_b64 exec, {sr(S_EX,2)}")
    p.label(f"L_G_nord{tag}")


def gen_G_class(p, c, sc):
    tag = f"c{c}"
    ld = Loader(p, G_R, f"g{tag}")
    awo, ao = AddrSet(p, [G_AWO]), AddrSet(p, [G_AO])
    aw, ax = AddrSet(p, [G_AW, G_AW + 1]), AddrSet(p, [G_AX + i for i in range(4)])
    by = {(e.kind, e.idx): e for e in sc.ents}

    def issue_at(s):
        ld.issue_at(sc, "G", s)

    def handoff():
        p.I(f"s_lshl_b32 s{S_T0}, s{S_G}, 13")
        p.I(f"s_add_u32 s{S_T0}, s{S_T0}, {HSLOT*16384}")
        p.I(f"v_add_u32 v48, s{S_T0}, v{G_R+LOV}")
        for mb in range(4):
            for h in range(2):
                p.I(f"ds_write_b128 v48, {vr(G_ACC + 16*mb + 4*h, 4)} offset:{(2*mb+h)*1024}")

    wbuf = {u: 128 + 16 * i for i, u in enumerate(PRE)}
    for u in range(16):
        if u not in wbuf:
            used = {wbuf[v] for v in wbuf if v >= u - 1}
            wbuf[u] = [b for b in range(128, 256, 16) if b not in used][0]

    def read_w(e):
        off = awo.to(e.slot)
        for s4 in range(4):
            r = wbuf[e.idx] + 4 * s4
            p.I(f"ds_read_b64_tr_b16 {vr(r,2)}, v{G_AWO} offset:{off + s4*4096}")
            p.I(f"ds_read_b64_tr_b16 {vr(r+2,2)}, v{G_AWO} offset:{off + s4*4096 + 2048}")

    stamp(p, 0)
    gen_reset(p, tag)
    issue_at(-1)
    gen_G_setup2(p)
    if PRIO_G:
        p.I(f"s_setprio {PRIO_G}")
    nm = [1]

    def mark():
        if nm[0] < 10:
            stamp(p, nm[0])
            nm[0] += 1

    s = 0
    first_o = True
    while s < sc.n:
        name, idx = sc.steps[s]
        if name in ("QA", "K"):
            ld.wait_for(s, **({"lgkm": 0} if p.lgkm else {}))
            p.I("s_barrier")
            if (name == "QA" and idx == 0) or (name == "K" and idx % 8 == 0):
                mark()
            for e in sc.ents:
                if e.kind == "wp" and e.need == s:
                    read_w(e)
            if s == 2:
                gen_reset_done(p, tag)
            if s == sc.ka0 + 4:
                p.I(f"s_lshl_b32 s{S_T0}, s{S_B}, 4")
                p.I(f"v_mov_b32 v48, 0")
                ld.I(f"buffer_load_dword v{G_R+LDPOLL}, v48, {sr(SRD_DBG,4)}, s{S_T0} offen sc1")
            if s == sc.ka0 + 14:
                p.I(f"v_cmp_gt_u32 vcc, 16, v{G_R+LDPOLL}")
                p.I(f"s_cbranch_vccz L_dok{tag}")
                t_keep, saved, ck = p.t, list(p.vm), ld.cnt
                ld.spin("d", 0)
                p.label(f"L_dok{tag}")
                p.t, p.vm, ld.cnt = t_keep, saved, ck
            issue_at(s)
            s += 1
        else:
            s0 = s
            n = 0
            while s + n < sc.n and sc.steps[s + n][0] == "O":
                n += 1
            o0 = [e.idx for e in sc.ents if e.kind == "o" and e.need == s0][0]
            fz = first_o
            first_o = False

            def open_u(u):
                ld.wait_for(s0 + u, lgkm=0)
                p.I("s_barrier")
                if u == 0 or (o0 + u) in (8, 12):
                    mark()
                if ("wo", o0 + u) in by:
                    read_w(by[("wo", o0 + u)])

            def item(u, s4, mb):
                def f(reg):
                    off = ao.to(by[("o", o0 + u)].slot) + mb * 4096 + s4 * 1024
                    p.I(f"ds_read_b128 {vr(reg,4)}, v{G_AO} offset:{off}")
                return f

            def mf(u, s4, mb, reg):
                acc = vr(G_ACC + 16 * mb, 16)
                cin = "0" if (fz and u == 0 and s4 == 0) else acc
                p.I(f"v_mfma_f32_32x32x16_bf16 {acc}, {vr(wbuf[o0 + u] + 4*s4, 4)}, {vr(reg,4)}, {cin}")
            oring = [40 + 4 * i for i in range(6)] + ([8 + 4 * i for i in range(4)] if s0 + n == sc.n else [])

            class RG(FragRing):
                def reg(self, i):
                    return oring[i % len(oring)]
            gemm_phase(p, n, open_u, item, mf, 0, len(oring), cls=RG)
            s += n
    while nm[0] < 10:
        mark()
    p.flush_hazards()
    p.I("s_branch L_G_final")


def gen_G_final(p):
    p.label("L_G_final")
    p.reset_state()
    stamp(p, 10)
    SG = S_G
    OV, PA, POLL = G_R + LOV, G_R + LPA, G_R + LPOLL
    p.I(f"s_lshl_b32 s{S_T0}, s{S_B}, 2")
    p.I(f"s_add_u32 s{S_T2}, s{S_T0}, s{S_P}")
    p.I(f"s_lshl_b32 s{S_T3}, s{S_T2}, 18")
    p.I(f"s_add_u32 s{S_T3}, s{S_T3}, {WS_PART}")
    p.I(f"s_add_u32 s{S_T3}, s{S_T3}, s{S_M0B}")
    p.I(f"s_lshl_b32 s{S_T2}, s{S_T2}, 11")
    p.I(f"s_add_u32 s{S_T2}, s{S_T2}, {WS_F2}")
    p.I(f"s_lshl_b32 s{S_T0}, s{SG}, 7")
    p.I(f"s_add_u32 s{S_T2}, s{S_T2}, s{S_T0}")
    p.I(f"s_lshl_b32 s{S_T1}, s{S_HG}, 14")
    p.I(f"s_add_u32 s{S_DS}, s{S_T3}, s{S_T1}")
    for d in range(4):
        p.I(f"s_cmp_eq_u32 s{S_HG}, {d}")
        p.I(f"s_cbranch_scc1 L_G_own{d}")
        for j in range(4):
            p.I(f"buffer_store_dwordx4 {vr(G_ACC + 16*d + 4*j, 4)}, v{OV}, {sr(SRD_WS,4)}, s{S_DS} offen offset:{j*1024} {STFLAGS}")
        p.I(f"s_branch L_G_nx{d}")
        p.label(f"L_G_own{d}")
        for k in range(16):
            p.I(f"v_mov_b32 v{G_B+k}, v{G_ACC+16*d+k}")
        p.label(f"L_G_nx{d}")
        if d < 3:
            p.I(f"s_add_u32 s{S_DS}, s{S_DS}, 65536")
    p.I(f"v_lshlrev_b32 v49, 7, v{PA}")
    p.I(f"s_lshl_b32 s{S_T1}, s{S_HG}, 2")
    p.I(f"s_add_u32 s{S_T0}, s{S_T2}, s{S_T1}")
    p.I("v_mov_b32 v48, 1")
    p.I(f"s_mov_b64 {sr(S_EX,2)}, exec")
    p.I("s_mov_b64 exec, 15")
    p.wait(vm=0)
    p.I(f"buffer_store_dword v48, v49, {sr(SRD_WS,4)}, s{S_T0} offen sc1")
    p.I(f"s_mov_b64 exec, {sr(S_EX,2)}")
    stamp(p, 11)
    p.I(f"s_lshl_b32 s{S_T0}, s{S_HG}, 9")
    p.I(f"s_add_u32 s{S_T2}, s{S_T2}, s{S_T0}")
    p.I(f"v_cmp_ne_u32 {sr(S_EX,2)}, s{S_T1}, v{PA}")
    p.I(f"s_mov_b32 s{S_SPIN}, {SPIN}")
    p.label("L_G_sp2")
    p.I(f"buffer_load_dword v{POLL}, v{PA}, {sr(SRD_WS,4)}, s{S_T2} offen sc1")
    p.I(f"v_cmp_ne_u32 vcc, 1, v{POLL}")
    p.I(f"s_and_b64 vcc, vcc, {sr(S_EX,2)}")
    p.I("s_cbranch_vccz L_G_ok2")
    p.I(f"s_sub_u32 s{S_SPIN}, s{S_SPIN}, 1")
    p.I(f"s_cmp_lg_u32 s{S_SPIN}, 0")
    p.I("s_cbranch_scc1 L_G_sp2")
    p.label("L_G_ok2")
    stamp(p, 12)
    p.I(f"s_lshl_b32 s{S_T0}, s{S_HG}, 16")
    p.I(f"s_add_u32 s{S_T3}, s{S_T3}, s{S_T0}")
    for i in range(3):
        p.I(f"s_add_u32 s{S_T0}, s{S_HG}, {i+1}")
        p.I(f"s_and_b32 s{S_T0}, s{S_T0}, 3")
        p.I(f"s_lshl_b32 s{S_T0}, s{S_T0}, 14")
        p.I(f"s_add_u32 s{S_T0}, s{S_T0}, s{S_T3}")
        for j in range(4):
            p.I(f"buffer_load_dwordx4 {vr(G_B + 16*(i+1) + 4*j, 4)}, v{OV}, {sr(SRD_WS,4)}, s{S_T0} offen offset:{j*1024} sc1")
    p.I("v_and_b32 v48, 31, v0")
    p.I("v_lshlrev_b32 v48, 10, v48")
    p.I("v_lshrrev_b32 v49, 5, v0")
    p.I("v_lshl_add_u32 v48, v49, 4, v48")
    p.I(f"s_lshl_b32 s{S_T0}, s{S_B}, 17")
    p.I(f"s_lshl_b32 s{S_T1}, s{S_HG}, 15")
    p.I(f"s_add_u32 s{S_T0}, s{S_T0}, s{S_T1}")
    p.I(f"s_lshl_b32 s{S_T1}, s{S_P}, 8")
    p.I(f"s_add_u32 s{S_T0}, s{S_T0}, s{S_T1}")
    p.I(f"s_lshl_b32 s{S_T1}, s{SG}, 6")
    p.I(f"s_add_u32 s{S_T0}, s{S_T0}, s{S_T1}")
    for i in range(3):
        for k in range(16):
            p.I(f"v_add_f32 v{G_B+k}, v{G_B+k}, v{G_B+16*(i+1)+k}")
    for k in range(8):
        p.I(f"v_cvt_pk_bf16_f32 v{G_B+k}, v{G_B+2*k}, v{G_B+2*k+1}")
    p.I(f"buffer_store_dwordx4 {vr(G_B,4)}, v48, {sr(SRD_OUT,4)}, s{S_T0} offen")
    p.I(f"buffer_store_dwordx4 {vr(G_B+4,4)}, v48, {sr(SRD_OUT,4)}, s{S_T0} offen offset:32")
    if STAMP in (1, 2):
        p.wait(vm=0)
        stamp(p, 13)
        p.I(f"s_cmp_lg_u32 s{S_WAVE}, 4")
        p.I("s_cbranch_scc1 L_exit")
        if os.environ.get("DBGOUT"):
            p.raw("  s_waitcnt lgkmcnt(0)")
            p.I("s_mov_b64 exec, 1")
            words = [1, 2, 3, 5, 6, 7, 9, 10, 11, 13, 14, 15]
            p.I(f"s_not_b32 s{S_T0}, s{S_STAMP}")
            p.I(f"v_mov_b32 v32, s{S_T0}")
            p.I(f"v_mov_b32 v30, {4*words[0]}")
            p.I(f"buffer_atomic_umax v32, v30, {sr(SRD_DBG,4)}, 0 offen sc1")
            for w, i in zip(words[1:], [0, 1, 2, 3, 4, 5, 6, 7, 10, 12, 13]):
                p.nop(2)
                p.I(f"v_mov_b32 v32, s{S_STAMP+2*i}")
                p.I(f"v_mov_b32 v30, {4*w}")
                p.I(f"buffer_atomic_umax v32, v30, {sr(SRD_DBG,4)}, 0 offen sc1")
        else:
            stamp_store(p, 14, 0)
    p.I("s_endpgm")


def main():
    out = sys.argv[1]
    scheds = [Sched(c) for c in CLASSES]
    if os.environ.get("SHOW"):
        for sc in scheds:
            print(" ".join(f"{e.kind}{e.idx}@{e.at}{e.who}>{e.need}[{e.slot}]" for e in sc.issued))
    p = Prog()
    prologue(p, 256)
    p.I(f"s_cmp_lt_u32 s{S_WAVE}, 4")
    p.I("s_cbranch_scc1 L_A")
    loader_setup(p, G_R, "xwkv")
    for c in range(1, NCLS):
        p.I(f"s_cmp_eq_u32 s{S_CLS}, {c}")
        p.I(f"s_cbranch_scc1 L_G_cls{c}")
    for c in range(NCLS):
        if c:
            p.label(f"L_G_cls{c}")
        p.reset_state()
        p.nop(2)
        gen_G_class(p, c, scheds[c])
    gen_G_final(p)
    p.label("L_A")
    p.reset_state()
    gen_A(p, scheds)
    p.label("L_exit")
    p.I("s_endpgm")
    s = "; @launch grid=(256,1,1) block=(512,1,1) lds=163840\n"
    s += '.amdgcn_target "amdgcn-amd-amdhsa--gfx950"\n.text\n'
    s += kernel_header(KNAME) + p.text()
    s += '.section .rodata,"a"\n'
    s += kernel_desc(KNAME, 256, 102, 256)
    open(out, "w").write(s)
    print("nops inserted:", p.nops_inserted, "lines", len(p.lines))


main()
```

```python
import sys, math, struct, os
from asmlib import Prog, vr, sr, kernel_header, kernel_desc

STAMP = int(os.environ.get("STAMP", "0"))
KVFLAGS = os.environ.get("KVFLAGS", "nt")
AUXFLAGS = os.environ.get("AUXFLAGS", "")
OFLAGS = os.environ.get("OFLAGS", "sc1")
STFLAGS = os.environ.get("STFLAGS", "sc1")
PRIO_A = int(os.environ.get("PRIO_A", "0"))
PRIO_G = int(os.environ.get("PRIO_G", "0"))
ROT = int(os.environ.get("ROT", "1"))
DT = int(os.environ.get("DT", "4"))
CLASSES = eval(os.environ.get("CLASSES", "[dict()]"))
NCLS = len(CLASSES)
KD = int(os.environ.get("KD", "4"))
GLEAD = int(os.environ.get("GLEAD", "2"))
PER = int(os.environ.get("PER", "3"))
KEARLY = int(os.environ.get("KEARLY", "0"))
KNAME = "standalone__mha_block_cached__near_ridge_kernel"
if KVFLAGS == "-":
    KVFLAGS = ""

WS_PART = 16 << 20
WS_STAMP = 32 << 20
WS_F1 = 48 << 20
WS_F2 = 49 << 20
SPIN = "0x20000"
HSLOT = 2


def f32bits(x):
    return struct.unpack("<I", struct.pack("<f", x))[0]


QSCALE = hex(f32bits(math.log2(math.e) / math.sqrt(128.0)))
THR = hex(f32bits(40.0))

S_WAVE = 3
SRD_X, SRD_K, SRD_V, SRD_WQ, SRD_WO, SRD_OUT, SRD_WS, SRD_DBG = 8, 12, 16, 20, 24, 28, 32, 4
S_B, S_H, S_T0, S_T1, S_T2, S_T3 = 36, 37, 38, 39, 56, 57
S_HEADCNT = 58
S_XBASE, S_WQBASE, S_KVBASE, S_OBASE = 59, 60, 61, 62
S_HG = 63
S_RET = 64
S_SCALE, S_THR = 66, 67
S_M0B = 68
S_P = 69
S_CLS = 70
S_BL = 71
S_DS = 54
S_FLAG = 46
S_PUB = 45
S_G = 47
S_C0 = 48
S_WOB = 49
S_OINB = 50
S_SPIN = 51
S_EX = 52
S_FIRST = 44
S_SEG = 43
S_SRET = 40
HOLD = int(os.environ.get("HOLD", "3"))
PRE = eval(os.environ.get("PRE", "[]"))
PRE0, PRED = int(os.environ.get("PRE0", "3")), int(os.environ.get("PRED", "3"))
KPOS = eval(os.environ.get("KPOS", "[]"))
PBF = int(os.environ.get("PBF", "0"))
DTH = int(os.environ.get("DTH", "5"))
KROT = int(os.environ.get("KROT", "1"))
FINE = int(os.environ.get("FINE", "0"))
WPF = int(os.environ.get("WPF", "-1"))
WPN = int(os.environ.get("WPN", "8"))
RES = eval(os.environ.get("RES", "[14,18,22,26,30]"))
RP0, RPD = int(os.environ.get("RP0", "6")), int(os.environ.get("RPD", "4"))
S_KR = 55
PUBJ = int(os.environ.get("PUBJ", "3"))
SPREAD = int(os.environ.get("SPREAD", "0"))
SP0 = int(os.environ.get("SP0", "1"))
S_STAMP = 72


def stamp(p, idx):
    if STAMP in (1, 2):
        p.raw(f"  {'s_memtime' if STAMP == 2 else 's_memrealtime'} s[{S_STAMP+2*idx}:{S_STAMP+1+2*idx}]")


def stamp_store(p, n, kern):
    p.raw("  s_waitcnt lgkmcnt(0)")
    p.I(f"s_lshl_b32 s{S_T0}, s2, 8")
    p.I(f"s_add_u32 s{S_T0}, s{S_T0}, {WS_STAMP + kern*65536}")
    p.I("v_mov_b32 v30, 0")
    for i in range(n):
        p.I(f"v_mov_b32 v32, s{S_STAMP+2*i}")
        p.I(f"v_mov_b32 v33, s{S_STAMP+1+2*i}")
        p.I(f"buffer_store_dwordx2 v[32:33], v30, {sr(SRD_WS,4)}, s{S_T0} offen offset:{8*i}")
        p.nop(2)


def prologue(p, nwg):
    p.I(f"s_cmp_ge_u32 s2, {nwg}")
    p.I("s_cbranch_scc1 L_exit")
    p.I("s_load_dwordx8 s[40:47], s[0:1], 0")
    p.I("s_load_dwordx8 s[48:55], s[0:1], 32")
    p.I("v_lshrrev_b32 v1, 6, v0")
    p.I(f"v_readfirstlane_b32 s{S_WAVE}, v1")
    p.I("v_and_b32 v0, 63, v0")
    p.I(f"s_bfe_u32 s{S_BL}, s2, {(3 << 16) | 3}")
    p.I(f"s_and_b32 s{S_T0}, s2, 1")
    p.I(f"s_lshl_b32 s{S_T0}, s{S_T0}, 3")
    p.I(f"s_add_u32 s{S_B}, s{S_T0}, s{S_BL}")
    p.I(f"s_bfe_u32 s{S_HG}, s2, {(2 << 16) | 1}")
    p.I(f"s_lshr_b32 s{S_P}, s2, 6")
    p.I(f"s_lshl_b32 s{S_T0}, s{S_HG}, 3")
    p.I(f"s_add_u32 s{S_H}, s{S_T0}, s{S_P}")
    p.I(f"s_and_b32 s{S_CLS}, s{S_BL}, {NCLS-1}")
    p.raw("  s_waitcnt lgkmcnt(0)")
    for srd, src, size in ((SRD_X, 40, 2 << 20), (SRD_WQ, 46, 4 << 20), (SRD_K, 42, 64 << 20), (SRD_V, 44, 64 << 20),
                           (SRD_WO, 48, 4 << 20), (SRD_OUT, 50, 2 << 20), (SRD_DBG, 52, 256), (SRD_WS, 54, 256 << 20)):
        p.I(f"s_mov_b32 s{srd}, s{src}")
        p.I(f"s_and_b32 s{srd+1}, s{src+1}, 0xffff")
        p.I(f"s_mov_b32 s{srd+2}, {size}")
        p.I(f"s_mov_b32 s{srd+3}, 0x20000")
    WSB = int(os.environ.get("WSB", "0")) << 20
    if WSB:
        p.I(f"s_add_u32 s{SRD_WS}, s{SRD_WS}, {WSB}")
        p.I(f"s_addc_u32 s{SRD_WS+1}, s{SRD_WS+1}, 0")
        p.I(f"s_mov_b32 s{SRD_WS+2}, {(256 << 20) - WSB}")
    p.I(f"s_and_b32 s{S_G}, s{S_WAVE}, 3")
    p.I(f"s_lshl_b32 s{S_M0B}, s{S_G}, 12")
    if KROT == 1:
        p.I(f"s_lshr_b32 s{S_KR}, s2, 3")
        p.I(f"s_add_u32 s{S_KR}, s{S_KR}, s2")
        p.I(f"s_lshr_b32 s{S_T0}, s2, 6")
        p.I(f"s_add_u32 s{S_KR}, s{S_KR}, s{S_T0}")
    else:
        p.I(f"s_mov_b32 s{S_KR}, s{S_BL}")
    p.I(f"s_lshl_b32 s{S_XBASE}, s{S_B}, 17")
    p.I(f"s_lshl_b32 s{S_WQBASE}, s{S_H}, 8")
    p.I(f"s_lshl_b32 s{S_T0}, s{S_B}, 5")
    p.I(f"s_add_u32 s{S_T0}, s{S_T0}, s{S_H}")
    p.I(f"s_lshl_b32 s{S_KVBASE}, s{S_T0}, 17")
    p.I(f"s_lshl_b32 s{S_OBASE}, s{S_T0}, 15")
    if ROT == 1:
        p.I(f"s_lshl_b32 s{S_T0}, s{S_P}, 1")
        p.I(f"s_add_u32 s{S_C0}, s{S_BL}, s{S_T0}")
    elif ROT == 2:
        p.I(f"s_add_u32 s{S_T0}, s{S_BL}, s{S_P}")
        p.I(f"s_and_b32 s{S_T0}, s{S_T0}, 1")
        p.I(f"s_lshl_b32 s{S_C0}, s{S_T0}, 2")
    else:
        p.I(f"s_mov_b32 s{S_C0}, 0")


def scalars2(p):
    p.I(f"s_lshl_b32 s{S_WOB}, s{S_HG}, 20")
    p.I(f"s_lshl_b32 s{S_T0}, s{S_P}, 8")
    p.I(f"s_add_u32 s{S_WOB}, s{S_WOB}, s{S_T0}")
    p.I(f"s_lshl_b32 s{S_OINB}, s{S_B}, 20")
    p.I(f"s_lshl_b32 s{S_T0}, s{S_HG}, 18")
    p.I(f"s_add_u32 s{S_OINB}, s{S_OINB}, s{S_T0}")
    p.I(f"s_add_u32 s{S_OINB}, s{S_OINB}, s{S_M0B}")
    p.I(f"s_lshl_b32 s{S_T0}, s{S_B}, 2")
    p.I(f"s_add_u32 s{S_T0}, s{S_T0}, s{S_HG}")
    p.I(f"s_lshl_b32 s{S_T0}, s{S_T0}, 11")
    p.I(f"s_lshl_b32 s{S_T1}, s{S_G}, 7")
    p.I(f"s_add_u32 s{S_T0}, s{S_T0}, s{S_T1}")
    p.I(f"s_add_u32 s{S_FLAG}, s{S_T0}, {WS_F1}")
    p.I(f"s_lshl_b32 s{S_T1}, s{S_P}, 2")
    p.I(f"s_add_u32 s{S_PUB}, s{S_FLAG}, s{S_T1}")
    p.I(f"s_mov_b32 s{S_SCALE}, {QSCALE}")


QSL = [(3 * c) % 7 for c in range(8)], [(3 * c + 1) % 7 for c in range(8)], [(3 * c + 2) % 7 for c in range(8)]


def slot_kv(T):
    return [7, 8, 9, 3, 4, 5, 6, 0][T % 8]


class AddrSet:
    def __init__(self, p, regs):
        self.p, self.regs, self.hi = p, regs, 0

    def to(self, slot):
        hi = slot // 4
        if hi != self.hi:
            d = (hi - self.hi) * 65536
            for r in self.regs:
                if d > 0:
                    self.p.I(f"v_add_u32 v{r}, {d}, v{r}")
                else:
                    self.p.I(f"v_subrev_u32 v{r}, {-d}, v{r}")
            self.hi = hi
        return (slot % 4) * 16384


def tr_lane_base(p, dst, t1, t3):
    p.I(f"v_bfe_u32 v{t1}, v0, 2, 2")
    p.I(f"v_bfe_u32 v{dst}, v0, 3, 1")
    p.I(f"v_lshlrev_b32 v{dst}, 6, v{dst}")
    p.I(f"v_lshl_add_u32 v{dst}, v{t1}, 7, v{dst}")
    p.I(f"v_bfe_u32 v{t3}, v0, 4, 1")
    p.I(f"v_lshl_add_u32 v{dst}, v{t3}, 5, v{dst}")


def add_pi(p, dst, src, t3):
    p.I(f"v_and_b32 v{t3}, 1, v0")
    p.I(f"v_lshl_add_u32 v{dst}, v{t3}, 4, v{src}")
    p.I(f"v_bfe_u32 v{t3}, v0, 1, 1")
    p.I(f"v_lshl_add_u32 v{dst}, v{t3}, 3, v{dst}")


class FragRing:
    def __init__(self, p, items, base, n):
        self.p, self.items, self.base, self.n = p, items, base, n
        self.issued = 0

    def reg(self, i):
        return self.base + 4 * (i % self.n)

    def issue_next(self):
        if self.issued >= len(self.items):
            return False
        i = self.issued
        self.items[i](self.reg(i))
        self.issued += 1
        return True


class Pref:
    def __init__(self, p, items, groups, ops):
        self.p, self.items, self.groups, self.ops = p, items, groups, ops
        self.issued = 0
        self.regs = []
        self.busy = {g: -1 for g in groups}
        self.force = {}

    def reg(self, i):
        return self.regs[i]

    def fill(self, m, lim=10 ** 9, maxn=2, cap=15):
        n = 0
        while n < maxn and self.issued < min(lim, len(self.items)):
            i = self.issued
            if len(self.p.lgkm) + self.ops(i) > cap and i > m + 2:
                break
            c = [g for g in self.groups if self.busy[g] <= m and self.force.get(i, g) == g]
            if not c:
                break
            g = min(c, key=lambda g: self.busy[g])
            self.busy[g] = i
            self.regs.append(g)
            self.issued += 1
            self.items[i](g)
            n += 1


LX, LW, LK, LV, LWO, LOV, LPA, LPOLL, LDPOLL, LT = 0, 4, 8, 12, 16, 20, 21, 22, 23, 24


def loader_setup(p, R, which):
    t = lambda i: R + LT + i
    l8, m8, u1, l16, rr, hf, sw, tmp = [t(i) for i in range(8)]
    p.I(f"v_lshrrev_b32 v{l8}, 3, v0")
    p.I(f"v_and_b32 v{m8}, 7, v0")
    p.I(f"v_bfe_u32 v{u1}, v0, 4, 1")
    p.I(f"v_lshrrev_b32 v{l16}, 4, v0")
    p.I(f"v_bfe_u32 v{rr}, v0, 3, 2")
    p.I(f"v_lshrrev_b32 v{hf}, 5, v0")
    p.I(f"v_lshlrev_b32 v{sw}, 2, v{u1}")
    p.I(f"v_xor_b32 v{sw}, v{sw}, v{m8}")
    p.I(f"v_lshlrev_b32 v{sw}, 4, v{sw}")
    for w in which:
        if w == "x":
            p.I(f"s_lshl_b32 s{S_T0}, s{S_G}, 15")
            for j in range(4):
                p.I(f"v_add_u32 v{tmp}, {4*j}, v{l16}")
                p.I(f"v_and_b32 v{tmp}, 7, v{tmp}")
                p.I(f"v_xor_b32 v{tmp}, v{tmp}, v{m8}")
                p.I(f"v_lshlrev_b32 v{tmp}, 4, v{tmp}")
                p.I(f"v_lshl_add_u32 v{tmp}, v{l8}, 10, v{tmp}")
                p.I(f"v_add_u32 v{tmp}, {8*j*1024 - j*1024}, v{tmp}")
                p.I(f"v_add_u32 v{R+LX+j}, s{S_T0}, v{tmp}")
        elif w == "w":
            p.I(f"v_lshl_add_u32 v{tmp}, v{rr}, 13, v{sw}")
            p.I(f"v_lshl_add_u32 v{tmp}, v{hf}, 7, v{tmp}")
            p.I(f"s_lshl_b32 s{S_T0}, s{S_G}, 17")
            p.I(f"v_add_u32 v{tmp}, s{S_T0}, v{tmp}")
            for j in range(4):
                p.I(f"v_add_u32 v{R+LW+j}, {4*j*8192 - j*1024}, v{tmp}")
        elif w == "k":
            for j in range(4):
                p.I(f"v_add_u32 v{tmp}, {2*j}, v{u1}")
                p.I(f"v_xor_b32 v{tmp}, v{tmp}, v{m8}")
                p.I(f"v_lshlrev_b32 v{tmp}, 4, v{tmp}")
                p.I(f"v_lshl_add_u32 v{tmp}, v{rr}, 8, v{tmp}")
                p.I(f"v_lshl_add_u32 v{tmp}, v{hf}, 7, v{tmp}")
                p.I(f"v_add_u32 v{R+LK+j}, s{S_M0B}, v{tmp}")
        elif w == "v":
            p.I(f"v_lshl_add_u32 v{tmp}, v{rr}, 8, v{sw}")
            p.I(f"v_lshl_add_u32 v{tmp}, v{hf}, 7, v{tmp}")
            p.I(f"v_add_u32 v{R+LV}, s{S_M0B}, v{tmp}")
        elif w == "o":
            p.I(f"v_lshl_add_u32 v{tmp}, v{rr}, 10, v{sw}")
            p.I(f"v_lshl_add_u32 v{tmp}, v{hf}, 7, v{tmp}")
            p.I(f"s_lshl_b32 s{S_T0}, s{S_G}, 14")
            p.I(f"v_add_u32 v{tmp}, s{S_T0}, v{tmp}")
            for j in range(4):
                p.I(f"v_add_u32 v{R+LWO+j}, {4*j*1024 - j*1024}, v{tmp}")
            p.I(f"v_lshlrev_b32 v{R+LOV}, 4, v0")
            p.I(f"v_and_b32 v{tmp}, 3, v0")
            p.I(f"v_lshlrev_b32 v{R+LPA}, 2, v{tmp}")


class E:
    def __init__(self, kind, idx, need, slot=None, rel=None, gate=None):
        self.kind, self.idx, self.need, self.slot, self.rel, self.gate = kind, idx, need, slot, rel, gate
        self.free = -1
        self.at = None
        self.who = None


class Sched:
    def __init__(self, cfg):
        npre, mid, at = cfg.get("npre", 0), cfg.get("mid", 0), cfg.get("at", 16)
        self.at = at if mid else 99
        self.steps = []
        ents = []
        st = self.steps

        def ostep(o, n):
            for i in range(n):
                s = len(st)
                g = ({0: 1, 10: 5, 12: 6, 14: 7} if FINE else {0: 1, 8: 3}).get(o + i)
                if o + i not in PRE:
                    ents.append(E("wo", o + i, s, None, s + 1))
                ents.append(E("o", o + i, s, None, s + 1, gate=g))
                st.append(("O", i))
        for c in range(8):
            s = len(st)
            ents.extend([E("x", c, s, QSL[0][c], s + 1), E("w", c, s, QSL[1][c], s + 1), E("wb", c, s + 1, QSL[2][c], s + 2)])
            st += [("QA", 2 * c), ("QA", 2 * c + 1)]
        self.ka0 = len(st)
        kvs = []
        for g in range(32):
            if mid and g == 16 + at:
                self.seg = len(st)
                ostep(0, mid)
                self.seg_end = len(st)
            s = len(st)
            e = E("k" if g % 2 == 0 else "v", g // 2, s, slot_kv(g), None)
            kvs.append(e)
            ents.append(e)
            st.append(("K", g))
        for g, e in enumerate(kvs):
            e.rel = kvs[g + 2].need if g + 2 < 32 else len(st)
            if mid and g == 16 + at - 2:
                e.rel = self.seg
        for i, u in enumerate(PRE):
            n = kvs[PRE0 + PRED * i].need
            ents.append(E("wp", u, n, None, n + 1))
        self.seg1 = kvs[16].need
        self.tail0 = len(st)
        ostep(mid, 16 - mid)
        self.n = len(st)
        ents.sort(key=lambda e: e.need)
        held = [kvs[g] for g in range(16 + at, min(32, 16 + at + HOLD))] if mid else []
        sf = {x: -1 for x in range(10)}
        fixed = [e for e in ents if e.slot is not None]
        for e in ents:
            if e.slot is None:
                def cost(x):
                    if any(h.slot == x and h.need > e.need for h in held):
                        return (2000, 0)
                    nxt = min((f.need for f in fixed if f.slot == x and f.need >= e.need), default=10 ** 6)
                    if sf[x] > e.need - 1:
                        return (1000, 0)
                    return (max(0, (e.rel + 2) - nxt), sf[x])
                e.slot = min(range(10), key=cost)
            e.free = sf[e.slot]
            assert e.free <= e.need - 1, (e.kind, e.idx, e.need, e.free)
            sf[e.slot] = e.rel
        self.ents = ents
        order = list(ents)
        for e in kvs[:npre]:
            order.remove(e)
        order = kvs[:npre] + order
        for e, q in zip(kvs, KPOS):
            order.remove(e)
            order.insert(q, e)
            held.append(e)
        for i, g in enumerate(RES):
            e = kvs[g]
            e.reg = 64 + 16 * i
            e.wat = max(e.free, e.need - 2)
            assert e.wat <= e.need - 1
            e.free = -1
            order.remove(e)
            order.insert(RP0 + RPD * i, e)
            held.append(e)
            e.lneed, e.need = e.need, 10 ** 6
        held0 = list(held)
        held = [h for h in held if self.seg1 < h.need < 10 ** 6]
        self.held = held0
        if held:
            for e in held:
                order.remove(e)
            pos = order.index([e for e in order if e.kind == "wo"][0])
            order[pos:pos] = held
        self.order = order
        for e in order:
            if e.gate == 1:
                e.free = max(e.free, self.seg1 + PUBJ + 1)
            if e.gate == 3:
                e.free = max(e.free, self.tail0)
            if FINE and e.kind == "o" and e.idx >= 8:
                e.free = max(e.free, self.tail0 + 1)
        self._plan()

    def consumer(self, s):
        return "A" if self.steps[s][0] in ("QA", "K", "V") else "G"

    def loader(self, s):
        if s < 0:
            return "G"
        return "G" if self.consumer(s) == "A" else "A"

    def _plan(self):
        order = list(self.order)
        self.pre_tail = []
        for e in list(order):
            if e.kind == "o" and e.idx >= 8 and e.need <= self.tail0 + 1 and any(f.gate == 3 and f.need == self.tail0 for f in self.order):
                order.remove(e)
                e.at, e.who = self.tail0 - 0.5, "A"
                self.pre_tail.append(e)
        if self.pre_tail:
            for e in order:
                if e.kind == "o" and e.idx >= 8:
                    e.free = max(e.free, self.tail0)
        issued = []
        landed = set()
        for s in range(-1, self.n):
            for e in issued:
                if e.need <= s:
                    for f in issued[:issued.index(e) + 1]:
                        landed.add(f)
            nstep = 0
            while order:
                infl = sum(1 for e in issued if e not in landed)
                cand = None
                for i, e in enumerate(order[:12]):
                    if i > 0 and not e.kind in ("o", "wo"):
                        break
                    if e.kind == "o" and any(f.kind == "o" for f in order[:i]):
                        continue
                    if e.free <= s and not (e.gate and e.need > s + GLEAD):
                        cand = e
                        break
                    if e.kind != "o":
                        break
                if cand is None:
                    break
                must = any(f.need <= s + 1 for f in order)
                infl -= sum(1 for e in issued if e in self.held and e not in landed and s - e.at >= 2)
                if (infl >= (DTH if cand.kind in ("k", "v") and s >= self.ka0 else DT) or (nstep >= PER and s >= 0)) and not must:
                    break
                who = self.loader(s)
                if who == "A" and cand.kind in ("k", "v"):
                    break
                nstep += 1
                cand.at, cand.who = s, who
                issued.append(cand)
                order.remove(cand)
            for e in order:
                assert e.need > s + 1 or s == self.n - 1, ("not issued in time", e.kind, e.idx, e.need, s, e.free)
        assert not order
        self.issued = issued + self.pre_tail


class Loader:
    def __init__(self, p, R, tag):
        self.p, self.R, self.tag = p, R, tag
        self.cnt = 0
        self.mark = {}
        self.dchecked = False

    def I(self, t):
        if t.startswith("buffer_"):
            self.cnt += 1
        self.p.I(t)

    def kappa(self, o):
        p = self.p
        if o >= 8 and FINE:
            p.I(f"s_lshl_b32 s{S_T1}, s{S_P}, 1")
            p.I(f"s_add_u32 s{S_T1}, s{S_T1}, {o}")
        else:
            p.I(f"s_add_u32 s{S_T1}, s{S_BL}, {o}")
        p.I(f"s_and_b32 s{S_T1}, s{S_T1}, 7")
        if o >= 8:
            p.I(f"s_add_u32 s{S_T1}, s{S_T1}, 8")

    def spin(self, kind, ev):
        p, R = self.p, self.R
        name = f"{self.tag}{kind}{ev}"
        p.flush_hazards()
        p.I(f"s_mov_b32 s{S_SPIN}, {SPIN}")
        if kind == "d":
            p.I(f"s_lshl_b32 s{S_T0}, s{S_B}, 4")
            p.I(f"v_mov_b32 v{R+LT}, 0")
        else:
            p.I(f"s_add_u32 s{S_T0}, s{S_FLAG}, {ev*512}")
        p.label(f"L_sp_{name}")
        if kind == "d":
            self.I(f"buffer_load_dword v{R+LPOLL}, v{R+LT}, {sr(SRD_DBG,4)}, s{S_T0} offen sc1")
            p.wait(vm=0)
            p.I(f"v_cmp_gt_u32 vcc, 16, v{R+LPOLL}")
        else:
            self.I(f"buffer_load_dword v{R+LPOLL}, v{R+LPA}, {sr(SRD_WS,4)}, s{S_T0} offen sc1")
            p.wait(vm=0)
            p.I(f"v_cmp_ne_u32 vcc, 1, v{R+LPOLL}")
        p.I(f"s_cbranch_vccz L_ok_{name}")
        p.I(f"s_sub_u32 s{S_SPIN}, s{S_SPIN}, 1")
        p.I(f"s_cmp_lg_u32 s{S_SPIN}, 0")
        p.I(f"s_cbranch_scc1 L_sp_{name}")
        p.label(f"L_ok_{name}")

    def issue_at(self, sc, who, s):
        for e in sc.issued:
            if e.who == who and e.at == s:
                self.issue(e)
        for e in sc.issued:
            if e.gate and e.who == who and e.at == s + 1 and sc.loader(s) == who and s > sc.seg1:
                self.p.I(f"s_add_u32 s{S_T0}, s{S_FLAG}, {min(e.gate, 3)*512}")
                self.I(f"buffer_load_dword v{self.R+LPOLL}, v{self.R+LPA}, {sr(SRD_WS,4)}, s{S_T0} offen sc1")
                self.prepolled = e.gate

    def issue(self, e):
        p, R = self.p, self.R
        if e.gate and e.gate > 4:
            name = f"{self.tag}f{e.gate}"
            pl = lambda: self.I(f"buffer_load_dword v{R+LPOLL}, v{R+LPA}, {sr(SRD_WS,4)}, s{S_FLAG} offen offset:1536 sc1")
            p.I(f"s_add_u32 s{S_T0}, s{S_P}, {e.gate - 4}")
            p.I(f"s_and_b32 s{S_T0}, s{S_T0}, 3")
            if getattr(self, "prepolled", 0) != e.gate:
                pl()
            p.I(f"v_cmp_eq_u32 vcc, 1, v{R+LPOLL}")
            p.I(f"s_bitcmp1_b32 vcc_lo, s{S_T0}")
            p.I(f"s_cbranch_scc1 L_ok_{name}")
            keep = (p.t, list(p.vm), self.cnt)
            p.I(f"s_mov_b32 s{S_SPIN}, {SPIN}")
            p.label(f"L_sp_{name}")
            pl()
            p.wait(vm=0)
            p.I(f"v_cmp_eq_u32 vcc, 1, v{R+LPOLL}")
            p.I(f"s_bitcmp1_b32 vcc_lo, s{S_T0}")
            p.I(f"s_cbranch_scc1 L_ok_{name}")
            p.I("s_sleep 1")
            p.I(f"s_sub_u32 s{S_SPIN}, s{S_SPIN}, 1")
            p.I(f"s_cmp_lg_u32 s{S_SPIN}, 0")
            p.I(f"s_cbranch_scc1 L_sp_{name}")
            p.label(f"L_ok_{name}")
            p.t, p.vm, self.cnt = keep
        elif e.gate:
            if getattr(self, "prepolled", 0) == e.gate:
                p.I(f"v_cmp_ne_u32 vcc, 1, v{R+LPOLL}")
                p.I(f"s_cbranch_vccz L_ok_{self.tag}f{e.gate}")
                keep = (p.t, list(p.vm), self.cnt)
                self.spin("f", e.gate)
                p.t, p.vm, self.cnt = keep
            else:
                self.spin("f", e.gate)
        k = e.kind
        fl = AUXFLAGS
        if k in ("x", "w", "wb"):
            p.I(f"s_add_u32 s{S_T1}, s{S_C0}, {e.idx}")
            p.I(f"s_and_b32 s{S_T1}, s{S_T1}, 7")
            if k == "x":
                p.I(f"s_lshl_b32 s{S_DS}, s{S_T1}, 7")
                p.I(f"s_add_u32 s{S_DS}, s{S_DS}, s{S_XBASE}")
                vo, srd = [R + LX + j for j in range(4)], SRD_X
            else:
                p.I(f"s_lshl_b32 s{S_DS}, s{S_T1}, 19")
                p.I(f"s_add_u32 s{S_DS}, s{S_DS}, s{S_WQBASE}")
                if k == "wb":
                    p.I(f"s_add_u32 s{S_DS}, s{S_DS}, 1024")
                vo, srd = [R + LW + j for j in range(4)], SRD_WQ
        elif k in ("k", "v"):
            hd, t = e.idx // 8, e.idx % 8
            if KROT:
                p.I(f"s_add_u32 s{S_T1}, s{S_KR}, {t}")
                p.I(f"s_and_b32 s{S_T1}, s{S_T1}, 7")
                p.I(f"s_lshl_b32 s{S_T1}, s{S_T1}, 14")
                p.I(f"s_add_u32 s{S_DS}, s{S_KVBASE}, s{S_T1}")
                if hd:
                    p.I(f"s_add_u32 s{S_DS}, s{S_DS}, {4 * 131072}")
            else:
                off = hd * 4 * 131072 + t * 16384
                p.I(f"s_add_u32 s{S_DS}, s{S_KVBASE}, {off}")
            vo, srd = ([R + LK + j for j in range(4)], SRD_K) if k == "k" else ([R + LV] * 4, SRD_V)
            fl = KVFLAGS
        elif k in ("wo", "wp"):
            self.kappa(e.idx)
            p.I(f"s_lshl_b32 s{S_DS}, s{S_T1}, 16")
            p.I(f"s_add_u32 s{S_DS}, s{S_DS}, s{S_WOB}")
            vo, srd = [R + LWO + j for j in range(4)], SRD_WO
        else:
            self.kappa(e.idx)
            p.I(f"s_lshl_b32 s{S_DS}, s{S_T1}, 14")
            p.I(f"s_add_u32 s{S_DS}, s{S_DS}, s{S_OINB}")
            vo, srd, fl = [R + LOV] * 4, SRD_WS, OFLAGS
        if hasattr(e, "reg"):
            for j in range(4):
                self.I(f"buffer_load_dwordx4 {vr(e.reg + 4*j, 4)}, v{vo[j]}, {sr(srd,4)}, s{S_DS} offen offset:{j*1024} {fl}")
            self.mark[e] = self.cnt
            return
        p.I(f"s_add_u32 m0, s{S_M0B}, {e.slot * 16384}")
        for j in range(4):
            self.I(f"buffer_load_dwordx4 v{vo[j]}, {sr(srd,4)}, s{S_DS} offen offset:{j*1024} {fl} lds")
        self.mark[e] = self.cnt

    def wait_for(self, s, **kw):
        need = [m for e, m in self.mark.items() if e.need == s]
        if need:
            self.p.wait(vm=self.cnt - max(need), **kw)
        elif kw:
            self.p.wait(**kw)


V_T, V_AK, V_AV, V_M, V_L, V_ST, V_MX = 1, 2, 6, 8, 9, 14, 15
V_AW, V_AX = 11, 250
V_FR = 16
V_S = [40, 56]
V_Q = 72
V_O = 104
V_QB = 168
V_FR2 = 200
A_R = 216


def lane_setup_A(p):
    t0, t1, t2, t3 = 16, 17, 18, 19
    p.I(f"v_lshrrev_b32 v{t0}, 5, v0")
    p.I(f"v_and_b32 v{t1}, 31, v0")
    p.I(f"v_bfe_u32 v{t2}, v0, 1, 3")
    p.I(f"v_xor_b32 v{t2}, v{t2}, v{t0}")
    p.I(f"v_lshlrev_b32 v{t2}, 4, v{t2}")
    p.I(f"v_lshrrev_b32 v{t3}, 2, v{t1}")
    p.I(f"v_lshlrev_b32 v{t3}, 10, v{t3}")
    p.I(f"v_and_b32 v20, 3, v{t1}")
    p.I(f"v_lshl_add_u32 v{t3}, v20, 7, v{t3}")
    p.I(f"v_add_u32 v{V_AK}, v{t3}, v{t2}")
    for i in range(1, 4):
        p.I(f"v_xor_b32 v{V_AK+i}, {i*32}, v{V_AK}")
    p.I(f"v_lshlrev_b32 v{t3}, 7, v{t1}")
    p.I(f"v_add3_u32 v{V_AX}, v{t3}, v{t2}, s{S_M0B}")
    for i in range(1, 4):
        p.I(f"v_xor_b32 v{V_AX+i}, {i*32}, v{V_AX}")
    tr_lane_base(p, t2, t1, t3)
    p.I(f"v_and_b32 v{t3}, 3, v0")
    p.I(f"v_lshl_add_u32 v20, v{t3}, 3, v{t2}")
    p.I(f"v_lshl_add_u32 v{V_AV}, v{t0}, 10, v20")
    p.I(f"v_xor_b32 v{V_AV+1}, 64, v{V_AV}")
    add_pi(p, 20, t2, t3)
    p.I(f"v_lshl_add_u32 v{V_AW}, v{t0}, 11, v20")
    p.I(f"v_xor_b32 v{V_AW+1}, 64, v{V_AW}")
    p.I(f"v_lshlrev_b32 v{V_ST}, 4, v0")
    p.I(f"v_add_u32 v{V_ST}, s{S_M0B}, v{V_ST}")


def flag_store(p, sreg, I=None):
    I = I or p.I
    p.I(f"v_mov_b32 v{V_T}, 1")
    p.I(f"v_mov_b32 v{V_MX}, 0")
    p.I(f"s_mov_b64 {sr(S_EX,2)}, exec")
    p.I("s_mov_b64 exec, 1")
    I(f"buffer_store_dword v{V_T}, v{V_MX}, {sr(SRD_WS,4)}, s{sreg} offen sc1")
    p.I(f"s_mov_b64 exec, {sr(S_EX,2)}")


def gemm_phase(p, nunits, open_unit, frag_item, mfma, ring_base, nfr, extra=None, cls=None):
    items = [frag_item(c, s, mb) for c in range(nunits) for s in range(4) for mb in range(4)]
    ring = (cls or FragRing)(p, items, ring_base, nfr)
    open_unit(0)
    opened = 1
    for _ in range(5):
        ring.issue_next()
    AH = nfr - 1
    idle = 0
    n = 16 * nunits
    for fi in range(n):
        c, s, mb = fi // 16, (fi // 4) % 4, fi % 4
        mfma(c, s, mb, ring.reg(fi))
        for _ in range(2):
            if ring.issued < min(opened * 16, fi + 1 + AH, n):
                ring.issue_next()
        if extra:
            extra(fi)
        if ring.issued == opened * 16 and opened < nunits:
            idle += 1
            if idle >= 3:
                open_unit(opened)
                opened += 1
                idle = 0


def gen_A(p, scheds):
    stamp(p, 0)
    lane_setup_A(p)
    scalars2(p)
    if PRIO_A:
        p.I(f"s_setprio {PRIO_A}")
    p.I(f"s_mov_b32 s{S_HEADCNT}, 0")
    p.I(f"s_mov_b32 s{S_SEG}, 99")
    p.I(f"s_mov_b32 s{SRD_X}, s{SRD_WS}")
    p.I(f"s_mov_b32 s{SRD_X+1}, s{SRD_WS+1}")
    p.I(f"s_mov_b32 s{SRD_X+2}, 0")
    ak, aw, av, ax = AddrSet(p, [V_AK + i for i in range(4)]), AddrSet(p, [V_AW, V_AW + 1]), AddrSet(p, [V_AV, V_AV + 1]), AddrSet(p, [V_AX + i for i in range(4)])

    def open_u(u):
        c, h = u // 2, u % 2
        p.wait(lgkm=0)
        p.I("s_barrier")
        if u == 0:
            stamp(p, 1)
        if h == 0:
            off = ax.to(QSL[0][c])
            for ss in range(4):
                p.I(f"ds_read_b128 {vr(V_S[c % 2] + 4 * ss, 4)}, v{V_AX + ss} offset:{off}")

    def mk_w(u, s, mb):
        def f(reg):
            off = aw.to(QSL[1 + u % 2][u // 2]) + s * 4096 + (mb // 2) * 512
            p.I(f"ds_read_b64_tr_b16 {vr(reg, 2)}, v{V_AW + mb % 2} offset:{off}")
            p.I(f"ds_read_b64_tr_b16 {vr(reg + 2, 2)}, v{V_AW + mb % 2} offset:{off + 1024}")
        return f

    def q_mfma(u, s, mb, reg):
        acc = vr((V_O, V_QB)[u % 2] + 16 * mb, 16)
        p.I(f"v_mfma_f32_32x32x16_bf16 {acc}, {vr(reg, 4)}, {vr(V_S[(u // 2) % 2] + 4 * s, 4)}, {'0' if (u < 2 and s == 0) else acc}")

    def pack_ops(src, dst):
        ops = []
        for mb in range(4):
            for i in range(16):
                ops.append(f"v_mul_f32 v{src+16*mb+i}, s{S_SCALE}, v{src+16*mb+i}")
            for i in range(8):
                ops.append(f"v_cvt_pk_bf16_f32 v{dst+8*mb+i}, v{src+16*mb+2*i}, v{src+16*mb+2*i+1}")
        return ops

    qring = [V_FR + 4 * i for i in range(6)] + [232 + 4 * i for i in range(4)]

    class RR(FragRing):
        def reg(self, i):
            return qring[i % len(qring)]
    pk = pack_ops(V_O, V_Q)

    def qextra(fi):
        if fi >= 243:
            for _ in range(8):
                if pk:
                    p.I(pk.pop(0))
    gemm_phase(p, 16, open_u, mk_w, q_mfma, V_FR, len(qring), extra=qextra, cls=RR)
    while pk:
        p.I(pk.pop(0))

    segs = sorted(set(sc.at for sc in scheds if sc.at < 16))

    def open_tile(T):
        if T in segs:
            p.I(f"s_cmp_eq_u32 s{S_SEG}, {T}")
            p.I(f"s_cbranch_scc1 L_A_seg{T}")
            p.label(f"L_A_segb{T}")
        if T == 16:
            p.I(f"s_cmp_eq_u32 s{S_HEADCNT}, 1")
            p.I("s_cbranch_scc1 L_A_nobar")
            p.I("s_barrier")
            p.label("L_A_nobar")
        else:
            p.I("s_barrier")

    def mk_k(j, ks):
        def f(reg):
            if j % 2 == 0 and ks == 0:
                open_tile(j)
            off = ak.to(slot_kv(j - j % 2)) + (j % 2) * 8192 + (ks // 4) * 512
            p.I(f"ds_read_b128 {vr(reg, 4)}, v{V_AK + ks % 4} offset:{off}")
        f.n = 1
        return f

    def mk_v(j, h, mb):
        def f(reg):
            if j % 2 == 0 and h == 0 and mb == 0:
                open_tile(j + 1)
            off = av.to(slot_kv(j - j % 2 + 1)) + ((j % 2) * 2 + h) * 4096 + (mb // 2) * 512
            p.I(f"ds_read_b64_tr_b16 {vr(reg, 2)}, v{V_AV + mb % 2} offset:{off}")
            p.I(f"ds_read_b64_tr_b16 {vr(reg + 2, 2)}, v{V_AV + mb % 2} offset:{off + 2048}")
        f.n = 2
        return f

    seq = []
    for j in range(1, 16):
        seq += [("k", j, ks) for ks in range(8)]
        seq += [("v", j - 1, x) for x in range(8)]
    seq += [("v", 15, x) for x in range(8)]
    seq += [("k", 16, ks) for ks in range(8)]
    item = lambda e: mk_k(e[1], e[2]) if e[0] == "k" else mk_v(e[1], e[2] // 4, e[2] % 4)
    g6 = [V_FR + 4 * i for i in range(6)]
    r0 = Pref(p, [mk_k(0, ks) for ks in range(8)] + [item(e) for e in seq[:6]], g6, lambda i: 1)
    r0.fill(-1, maxn=6, cap=99)
    stamp(p, 2)
    pk = pack_ops(V_QB, V_QB)
    for ks in range(8):
        S = vr(V_S[0], 16)
        p.I(f"v_mfma_f32_32x32x16_bf16 {S}, {vr(r0.reg(ks), 4)}, {vr(V_Q + 4 * ks, 4)}, {S if ks else '0'}")
        r0.fill(ks, maxn=1, cap=99)
        for _ in range(12):
            p.I(pk.pop(0))
    entry_regs = r0.regs[8:14]
    av.to(slot_kv(15))
    ent = (ak.hi, av.hi)
    p.wait(lgkm=0)
    p.flush_hazards()
    p.label("L_A_head")
    p.reset_state()
    p.I(f"v_mov_b32 v{V_L}, 0")
    p.I(f"v_mov_b32 v{V_L+1}, 0")
    p.I(f"v_mov_b32 v{V_M}, 0")
    p.I(f"s_mov_b32 s{S_THR}, {THR}")
    p.I(f"s_mov_b32 s{S_FIRST}, 1")
    items = [item(e) for e in seq] + [item(e) for e in seq[:6]]
    ring = Pref(p, items, g6 + [V_FR2 + 4 * i for i in range(2)], lambda i: items[i].n)
    ring.regs = list(entry_regs)
    ring.issued = 6
    for i, g in enumerate(entry_regs):
        ring.busy[g] = i
        ring.force[len(seq) + i] = g

    def max_ops(i):
        S = V_S[i % 2]
        a = (lambda r: f"|v{r}|") if i == 0 else (lambda r: f"v{r}")
        return [f"v_max3_f32 v{V_MX}, {a(S)}, {a(S+1)}, {a(S+2)}",
                f"v_max3_f32 v{V_T}, {a(S+3)}, {a(S+4)}, {a(S+5)}",
                f"v_max3_f32 v{V_MX}, v{V_MX}, {a(S+6)}, {a(S+7)}",
                f"v_max3_f32 v{V_T}, v{V_T}, {a(S+8)}, {a(S+9)}",
                f"v_max3_f32 v{V_MX}, v{V_MX}, {a(S+10)}, {a(S+11)}",
                f"v_max3_f32 v{V_T}, v{V_T}, {a(S+12)}, {a(S+13)}",
                f"v_max3_f32 v{V_MX}, v{V_MX}, {a(S+14)}, {a(S+15)}",
                f"v_max_f32 v{V_MX}, v{V_MX}, v{V_T}",
                f"v_cmp_nge_f32 vcc, s{S_THR}, v{V_MX}"]

    def exp_ops(i):
        S = V_S[i % 2]
        ops = []
        for k in range(9):
            if k < 8:
                ops.append(f"v_exp_f32 v{S+2*k}, v{S+2*k}")
            if k >= 1:
                a = S + 2 * k - 2
                ops.append(f"v_add_f32 v{V_L}, v{V_L}, v{a}")
            if k < 8:
                ops.append(f"v_exp_f32 v{S+2*k+1}, v{S+2*k+1}")
            if k >= 1:
                ops.append(f"v_add_f32 v{V_L+1}, v{V_L+1}, v{a+1}")
                ops.append(f"v_cvt_pk_bf16_f32 v{S+k-1}, v{a}, v{a+1}")
        return ops

    cost = lambda o: 2 if o.startswith("v_exp") else 1
    stubs, q = [], []
    start_at, end_at = {0: -1}, {}
    for m, e in enumerate(seq):
        if e[0] == "k" and e[2] == 7 and e[1] < 16:
            start_at[e[1]] = m + 2
        if e[0] == "v" and e[2] == 0:
            end_at[e[1]] = m
    epi, cur, nseq = None, 0, len(seq)
    brk = [False]

    def run_valu(budget):
        while q and budget > 0:
            o = q[0]
            if o.startswith("BR"):
                if brk[0] and budget < 10 ** 5:
                    brk[0] = False
                    return
                q.pop(0)
                i = int(o[3:])
                p.I(f"s_cbranch_vccnz L_A_stub{i}")
                p.label(f"L_A_back{i}")
                if i == 0:
                    p.I(f"s_mov_b32 s{S_FIRST}, 0")
                stubs.append(i)
            else:
                q.pop(0)
                budget -= cost(o)
                p.I(o)
                if o.startswith("v_cmp"):
                    brk[0] = budget > 0

    q += max_ops(0) + ["BR 0"] + exp_ops(0)
    run_valu(12)
    for m, e in enumerate(seq):
        kind, j, x = e
        if m == nseq - 8:
            p.I(f"s_cmp_eq_u32 s{S_HEADCNT}, 1")
            p.I("s_cbranch_scc1 L_A_tail")
            epi = epi_ops()
            if SPREAD:
                epi = []
                for f in range(8):
                    a = V_O + 8 * f
                    for i in range(8):
                        epi.append(f"v_mul_f32 v{a+i}, v{V_M}, v{a+i}")
                    for i in range(4):
                        epi.append(f"v_cvt_pk_bf16_f32 v{V_QB+4*f+i}, v{a+2*i}, v{a+2*i+1}")
            if os.environ.get("NOST"):
                epi = [o for o in epi if not o.startswith("buffer_store")]
        if kind == "v" and x == 0 and cur == j:
            run_valu(10 ** 6)
        if m % 2 == 0:
            p.touch([ring.reg(m + 1) + k for k in range(4)])
        if kind == "k":
            S = vr(V_S[j % 2], 16)
            p.I(f"v_mfma_f32_32x32x16_bf16 {S}, {vr(ring.reg(m), 4)}, {vr(V_Q + 4 * x, 4)}, {S if x else '0'}")
        else:
            h, mb = x // 4, x % 4
            acc = vr(V_O + 16 * mb, 16)
            p.I(f"v_mfma_f32_32x32x16_bf16 {acc}, {vr(ring.reg(m), 4)}, {vr(V_S[j % 2] + 4 * h, 4)}, {'0' if (j == 0 and h == 0) else acc}")
        if q and q[0].startswith("BR"):
            run_valu(1)
        ring.fill(m, maxn=2)
        for i, s0 in start_at.items():
            if s0 == m:
                assert not q
                q += max_ops(i) + [f"BR {i}"] + exp_ops(i)
                cur = i
        if q:
            slots = max(1, end_at[cur] - m)
            tot = sum(cost(o) for o in q if not o.startswith("BR"))
            run_valu(-(-tot // slots))
        if SPREAD and kind == "k" and SP0 <= j < SP0 + 8 and x == 3:
            f = j - SP0
            if f % 4 == 0:
                p.I(f"s_sub_u32 s{S_T2}, s{S_OBASE}, {4*32768 - (f // 4) * 16384}")
            p.I(f"buffer_store_dwordx4 {vr(V_QB + 4*f, 4)}, v{V_ST}, {sr(SRD_X,4)}, s{S_T2} offen offset:{(f % 4)*1024} {STFLAGS}")
        if kind == "k" and j == PUBJ and x == 1:
            p.I(f"s_cmp_eq_u32 s{S_HEADCNT}, 0")
            p.I("s_cbranch_scc1 L_A_nopub")
            t_keep = p.t
            p.raw("  s_waitcnt vmcnt(0)")
            p.I(f"s_add_u32 s{S_T0}, s{S_PUB}, 512")
            flag_store(p, S_T0)
            p.label("L_A_nopub")
            p.t = t_keep
        if kind == "v" and j == 15 and x == 1:
            p.I(f"v_add_f32 v{V_L}, v{V_L}, v{V_L+1}")
            p.I(f"v_mov_b32 v{V_T}, v{V_L}")
            p.I(f"v_permlane32_swap_b32 v{V_T}, v{V_L}")
            p.I(f"v_add_f32 v{V_L}, v{V_L}, v{V_T}")
            p.I(f"v_rcp_f32 v{V_M}, v{V_L}")
        if kind == "v" and j == 15 and x >= 2:
            for k in range(6):
                r = (x - 2) * 6 + k
                if r < 32:
                    p.I(f"v_mov_b32 v{V_Q+r}, v{V_QB+r}")
        if epi is not None and m >= nseq - 7:
            for _ in range(16):
                if epi:
                    p.I(epi.pop(0))
        if m in (119, 247):
            stamp(p, 3 if m == 119 else 4)
    ring.fill(nseq - 1, maxn=6, cap=99)
    while epi:
        p.I(epi.pop(0))
    assert ring.regs[nseq:nseq + 6] == entry_regs
    assert (ak.hi, av.hi) == ent, ((ak.hi, av.hi), ent)
    p.I(f"s_add_u32 s{S_OBASE}, s{S_OBASE}, {4*32768}")
    p.I(f"s_mov_b32 s{S_HEADCNT}, 1")
    p.I(f"s_mov_b32 s{SRD_X+2}, s{SRD_WS+2}")
    p.I(f"s_mov_b32 s{S_SEG}, {scheds[0].at}")
    for c in range(1, NCLS):
        p.I(f"s_cmp_eq_u32 s{S_CLS}, {c}")
        p.I(f"s_cselect_b32 s{S_SEG}, {scheds[c].at}, s{S_SEG}")
    loader_setup(p, A_R, "o")
    p.wait(lgkm=0)
    if STAMP in (1, 2):
        for i in range(4):
            p.I(f"s_mov_b32 s{S_STAMP+10+i}, s{S_STAMP+6+i}")
    p.flush_hazards()
    p.I("s_branch L_A_head")
    for c, sc in enumerate(scheds):
        if sc.at < 16:
            assert sum(1 for x in scheds if x.at == sc.at) == 1
            p.label(f"L_A_seg{sc.at}")
            p.reset_state()
            p.I(f"s_mov_b64 {sr(S_SRET,2)}, vcc")
            ld = Loader(p, A_R, f"a1c{c}")
            for s in range(sc.seg, sc.seg_end):
                ld.wait_for(s)
                p.I("s_barrier")
                ld.issue_at(sc, "A", s)
            p.I(f"s_mov_b64 vcc, {sr(S_SRET,2)}")
            p.flush_hazards()
            p.I(f"s_branch L_A_segb{sc.at}")
    p.label("L_A_tail")
    p.reset_state()
    p.nop(12)
    for o in epi_ops():
        p.I(o)
    for c in range(1, NCLS):
        p.I(f"s_cmp_eq_u32 s{S_CLS}, {c}")
        p.I(f"s_cbranch_scc1 L_A_s2c{c}")
    for c, sc in enumerate(scheds):
        if c:
            p.label(f"L_A_s2c{c}")
        p.reset_state()
        p.nop(2)
        ld = Loader(p, A_R, f"a2c{c}")

        def pub():
            p.wait(vm=ld.cnt)
            p.I(f"s_add_u32 s{S_T0}, s{S_PUB}, {3*512}")
            flag_store(p, S_T0, ld.I)
            stamp(p, 7)
        early = any(e.gate == 3 and e.at <= sc.tail0 + 1 for e in sc.issued)
        if early:
            pub()
        if sc.pre_tail:
            for e in sc.pre_tail:
                ld.issue(e)
        for s in range(sc.tail0, sc.n):
            ld.wait_for(s)
            p.I("s_barrier")
            ld.issue_at(sc, "A", s)
            if s == sc.tail0 and not early:
                pub()
        if STAMP in (1, 2):
            p.I(f"s_cmp_lg_u32 s{S_WAVE}, 0")
            p.I("s_cbranch_scc1 L_exit")
            stamp_store(p, 8, 1)
        p.I("s_endpgm")

    for i in stubs:
        p.label(f"L_A_stub{i}")
        p.raw(f"  s_call_b64 {sr(S_RET,2)}, L_A_fix{i % 2}")
        p.raw(f"  s_branch L_A_back{i}")
    for par in range(2):
        S, Pp = V_S[par], V_S[1 - par]
        p.label(f"L_A_fix{par}")
        p.reset_state()
        p.nop(16)
        p.I(f"s_mov_b32 s{S_THR}, 0xff800000")
        for k in range(16):
            p.I(f"v_sub_f32 v{S+k}, v{S+k}, v{V_M}")
        p.I(f"v_max3_f32 v{V_MX}, v{S}, v{S+1}, v{S+2}")
        for k in range(3, 15, 2):
            p.I(f"v_max3_f32 v{V_MX}, v{V_MX}, v{S+k}, v{S+k+1}")
        p.I(f"v_max_f32 v{V_MX}, v{V_MX}, v{S+15}")
        p.I(f"v_mov_b32 v{V_T}, v{V_MX}")
        p.I(f"v_permlane32_swap_b32 v{V_T}, v{V_MX}")
        p.I(f"v_max_f32 v{V_MX}, v{V_MX}, v{V_T}")
        p.I(f"v_ceil_f32 v{V_MX}, v{V_MX}")
        p.I(f"s_cmp_eq_u32 s{S_FIRST}, 1")
        p.I(f"s_cbranch_scc1 L_A_fixa{par}")
        p.I(f"v_max_f32 v{V_MX}, 0, v{V_MX}")
        p.label(f"L_A_fixa{par}")
        p.nop(2)
        for k in range(16):
            p.I(f"v_sub_f32 v{S+k}, v{S+k}, v{V_MX}")
        p.I(f"v_add_f32 v{V_M}, v{V_M}, v{V_MX}")
        p.I(f"s_cbranch_scc1 L_A_fixd{par}")
        p.I(f"v_exp_f32 v{V_MX}, -v{V_MX}")
        for k in range(2):
            p.I(f"v_mul_f32 v{V_L+k}, v{V_L+k}, v{V_MX}")
        for k in range(64):
            p.I(f"v_mul_f32 v{V_O+k}, v{V_O+k}, v{V_MX}")
        for k in range(8):
            r = Pp + k
            p.I(f"v_lshlrev_b32 v{V_T}, 16, v{r}")
            p.I(f"v_and_b32 v{r}, 0xffff0000, v{r}")
            p.I(f"v_mul_f32 v{V_T}, v{V_T}, v{V_MX}")
            p.I(f"v_mul_f32 v{r}, v{r}, v{V_MX}")
            p.I(f"v_cvt_pk_bf16_f32 v{r}, v{V_T}, v{r}")
        p.label(f"L_A_fixd{par}")
        p.nop(4)
        p.raw(f"  s_setpc_b64 {sr(S_RET,2)}")


def epi_ops():
    ops = []
    for f in range(8):
        a = V_O + 8 * f
        for i in range(8):
            ops.append(f"v_mul_f32 v{a+i}, v{V_M}, v{a+i}")
        for i in range(4):
            ops.append(f"v_cvt_pk_bf16_f32 v{a+i}, v{a+2*i}, v{a+2*i+1}")
        if f % 4 == 0:
            ops.append(f"s_add_u32 s{S_T0}, s{S_OBASE}, {(f // 4) * 16384}")
        ops.append(f"buffer_store_dwordx4 {vr(a,4)}, v{V_ST}, {sr(SRD_WS,4)}, s{S_T0} offen offset:{(f % 4)*1024} {STFLAGS}")
    return ops


G_R = 8
G_AX = 1
G_AW = 5
G_AWO = 7
G_AO = G_R + LT + 7
G_ACC = 64
G_XF = 128
G_B = 128
G_W = [128, 144]
G_FR = 40
G_FR2 = 160


def gen_G_setup2(p):
    loader_setup(p, G_R, "o")
    scalars2(p)
    tr_lane_base(p, 40, 41, 42)
    add_pi(p, 40, 40, 42)
    p.I("v_lshrrev_b32 v43, 5, v0")
    p.I(f"v_lshl_add_u32 v{G_AWO}, v43, 10, v40")
    p.I(f"s_and_b32 s{S_T0}, s{S_G}, 1")
    p.I(f"s_lshl_b32 s{S_T0}, s{S_T0}, 6")
    p.I(f"v_xor_b32 v{G_AWO}, s{S_T0}, v{G_AWO}")
    p.I(f"s_lshr_b32 s{S_T0}, s{S_G}, 1")
    p.I(f"s_lshl_b32 s{S_T0}, s{S_T0}, 9")
    p.I(f"v_add_u32 v{G_AWO}, s{S_T0}, v{G_AWO}")
    p.I(f"v_lshlrev_b32 v{G_AO}, 4, v0")
    p.I(f"v_lshl_add_u32 v{G_AW}, v43, 11, v40")
    p.I(f"v_xor_b32 v{G_AW+1}, 64, v{G_AW}")
    p.I(f"v_bfe_u32 v42, v0, 1, 3")
    p.I(f"v_xor_b32 v42, v42, v43")
    p.I(f"v_lshlrev_b32 v42, 4, v42")
    p.I(f"v_and_b32 v40, 31, v0")
    p.I(f"v_lshlrev_b32 v40, 7, v40")
    p.I(f"v_add3_u32 v{G_AX}, v40, v42, s{S_M0B}")
    for i in range(1, 4):
        p.I(f"v_xor_b32 v{G_AX+i}, {i*32}, v{G_AX}")


def gen_reset(p, tag):
    p.I(f"s_cmp_lg_u32 s{S_WAVE}, 4")
    p.I(f"s_cbranch_scc1 L_G_norst{tag}")
    p.I(f"s_lshl_b32 s{S_T0}, s{S_B}, 2")
    p.I(f"s_add_u32 s{S_T0}, s{S_T0}, s{S_HG}")
    p.I(f"s_lshl_b32 s{S_T0}, s{S_T0}, 11")
    p.I(f"s_lshl_b32 s{S_T1}, s{S_P}, 2")
    p.I(f"s_add_u32 s{S_T0}, s{S_T0}, s{S_T1}")
    p.I(f"s_add_u32 s{S_T0}, s{S_T0}, {WS_F1}")
    p.I(f"v_lshlrev_b32 v48, 7, v0")
    p.I(f"v_add_u32 v48, s{S_T0}, v48")
    p.I(f"s_lshl_b32 s{S_T0}, s{S_B}, 2")
    p.I(f"s_add_u32 s{S_T0}, s{S_T0}, s{S_P}")
    p.I(f"s_lshl_b32 s{S_T0}, s{S_T0}, 11")
    p.I(f"s_lshl_b32 s{S_T1}, s{S_HG}, 2")
    p.I(f"s_add_u32 s{S_T0}, s{S_T0}, s{S_T1}")
    p.I(f"s_add_u32 s{S_T0}, s{S_T0}, {WS_F2 - 16*128}")
    p.I(f"v_lshlrev_b32 v49, 7, v0")
    p.I(f"v_add_u32 v49, s{S_T0}, v49")
    p.I("v_cmp_gt_u32 vcc, 16, v0")
    p.I("v_cndmask_b32 v48, v49, v48, vcc")
    p.I("v_mov_b32 v49, 0")
    p.I(f"s_mov_b64 {sr(S_EX,2)}, exec")
    p.I("s_mov_b32 exec_hi, 0")
    p.raw(f"  buffer_store_dword v49, v48, {sr(SRD_WS,4)}, 0 offen sc1")
    p.I(f"s_mov_b64 exec, {sr(S_EX,2)}")
    p.label(f"L_G_norst{tag}")


def gen_reset_done(p, tag):
    p.I(f"s_cmp_lg_u32 s{S_WAVE}, 4")
    p.I(f"s_cbranch_scc1 L_G_nord{tag}")
    p.I("v_mov_b32 v49, 1")
    p.I(f"s_lshl_b32 s{S_T0}, s{S_B}, 4")
    p.I(f"v_mov_b32 v48, s{S_T0}")
    p.I(f"s_mov_b64 {sr(S_EX,2)}, exec")
    p.I("s_mov_b64 exec, 1")
    p.raw(f"  buffer_atomic_add v49, v48, {sr(SRD_DBG,4)}, 0 offen sc1")
    p.I(f"s_mov_b64 exec, {sr(S_EX,2)}")
    p.label(f"L_G_nord{tag}")


def gen_G_class(p, c, sc):
    tag = f"c{c}"
    ld = Loader(p, G_R, f"g{tag}")
    awo, ao = AddrSet(p, [G_AWO]), AddrSet(p, [G_AO])
    aw, ax = AddrSet(p, [G_AW, G_AW + 1]), AddrSet(p, [G_AX + i for i in range(4)])
    by = {(e.kind, e.idx): e for e in sc.ents}

    def issue_at(s):
        ld.issue_at(sc, "G", s)

    def handoff():
        p.I(f"s_lshl_b32 s{S_T0}, s{S_G}, 13")
        p.I(f"s_add_u32 s{S_T0}, s{S_T0}, {HSLOT*16384}")
        p.I(f"v_add_u32 v48, s{S_T0}, v{G_R+LOV}")
        for mb in range(4):
            for h in range(2):
                p.I(f"ds_write_b128 v48, {vr(G_ACC + 16*mb + 4*h, 4)} offset:{(2*mb+h)*1024}")

    wbuf = {u: 128 + 16 * i for i, u in enumerate(PRE)}
    for u in range(16):
        if u not in wbuf:
            used = {wbuf[v] for v in wbuf if v >= u - 1}
            wbuf[u] = [b for b in range(128, 256, 16) if b not in used][0]

    def read_w(e):
        off = awo.to(e.slot)
        for s4 in range(4):
            r = wbuf[e.idx] + 4 * s4
            p.I(f"ds_read_b64_tr_b16 {vr(r,2)}, v{G_AWO} offset:{off + s4*4096}")
            p.I(f"ds_read_b64_tr_b16 {vr(r+2,2)}, v{G_AWO} offset:{off + s4*4096 + 2048}")

    stamp(p, 0)
    gen_reset(p, tag)
    issue_at(-1)
    gen_G_setup2(p)
    if PRIO_G:
        p.I(f"s_setprio {PRIO_G}")
    nm = [1]

    def mark():
        if nm[0] < 10:
            stamp(p, nm[0])
            nm[0] += 1

    s = 0
    first_o = True
    while s < sc.n:
        name, idx = sc.steps[s]
        if name in ("QA", "K"):
            ld.wait_for(s, **({"lgkm": 0} if p.lgkm else {}))
            p.I("s_barrier")
            if (name == "QA" and idx == 0) or (name == "K" and idx % 8 == 0):
                mark()
            for e in sc.ents:
                if e.kind == "wp" and e.need == s:
                    read_w(e)
                if hasattr(e, "reg") and e.wat == s:
                    p.I(f"s_add_u32 s{S_T0}, s{S_M0B}, {e.slot * 16384}")
                    p.I(f"v_add_u32 v48, s{S_T0}, v{G_R+LOV}")
                    for j in range(4):
                        p.I(f"ds_write_b128 v48, {vr(e.reg + 4*j, 4)} offset:{j*1024}")
            if s == 2:
                gen_reset_done(p, tag)
            if s == sc.ka0 + 4:
                p.I(f"s_lshl_b32 s{S_T0}, s{S_B}, 4")
                p.I(f"v_mov_b32 v48, 0")
                ld.I(f"buffer_load_dword v{G_R+LDPOLL}, v48, {sr(SRD_DBG,4)}, s{S_T0} offen sc1")
            if s == sc.ka0 + 14:
                p.I(f"v_cmp_gt_u32 vcc, 16, v{G_R+LDPOLL}")
                p.I(f"s_cbranch_vccz L_dok{tag}")
                t_keep, saved, ck = p.t, list(p.vm), ld.cnt
                ld.spin("d", 0)
                p.label(f"L_dok{tag}")
                p.t, p.vm, ld.cnt = t_keep, saved, ck
            issue_at(s)
            if name == "K" and WPF >= 0 and WPF <= idx < WPF + 128 // WPN:
                if idx == WPF:
                    p.I(f"s_lshr_b32 s{S_T2}, s2, 3")
                    p.I(f"s_lshl_b32 s{S_T2}, s{S_T2}, 15")
                    p.I(f"s_lshl_b32 s{S_T0}, s{S_HG}, 20")
                    p.I(f"s_add_u32 s{S_T2}, s{S_T2}, s{S_T0}")
                    p.I(f"s_lshl_b32 s{S_T0}, s{S_G}, 13")
                    p.I(f"s_add_u32 s{S_T2}, s{S_T2}, s{S_T0}")
                for k in range(WPN):
                    p.raw(f"  s_buffer_load_dword s101, {sr(SRD_WO,4)}, s{S_T2} offset:{((idx - WPF) * WPN + k) * 64}")
            s += 1
        else:
            s0 = s
            n = 0
            while s + n < sc.n and sc.steps[s + n][0] == "O":
                n += 1
            o0 = [e.idx for e in sc.ents if e.kind == "o" and e.need == s0][0]
            fz = first_o
            first_o = False

            def open_u(u):
                ld.wait_for(s0 + u, lgkm=0)
                p.I("s_barrier")
                if u == 0 or (o0 + u) in (8, 12):
                    mark()
                if ("wo", o0 + u) in by:
                    read_w(by[("wo", o0 + u)])

            def item(u, s4, mb):
                def f(reg):
                    off = ao.to(by[("o", o0 + u)].slot) + mb * 4096 + s4 * 1024
                    p.I(f"ds_read_b128 {vr(reg,4)}, v{G_AO} offset:{off}")
                return f

            def mf(u, s4, mb, reg):
                acc = vr(G_ACC + 16 * mb, 16)
                cin = "0" if (fz and u == 0 and s4 == 0) else acc
                p.I(f"v_mfma_f32_32x32x16_bf16 {acc}, {vr(wbuf[o0 + u] + 4*s4, 4)}, {vr(reg,4)}, {cin}")
            oring = [40 + 4 * i for i in range(6)] + ([8 + 4 * i for i in range(4)] if s0 + n == sc.n else [])

            class RG(FragRing):
                def reg(self, i):
                    return oring[i % len(oring)]
            gemm_phase(p, n, open_u, item, mf, 0, len(oring), cls=RG)
            s += n
    while nm[0] < 10:
        mark()
    p.flush_hazards()
    p.I("s_branch L_G_final")


def gen_G_final(p):
    p.label("L_G_final")
    p.reset_state()
    stamp(p, 10)
    SG = S_G
    OV, PA, POLL = G_R + LOV, G_R + LPA, G_R + LPOLL
    p.I(f"s_lshl_b32 s{S_T0}, s{S_B}, 2")
    p.I(f"s_add_u32 s{S_T2}, s{S_T0}, s{S_P}")
    p.I(f"s_lshl_b32 s{S_T3}, s{S_T2}, 18")
    p.I(f"s_add_u32 s{S_T3}, s{S_T3}, {WS_PART}")
    p.I(f"s_add_u32 s{S_T3}, s{S_T3}, s{S_M0B}")
    p.I(f"s_lshl_b32 s{S_T2}, s{S_T2}, 11")
    p.I(f"s_add_u32 s{S_T2}, s{S_T2}, {WS_F2}")
    p.I(f"s_lshl_b32 s{S_T0}, s{SG}, 7")
    p.I(f"s_add_u32 s{S_T2}, s{S_T2}, s{S_T0}")
    p.I(f"s_lshl_b32 s{S_T1}, s{S_HG}, 14")
    p.I(f"s_add_u32 s{S_DS}, s{S_T3}, s{S_T1}")
    for d in range(4):
        p.I(f"s_cmp_eq_u32 s{S_HG}, {d}")
        p.I(f"s_cbranch_scc1 L_G_own{d}")
        for j in range(4):
            p.I(f"buffer_store_dwordx4 {vr(G_ACC + 16*d + 4*j, 4)}, v{OV}, {sr(SRD_WS,4)}, s{S_DS} offen offset:{j*1024} {STFLAGS}")
        p.I(f"s_branch L_G_nx{d}")
        p.label(f"L_G_own{d}")
        for k in range(16):
            p.I(f"v_mov_b32 v{G_B+k}, v{G_ACC+16*d+k}")
        p.label(f"L_G_nx{d}")
        if d < 3:
            p.I(f"s_add_u32 s{S_DS}, s{S_DS}, 65536")
    p.I(f"v_lshlrev_b32 v49, 7, v{PA}")
    p.I(f"s_lshl_b32 s{S_T1}, s{S_HG}, 2")
    p.I(f"s_add_u32 s{S_T0}, s{S_T2}, s{S_T1}")
    p.I("v_mov_b32 v48, 1")
    p.I(f"s_mov_b64 {sr(S_EX,2)}, exec")
    p.I("s_mov_b64 exec, 15")
    p.wait(vm=0)
    p.I(f"buffer_store_dword v48, v49, {sr(SRD_WS,4)}, s{S_T0} offen sc1")
    p.I(f"s_mov_b64 exec, {sr(S_EX,2)}")
    stamp(p, 11)
    p.I(f"s_lshl_b32 s{S_T0}, s{S_HG}, 9")
    p.I(f"s_add_u32 s{S_T2}, s{S_T2}, s{S_T0}")
    p.I(f"v_cmp_ne_u32 {sr(S_EX,2)}, s{S_T1}, v{PA}")
    p.I(f"s_mov_b32 s{S_SPIN}, {SPIN}")
    p.label("L_G_sp2")
    p.I(f"buffer_load_dword v{POLL}, v{PA}, {sr(SRD_WS,4)}, s{S_T2} offen sc1")
    p.I(f"v_cmp_ne_u32 vcc, 1, v{POLL}")
    p.I(f"s_and_b64 vcc, vcc, {sr(S_EX,2)}")
    p.I("s_cbranch_vccz L_G_ok2")
    p.I(f"s_sub_u32 s{S_SPIN}, s{S_SPIN}, 1")
    p.I(f"s_cmp_lg_u32 s{S_SPIN}, 0")
    p.I("s_cbranch_scc1 L_G_sp2")
    p.label("L_G_ok2")
    stamp(p, 12)
    p.I(f"s_lshl_b32 s{S_T0}, s{S_HG}, 16")
    p.I(f"s_add_u32 s{S_T3}, s{S_T3}, s{S_T0}")
    for i in range(3):
        p.I(f"s_add_u32 s{S_T0}, s{S_HG}, {i+1}")
        p.I(f"s_and_b32 s{S_T0}, s{S_T0}, 3")
        p.I(f"s_lshl_b32 s{S_T0}, s{S_T0}, 14")
        p.I(f"s_add_u32 s{S_T0}, s{S_T0}, s{S_T3}")
        for j in range(4):
            p.I(f"buffer_load_dwordx4 {vr(G_B + 16*(i+1) + 4*j, 4)}, v{OV}, {sr(SRD_WS,4)}, s{S_T0} offen offset:{j*1024} sc1")
    p.I("v_and_b32 v48, 31, v0")
    p.I("v_lshlrev_b32 v48, 10, v48")
    p.I("v_lshrrev_b32 v49, 5, v0")
    p.I("v_lshl_add_u32 v48, v49, 4, v48")
    p.I(f"s_lshl_b32 s{S_T0}, s{S_B}, 17")
    p.I(f"s_lshl_b32 s{S_T1}, s{S_HG}, 15")
    p.I(f"s_add_u32 s{S_T0}, s{S_T0}, s{S_T1}")
    p.I(f"s_lshl_b32 s{S_T1}, s{S_P}, 8")
    p.I(f"s_add_u32 s{S_T0}, s{S_T0}, s{S_T1}")
    p.I(f"s_lshl_b32 s{S_T1}, s{SG}, 6")
    p.I(f"s_add_u32 s{S_T0}, s{S_T0}, s{S_T1}")
    for i in range(3):
        for k in range(16):
            p.I(f"v_add_f32 v{G_B+k}, v{G_B+k}, v{G_B+16*(i+1)+k}")
    for k in range(8):
        p.I(f"v_cvt_pk_bf16_f32 v{G_B+k}, v{G_B+2*k}, v{G_B+2*k+1}")
    p.I(f"buffer_store_dwordx4 {vr(G_B,4)}, v48, {sr(SRD_OUT,4)}, s{S_T0} offen")
    p.I(f"buffer_store_dwordx4 {vr(G_B+4,4)}, v48, {sr(SRD_OUT,4)}, s{S_T0} offen offset:32")
    if STAMP in (1, 2):
        p.wait(vm=0)
        stamp(p, 13)
        p.I(f"s_cmp_lg_u32 s{S_WAVE}, 4")
        p.I("s_cbranch_scc1 L_exit")
        if os.environ.get("DBGOUT"):
            p.raw("  s_waitcnt lgkmcnt(0)")
            p.I("s_mov_b64 exec, 1")
            words = [1, 2, 3, 5, 6, 7, 9, 10, 11, 13, 14, 15]
            p.I(f"s_not_b32 s{S_T0}, s{S_STAMP}")
            p.I(f"v_mov_b32 v32, s{S_T0}")
            p.I(f"v_mov_b32 v30, {4*words[0]}")
            p.I(f"buffer_atomic_umax v32, v30, {sr(SRD_DBG,4)}, 0 offen sc1")
            for w, i in zip(words[1:], [0, 1, 2, 3, 4, 5, 6, 7, 10, 12, 13]):
                p.nop(2)
                p.I(f"v_mov_b32 v32, s{S_STAMP+2*i}")
                p.I(f"v_mov_b32 v30, {4*w}")
                p.I(f"buffer_atomic_umax v32, v30, {sr(SRD_DBG,4)}, 0 offen sc1")
        else:
            stamp_store(p, 14, 0)
    p.I("s_endpgm")


def main():
    out = sys.argv[1]
    scheds = [Sched(c) for c in CLASSES]
    if os.environ.get("SHOW"):
        for sc in scheds:
            print(" ".join(f"{e.kind}{e.idx}@{e.at}{e.who}>{e.need}[{e.slot}]" for e in sc.issued))
    p = Prog()
    prologue(p, 256)
    p.I(f"s_cmp_lt_u32 s{S_WAVE}, 4")
    p.I("s_cbranch_scc1 L_A")
    loader_setup(p, G_R, "xwkv")
    for c in range(1, NCLS):
        p.I(f"s_cmp_eq_u32 s{S_CLS}, {c}")
        p.I(f"s_cbranch_scc1 L_G_cls{c}")
    for c in range(NCLS):
        if c:
            p.label(f"L_G_cls{c}")
        p.reset_state()
        p.nop(2)
        gen_G_class(p, c, scheds[c])
    gen_G_final(p)
    p.label("L_A")
    p.reset_state()
    gen_A(p, scheds)
    p.label("L_exit")
    p.I("s_endpgm")
    s = "; @launch grid=(256,1,1) block=(512,1,1) lds=163840\n"
    s += '.amdgcn_target "amdgcn-amd-amdhsa--gfx950"\n.text\n'
    s += kernel_header(KNAME) + p.text()
    s += '.section .rodata,"a"\n'
    s += kernel_desc(KNAME, 256, 102, 256)
    open(out, "w").write(s)
    print("nops inserted:", p.nops_inserted, "lines", len(p.lines))


main()
```

```python
import sys, math, struct, os
from asmlib import Prog, vr, sr, kernel_header, kernel_desc

STAMP = int(os.environ.get("STAMP", "0"))
KVFLAGS = os.environ.get("KVFLAGS", "nt")
AUXFLAGS = os.environ.get("AUXFLAGS", "")
OFLAGS = os.environ.get("OFLAGS", "sc1")
STFLAGS = os.environ.get("STFLAGS", "sc1")
PRIO_A = int(os.environ.get("PRIO_A", "0"))
PRIO_G = int(os.environ.get("PRIO_G", "0"))
ROT = int(os.environ.get("ROT", "1"))
DT = int(os.environ.get("DT", "4"))
CLASSES = eval(os.environ.get("CLASSES", "[dict()]"))
NCLS = len(CLASSES)
KD = int(os.environ.get("KD", "4"))
GLEAD = int(os.environ.get("GLEAD", "2"))
PER = int(os.environ.get("PER", "3"))
KEARLY = int(os.environ.get("KEARLY", "0"))
KNAME = "standalone__mha_block_cached__near_ridge_kernel"
if KVFLAGS == "-":
    KVFLAGS = ""

WS_PART = 16 << 20
WS_STAMP = 32 << 20
WS_F1 = 48 << 20
WS_F2 = 49 << 20
SPIN = "0x20000"
HSLOT = 2


def f32bits(x):
    return struct.unpack("<I", struct.pack("<f", x))[0]


QSCALE = hex(f32bits(math.log2(math.e) / math.sqrt(128.0)))
THR = hex(f32bits(40.0))

S_WAVE = 3
SRD_X, SRD_K, SRD_V, SRD_WQ, SRD_WO, SRD_OUT, SRD_WS, SRD_DBG = 8, 12, 16, 20, 24, 28, 32, 4
S_B, S_H, S_T0, S_T1, S_T2, S_T3 = 36, 37, 38, 39, 56, 57
S_HEADCNT = 58
S_XBASE, S_WQBASE, S_KVBASE, S_OBASE = 59, 60, 61, 62
S_HG = 63
S_RET = 64
S_SCALE, S_THR = 66, 67
S_M0B = 68
S_P = 69
S_CLS = 70
S_BL = 71
S_DS = 54
S_FLAG = 46
S_PUB = 45
S_G = 47
S_C0 = 48
S_WOB = 49
S_OINB = 50
S_SPIN = 51
S_EX = 52
S_FIRST = 44
S_SEG = 43
S_SRET = 40
HOLD = int(os.environ.get("HOLD", "3"))
PRE = eval(os.environ.get("PRE", "[]"))
PRE0, PRED = int(os.environ.get("PRE0", "3")), int(os.environ.get("PRED", "3"))
KPOS = eval(os.environ.get("KPOS", "[]"))
PBF = int(os.environ.get("PBF", "0"))
DTH = int(os.environ.get("DTH", "5"))
KROT = int(os.environ.get("KROT", "1"))
FINE = int(os.environ.get("FINE", "0"))
WPF = int(os.environ.get("WPF", "-1"))
WPN = int(os.environ.get("WPN", "8"))
RES = eval(os.environ.get("RES", "[14,18,22,26,30]"))
RP0, RPD = int(os.environ.get("RP0", "6")), int(os.environ.get("RPD", "4"))
S_KR = 55
PUBJ = int(os.environ.get("PUBJ", "3"))
SPREAD = int(os.environ.get("SPREAD", "0"))
SP0 = int(os.environ.get("SP0", "1"))
S_STAMP = 72


def stamp(p, idx):
    if STAMP in (1, 2):
        p.raw(f"  {'s_memtime' if STAMP == 2 else 's_memrealtime'} s[{S_STAMP+2*idx}:{S_STAMP+1+2*idx}]")


def stamp_store(p, n, kern):
    p.raw("  s_waitcnt lgkmcnt(0)")
    p.I(f"s_lshl_b32 s{S_T0}, s2, 8")
    p.I(f"s_add_u32 s{S_T0}, s{S_T0}, {WS_STAMP + kern*65536}")
    p.I("v_mov_b32 v30, 0")
    for i in range(n):
        p.I(f"v_mov_b32 v32, s{S_STAMP+2*i}")
        p.I(f"v_mov_b32 v33, s{S_STAMP+1+2*i}")
        p.I(f"buffer_store_dwordx2 v[32:33], v30, {sr(SRD_WS,4)}, s{S_T0} offen offset:{8*i}")
        p.nop(2)


def prologue(p, nwg):
    p.I(f"s_cmp_ge_u32 s2, {nwg}")
    p.I("s_cbranch_scc1 L_exit")
    p.I("s_load_dwordx8 s[40:47], s[0:1], 0")
    p.I("s_load_dwordx8 s[48:55], s[0:1], 32")
    p.I("v_lshrrev_b32 v1, 6, v0")
    p.I(f"v_readfirstlane_b32 s{S_WAVE}, v1")
    p.I("v_and_b32 v0, 63, v0")
    p.I(f"s_bfe_u32 s{S_BL}, s2, {(3 << 16) | 3}")
    p.I(f"s_and_b32 s{S_T0}, s2, 1")
    p.I(f"s_lshl_b32 s{S_T0}, s{S_T0}, 3")
    p.I(f"s_add_u32 s{S_B}, s{S_T0}, s{S_BL}")
    p.I(f"s_bfe_u32 s{S_HG}, s2, {(2 << 16) | 1}")
    p.I(f"s_lshr_b32 s{S_P}, s2, 6")
    p.I(f"s_lshl_b32 s{S_T0}, s{S_HG}, 3")
    p.I(f"s_add_u32 s{S_H}, s{S_T0}, s{S_P}")
    p.I(f"s_and_b32 s{S_CLS}, s{S_BL}, {NCLS-1}")
    p.raw("  s_waitcnt lgkmcnt(0)")
    for srd, src, size in ((SRD_X, 40, 2 << 20), (SRD_WQ, 46, 4 << 20), (SRD_K, 42, 64 << 20), (SRD_V, 44, 64 << 20),
                           (SRD_WO, 48, 4 << 20), (SRD_OUT, 50, 2 << 20), (SRD_DBG, 52, 256), (SRD_WS, 54, 256 << 20)):
        p.I(f"s_mov_b32 s{srd}, s{src}")
        p.I(f"s_and_b32 s{srd+1}, s{src+1}, 0xffff")
        p.I(f"s_mov_b32 s{srd+2}, {size}")
        p.I(f"s_mov_b32 s{srd+3}, 0x20000")
    WSB = int(os.environ.get("WSB", "0")) << 20
    if WSB:
        p.I(f"s_add_u32 s{SRD_WS}, s{SRD_WS}, {WSB}")
        p.I(f"s_addc_u32 s{SRD_WS+1}, s{SRD_WS+1}, 0")
        p.I(f"s_mov_b32 s{SRD_WS+2}, {(256 << 20) - WSB}")
    p.I(f"s_and_b32 s{S_G}, s{S_WAVE}, 3")
    p.I(f"s_lshl_b32 s{S_M0B}, s{S_G}, 12")
    if KROT == 1:
        p.I(f"s_lshr_b32 s{S_KR}, s2, 3")
        p.I(f"s_add_u32 s{S_KR}, s{S_KR}, s2")
        p.I(f"s_lshr_b32 s{S_T0}, s2, 6")
        p.I(f"s_add_u32 s{S_KR}, s{S_KR}, s{S_T0}")
    else:
        p.I(f"s_mov_b32 s{S_KR}, s{S_BL}")
    p.I(f"s_lshl_b32 s{S_XBASE}, s{S_B}, 17")
    p.I(f"s_lshl_b32 s{S_WQBASE}, s{S_H}, 8")
    p.I(f"s_lshl_b32 s{S_T0}, s{S_B}, 5")
    p.I(f"s_add_u32 s{S_T0}, s{S_T0}, s{S_H}")
    p.I(f"s_lshl_b32 s{S_KVBASE}, s{S_T0}, 17")
    p.I(f"s_lshl_b32 s{S_OBASE}, s{S_T0}, 15")
    if ROT == 1:
        p.I(f"s_lshl_b32 s{S_T0}, s{S_P}, 1")
        p.I(f"s_add_u32 s{S_C0}, s{S_BL}, s{S_T0}")
    elif ROT == 2:
        p.I(f"s_add_u32 s{S_T0}, s{S_BL}, s{S_P}")
        p.I(f"s_and_b32 s{S_T0}, s{S_T0}, 1")
        p.I(f"s_lshl_b32 s{S_C0}, s{S_T0}, 2")
    else:
        p.I(f"s_mov_b32 s{S_C0}, 0")


def scalars2(p):
    p.I(f"s_lshl_b32 s{S_WOB}, s{S_HG}, 20")
    p.I(f"s_lshl_b32 s{S_T0}, s{S_P}, 8")
    p.I(f"s_add_u32 s{S_WOB}, s{S_WOB}, s{S_T0}")
    p.I(f"s_lshl_b32 s{S_OINB}, s{S_B}, 20")
    p.I(f"s_lshl_b32 s{S_T0}, s{S_HG}, 18")
    p.I(f"s_add_u32 s{S_OINB}, s{S_OINB}, s{S_T0}")
    p.I(f"s_add_u32 s{S_OINB}, s{S_OINB}, s{S_M0B}")
    p.I(f"s_lshl_b32 s{S_T0}, s{S_B}, 2")
    p.I(f"s_add_u32 s{S_T0}, s{S_T0}, s{S_HG}")
    p.I(f"s_lshl_b32 s{S_T0}, s{S_T0}, 11")
    p.I(f"s_lshl_b32 s{S_T1}, s{S_G}, 7")
    p.I(f"s_add_u32 s{S_T0}, s{S_T0}, s{S_T1}")
    p.I(f"s_add_u32 s{S_FLAG}, s{S_T0}, {WS_F1}")
    p.I(f"s_lshl_b32 s{S_T1}, s{S_P}, 2")
    p.I(f"s_add_u32 s{S_PUB}, s{S_FLAG}, s{S_T1}")
    p.I(f"s_mov_b32 s{S_SCALE}, {QSCALE}")


QSL = [(3 * c) % 7 for c in range(8)], [(3 * c + 1) % 7 for c in range(8)], [(3 * c + 2) % 7 for c in range(8)]


def slot_kv(T):
    return [7, 8, 9, 3, 4, 5, 6, 0][T % 8]


class AddrSet:
    def __init__(self, p, regs):
        self.p, self.regs, self.hi = p, regs, 0

    def to(self, slot):
        hi = slot // 4
        if hi != self.hi:
            d = (hi - self.hi) * 65536
            for r in self.regs:
                if d > 0:
                    self.p.I(f"v_add_u32 v{r}, {d}, v{r}")
                else:
                    self.p.I(f"v_subrev_u32 v{r}, {-d}, v{r}")
            self.hi = hi
        return (slot % 4) * 16384


def tr_lane_base(p, dst, t1, t3):
    p.I(f"v_bfe_u32 v{t1}, v0, 2, 2")
    p.I(f"v_bfe_u32 v{dst}, v0, 3, 1")
    p.I(f"v_lshlrev_b32 v{dst}, 6, v{dst}")
    p.I(f"v_lshl_add_u32 v{dst}, v{t1}, 7, v{dst}")
    p.I(f"v_bfe_u32 v{t3}, v0, 4, 1")
    p.I(f"v_lshl_add_u32 v{dst}, v{t3}, 5, v{dst}")


def add_pi(p, dst, src, t3):
    p.I(f"v_and_b32 v{t3}, 1, v0")
    p.I(f"v_lshl_add_u32 v{dst}, v{t3}, 4, v{src}")
    p.I(f"v_bfe_u32 v{t3}, v0, 1, 1")
    p.I(f"v_lshl_add_u32 v{dst}, v{t3}, 3, v{dst}")


class FragRing:
    def __init__(self, p, items, base, n):
        self.p, self.items, self.base, self.n = p, items, base, n
        self.issued = 0

    def reg(self, i):
        return self.base + 4 * (i % self.n)

    def issue_next(self):
        if self.issued >= len(self.items):
            return False
        i = self.issued
        self.items[i](self.reg(i))
        self.issued += 1
        return True


class Pref:
    def __init__(self, p, items, groups, ops):
        self.p, self.items, self.groups, self.ops = p, items, groups, ops
        self.issued = 0
        self.regs = []
        self.busy = {g: -1 for g in groups}
        self.force = {}

    def reg(self, i):
        return self.regs[i]

    def fill(self, m, lim=10 ** 9, maxn=2, cap=15):
        n = 0
        while n < maxn and self.issued < min(lim, len(self.items)):
            i = self.issued
            if len(self.p.lgkm) + self.ops(i) > cap and i > m + 2:
                break
            c = [g for g in self.groups if self.busy[g] <= m and self.force.get(i, g) == g]
            if not c:
                break
            g = min(c, key=lambda g: self.busy[g])
            self.busy[g] = i
            self.regs.append(g)
            self.issued += 1
            self.items[i](g)
            n += 1


LX, LW, LK, LV, LWO, LOV, LPA, LPOLL, LDPOLL, LT = 0, 4, 8, 12, 16, 20, 21, 22, 23, 24


def loader_setup(p, R, which):
    t = lambda i: R + LT + i
    l8, m8, u1, l16, rr, hf, sw, tmp = [t(i) for i in range(8)]
    p.I(f"v_lshrrev_b32 v{l8}, 3, v0")
    p.I(f"v_and_b32 v{m8}, 7, v0")
    p.I(f"v_bfe_u32 v{u1}, v0, 4, 1")
    p.I(f"v_lshrrev_b32 v{l16}, 4, v0")
    p.I(f"v_bfe_u32 v{rr}, v0, 3, 2")
    p.I(f"v_lshrrev_b32 v{hf}, 5, v0")
    p.I(f"v_lshlrev_b32 v{sw}, 2, v{u1}")
    p.I(f"v_xor_b32 v{sw}, v{sw}, v{m8}")
    p.I(f"v_lshlrev_b32 v{sw}, 4, v{sw}")
    for w in which:
        if w == "x":
            p.I(f"s_lshl_b32 s{S_T0}, s{S_G}, 15")
            for j in range(4):
                p.I(f"v_add_u32 v{tmp}, {4*j}, v{l16}")
                p.I(f"v_and_b32 v{tmp}, 7, v{tmp}")
                p.I(f"v_xor_b32 v{tmp}, v{tmp}, v{m8}")
                p.I(f"v_lshlrev_b32 v{tmp}, 4, v{tmp}")
                p.I(f"v_lshl_add_u32 v{tmp}, v{l8}, 10, v{tmp}")
                p.I(f"v_add_u32 v{tmp}, {8*j*1024 - j*1024}, v{tmp}")
                p.I(f"v_add_u32 v{R+LX+j}, s{S_T0}, v{tmp}")
        elif w == "w":
            p.I(f"v_lshl_add_u32 v{tmp}, v{rr}, 13, v{sw}")
            p.I(f"v_lshl_add_u32 v{tmp}, v{hf}, 7, v{tmp}")
            p.I(f"s_lshl_b32 s{S_T0}, s{S_G}, 17")
            p.I(f"v_add_u32 v{tmp}, s{S_T0}, v{tmp}")
            for j in range(4):
                p.I(f"v_add_u32 v{R+LW+j}, {4*j*8192 - j*1024}, v{tmp}")
        elif w == "k":
            for j in range(4):
                p.I(f"v_add_u32 v{tmp}, {2*j}, v{u1}")
                p.I(f"v_xor_b32 v{tmp}, v{tmp}, v{m8}")
                p.I(f"v_lshlrev_b32 v{tmp}, 4, v{tmp}")
                p.I(f"v_lshl_add_u32 v{tmp}, v{rr}, 8, v{tmp}")
                p.I(f"v_lshl_add_u32 v{tmp}, v{hf}, 7, v{tmp}")
                p.I(f"v_add_u32 v{R+LK+j}, s{S_M0B}, v{tmp}")
        elif w == "v":
            p.I(f"v_lshl_add_u32 v{tmp}, v{rr}, 8, v{sw}")
            p.I(f"v_lshl_add_u32 v{tmp}, v{hf}, 7, v{tmp}")
            p.I(f"v_add_u32 v{R+LV}, s{S_M0B}, v{tmp}")
        elif w == "o":
            p.I(f"v_lshl_add_u32 v{tmp}, v{rr}, 10, v{sw}")
            p.I(f"v_lshl_add_u32 v{tmp}, v{hf}, 7, v{tmp}")
            p.I(f"s_lshl_b32 s{S_T0}, s{S_G}, 14")
            p.I(f"v_add_u32 v{tmp}, s{S_T0}, v{tmp}")
            for j in range(4):
                p.I(f"v_add_u32 v{R+LWO+j}, {4*j*1024 - j*1024}, v{tmp}")
            p.I(f"v_lshlrev_b32 v{R+LOV}, 4, v0")
            p.I(f"v_and_b32 v{tmp}, 3, v0")
            p.I(f"v_lshlrev_b32 v{R+LPA}, 2, v{tmp}")


class E:
    def __init__(self, kind, idx, need, slot=None, rel=None, gate=None):
        self.kind, self.idx, self.need, self.slot, self.rel, self.gate = kind, idx, need, slot, rel, gate
        self.free = -1
        self.at = None
        self.who = None


class Sched:
    def __init__(self, cfg):
        npre, mid, at = cfg.get("npre", 0), cfg.get("mid", 0), cfg.get("at", 16)
        self.at = at if mid else 99
        self.steps = []
        ents = []
        st = self.steps

        def ostep(o, n):
            for i in range(n):
                s = len(st)
                g = ({0: 1, 10: 5, 12: 6, 14: 7} if FINE else {0: 1, 8: 3}).get(o + i)
                if o + i not in PRE:
                    ents.append(E("wo", o + i, s, None, s + 1))
                ents.append(E("o", o + i, s, None, s + 1, gate=g))
                st.append(("O", i))
        for c in range(8):
            s = len(st)
            ents.extend([E("x", c, s, QSL[0][c], s + 1), E("w", c, s, QSL[1][c], s + 1), E("wb", c, s + 1, QSL[2][c], s + 2)])
            st += [("QA", 2 * c), ("QA", 2 * c + 1)]
        self.ka0 = len(st)
        kvs = []
        for g in range(32):
            if mid and g == 16 + at:
                self.seg = len(st)
                ostep(0, mid)
                self.seg_end = len(st)
            s = len(st)
            e = E("k" if g % 2 == 0 else "v", g // 2, s, slot_kv(g), None)
            kvs.append(e)
            ents.append(e)
            st.append(("K", g))
        for g, e in enumerate(kvs):
            e.rel = kvs[g + 2].need if g + 2 < 32 else len(st)
            if mid and g == 16 + at - 2:
                e.rel = self.seg
        for i, u in enumerate(PRE):
            n = kvs[PRE0 + PRED * i].need
            ents.append(E("wp", u, n, None, n + 1))
        self.seg1 = kvs[16].need
        self.tail0 = len(st)
        ostep(mid, 16 - mid)
        self.n = len(st)
        ents.sort(key=lambda e: e.need)
        held = [kvs[g] for g in range(16 + at, min(32, 16 + at + HOLD))] if mid else []
        sf = {x: -1 for x in range(10)}
        fixed = [e for e in ents if e.slot is not None]
        for e in ents:
            if e.slot is None:
                def cost(x):
                    if any(h.slot == x and h.need > e.need for h in held):
                        return (2000, 0)
                    nxt = min((f.need for f in fixed if f.slot == x and f.need >= e.need), default=10 ** 6)
                    if sf[x] > e.need - 1:
                        return (1000, 0)
                    return (max(0, (e.rel + 2) - nxt), sf[x])
                e.slot = min(range(10), key=cost)
            e.free = sf[e.slot]
            assert e.free <= e.need - 1, (e.kind, e.idx, e.need, e.free)
            sf[e.slot] = e.rel
        self.ents = ents
        order = list(ents)
        for e in kvs[:npre]:
            order.remove(e)
        order = kvs[:npre] + order
        for e, q in zip(kvs, KPOS):
            order.remove(e)
            order.insert(q, e)
            held.append(e)
        for i, g in enumerate(RES):
            e = kvs[g]
            e.reg = 64 + 16 * i
            e.wat = max(e.free, e.need - 2)
            assert e.wat <= e.need - 1
            e.free = -1
            order.remove(e)
            order.insert(RP0 + RPD * i, e)
            held.append(e)
            e.lneed, e.need = e.need, 10 ** 6
        held0 = list(held)
        held = [h for h in held if self.seg1 < h.need < 10 ** 6]
        self.held = held0
        if held:
            for e in held:
                order.remove(e)
            pos = order.index([e for e in order if e.kind == "wo"][0])
            order[pos:pos] = held
        self.order = order
        for e in order:
            if e.gate == 1:
                e.free = max(e.free, self.seg1 + PUBJ + 1)
            if e.gate == 3:
                e.free = max(e.free, self.tail0)
            if FINE and e.kind == "o" and e.idx >= 8:
                e.free = max(e.free, self.tail0 + 1)
        self._plan()

    def consumer(self, s):
        return "A" if self.steps[s][0] in ("QA", "K", "V") else "G"

    def loader(self, s):
        if s < 0:
            return "G"
        return "G" if self.consumer(s) == "A" else "A"

    def _plan(self):
        order = list(self.order)
        self.pre_tail = []
        for e in list(order):
            if e.kind == "o" and e.idx >= 8 and e.need <= self.tail0 + 1 and any(f.gate == 3 and f.need == self.tail0 for f in self.order):
                order.remove(e)
                e.at, e.who = self.tail0 - 0.5, "A"
                self.pre_tail.append(e)
        if self.pre_tail:
            for e in order:
                if e.kind == "o" and e.idx >= 8:
                    e.free = max(e.free, self.tail0)
        issued = []
        landed = set()
        for s in range(-1, self.n):
            for e in issued:
                if e.need <= s:
                    for f in issued[:issued.index(e) + 1]:
                        landed.add(f)
            nstep = 0
            while order:
                infl = sum(1 for e in issued if e not in landed)
                cand = None
                for i, e in enumerate(order[:12]):
                    if i > 0 and not e.kind in ("o", "wo"):
                        break
                    if e.kind == "o" and any(f.kind == "o" for f in order[:i]):
                        continue
                    if e.free <= s and not (e.gate and e.need > s + GLEAD):
                        cand = e
                        break
                    if e.kind != "o":
                        break
                if cand is None:
                    break
                must = any(f.need <= s + 1 for f in order)
                infl -= sum(1 for e in issued if e in self.held and e not in landed and s - e.at >= 2)
                if (infl >= (DTH if cand.kind in ("k", "v") and s >= self.ka0 else DT) or (nstep >= PER and s >= 0)) and not must:
                    break
                who = self.loader(s)
                if who == "A" and cand.kind in ("k", "v"):
                    break
                nstep += 1
                cand.at, cand.who = s, who
                issued.append(cand)
                order.remove(cand)
            for e in order:
                assert e.need > s + 1 or s == self.n - 1, ("not issued in time", e.kind, e.idx, e.need, s, e.free)
        assert not order
        self.issued = issued + self.pre_tail


class Loader:
    def __init__(self, p, R, tag):
        self.p, self.R, self.tag = p, R, tag
        self.cnt = 0
        self.mark = {}
        self.dchecked = False

    def I(self, t):
        if t.startswith("buffer_"):
            self.cnt += 1
        self.p.I(t)

    def kappa(self, o):
        p = self.p
        if o >= 8 and FINE:
            p.I(f"s_lshl_b32 s{S_T1}, s{S_P}, 1")
            p.I(f"s_add_u32 s{S_T1}, s{S_T1}, {o}")
        else:
            p.I(f"s_add_u32 s{S_T1}, s{S_BL}, {o}")
        p.I(f"s_and_b32 s{S_T1}, s{S_T1}, 7")
        if o >= 8:
            p.I(f"s_add_u32 s{S_T1}, s{S_T1}, 8")

    def spin(self, kind, ev):
        p, R = self.p, self.R
        name = f"{self.tag}{kind}{ev}"
        p.flush_hazards()
        p.I(f"s_mov_b32 s{S_SPIN}, {SPIN}")
        if kind == "d":
            p.I(f"s_lshl_b32 s{S_T0}, s{S_B}, 4")
            p.I(f"v_mov_b32 v{R+LT}, 0")
        else:
            p.I(f"s_add_u32 s{S_T0}, s{S_FLAG}, {ev*512}")
        p.label(f"L_sp_{name}")
        if kind == "d":
            self.I(f"buffer_load_dword v{R+LPOLL}, v{R+LT}, {sr(SRD_DBG,4)}, s{S_T0} offen sc1")
            p.wait(vm=0)
            p.I(f"v_cmp_gt_u32 vcc, 16, v{R+LPOLL}")
        else:
            self.I(f"buffer_load_dword v{R+LPOLL}, v{R+LPA}, {sr(SRD_WS,4)}, s{S_T0} offen sc1")
            p.wait(vm=0)
            p.I(f"v_cmp_ne_u32 vcc, 1, v{R+LPOLL}")
        p.I(f"s_cbranch_vccz L_ok_{name}")
        p.I(f"s_sub_u32 s{S_SPIN}, s{S_SPIN}, 1")
        p.I(f"s_cmp_lg_u32 s{S_SPIN}, 0")
        p.I(f"s_cbranch_scc1 L_sp_{name}")
        p.label(f"L_ok_{name}")

    def issue_at(self, sc, who, s):
        for e in sc.issued:
            if e.who == who and e.at == s:
                self.issue(e)
        for e in sc.issued:
            if e.gate and e.who == who and e.at == s + 1 and sc.loader(s) == who and s > sc.seg1:
                self.p.I(f"s_add_u32 s{S_T0}, s{S_FLAG}, {min(e.gate, 3)*512}")
                self.I(f"buffer_load_dword v{self.R+LPOLL}, v{self.R+LPA}, {sr(SRD_WS,4)}, s{S_T0} offen sc1")
                self.prepolled = e.gate

    def issue(self, e):
        p, R = self.p, self.R
        if e.gate and e.gate > 4:
            name = f"{self.tag}f{e.gate}"
            pl = lambda: self.I(f"buffer_load_dword v{R+LPOLL}, v{R+LPA}, {sr(SRD_WS,4)}, s{S_FLAG} offen offset:1536 sc1")
            p.I(f"s_add_u32 s{S_T0}, s{S_P}, {e.gate - 4}")
            p.I(f"s_and_b32 s{S_T0}, s{S_T0}, 3")
            if getattr(self, "prepolled", 0) != e.gate:
                pl()
            p.I(f"v_cmp_eq_u32 vcc, 1, v{R+LPOLL}")
            p.I(f"s_bitcmp1_b32 vcc_lo, s{S_T0}")
            p.I(f"s_cbranch_scc1 L_ok_{name}")
            keep = (p.t, list(p.vm), self.cnt)
            p.I(f"s_mov_b32 s{S_SPIN}, {SPIN}")
            p.label(f"L_sp_{name}")
            pl()
            p.wait(vm=0)
            p.I(f"v_cmp_eq_u32 vcc, 1, v{R+LPOLL}")
            p.I(f"s_bitcmp1_b32 vcc_lo, s{S_T0}")
            p.I(f"s_cbranch_scc1 L_ok_{name}")
            p.I("s_sleep 1")
            p.I(f"s_sub_u32 s{S_SPIN}, s{S_SPIN}, 1")
            p.I(f"s_cmp_lg_u32 s{S_SPIN}, 0")
            p.I(f"s_cbranch_scc1 L_sp_{name}")
            p.label(f"L_ok_{name}")
            p.t, p.vm, self.cnt = keep
        elif e.gate:
            if getattr(self, "prepolled", 0) == e.gate:
                p.I(f"v_cmp_ne_u32 vcc, 1, v{R+LPOLL}")
                p.I(f"s_cbranch_vccz L_ok_{self.tag}f{e.gate}")
                keep = (p.t, list(p.vm), self.cnt)
                self.spin("f", e.gate)
                p.t, p.vm, self.cnt = keep
            else:
                self.spin("f", e.gate)
        k = e.kind
        fl = AUXFLAGS
        if k in ("x", "w", "wb"):
            p.I(f"s_add_u32 s{S_T1}, s{S_C0}, {e.idx}")
            p.I(f"s_and_b32 s{S_T1}, s{S_T1}, 7")
            if k == "x":
                p.I(f"s_lshl_b32 s{S_DS}, s{S_T1}, 7")
                p.I(f"s_add_u32 s{S_DS}, s{S_DS}, s{S_XBASE}")
                vo, srd = [R + LX + j for j in range(4)], SRD_X
            else:
                p.I(f"s_lshl_b32 s{S_DS}, s{S_T1}, 19")
                p.I(f"s_add_u32 s{S_DS}, s{S_DS}, s{S_WQBASE}")
                if k == "wb":
                    p.I(f"s_add_u32 s{S_DS}, s{S_DS}, 1024")
                vo, srd = [R + LW + j for j in range(4)], SRD_WQ
        elif k in ("k", "v"):
            hd, t = e.idx // 8, e.idx % 8
            if KROT:
                p.I(f"s_add_u32 s{S_T1}, s{S_KR}, {t}")
                p.I(f"s_and_b32 s{S_T1}, s{S_T1}, 7")
                p.I(f"s_lshl_b32 s{S_T1}, s{S_T1}, 14")
                p.I(f"s_add_u32 s{S_DS}, s{S_KVBASE}, s{S_T1}")
                if hd:
                    p.I(f"s_add_u32 s{S_DS}, s{S_DS}, {4 * 131072}")
            else:
                off = hd * 4 * 131072 + t * 16384
                p.I(f"s_add_u32 s{S_DS}, s{S_KVBASE}, {off}")
            vo, srd = ([R + LK + j for j in range(4)], SRD_K) if k == "k" else ([R + LV] * 4, SRD_V)
            fl = KVFLAGS
        elif k in ("wo", "wp"):
            self.kappa(e.idx)
            p.I(f"s_lshl_b32 s{S_DS}, s{S_T1}, 16")
            p.I(f"s_add_u32 s{S_DS}, s{S_DS}, s{S_WOB}")
            vo, srd = [R + LWO + j for j in range(4)], SRD_WO
        else:
            self.kappa(e.idx)
            p.I(f"s_lshl_b32 s{S_DS}, s{S_T1}, 14")
            p.I(f"s_add_u32 s{S_DS}, s{S_DS}, s{S_OINB}")
            vo, srd, fl = [R + LOV] * 4, SRD_WS, OFLAGS
        if hasattr(e, "reg"):
            for j in range(4):
                self.I(f"buffer_load_dwordx4 {vr(e.reg + 4*j, 4)}, v{vo[j]}, {sr(srd,4)}, s{S_DS} offen offset:{j*1024} {fl}")
            self.mark[e] = self.cnt
            return
        p.I(f"s_add_u32 m0, s{S_M0B}, {e.slot * 16384}")
        for j in range(4):
            self.I(f"buffer_load_dwordx4 v{vo[j]}, {sr(srd,4)}, s{S_DS} offen offset:{j*1024} {fl} lds")
        self.mark[e] = self.cnt

    def wait_for(self, s, **kw):
        need = [m for e, m in self.mark.items() if e.need == s]
        if need:
            self.p.wait(vm=self.cnt - max(need), **kw)
        elif kw:
            self.p.wait(**kw)


V_T, V_AK, V_AV, V_M, V_L, V_ST, V_MX = 1, 2, 6, 8, 9, 14, 15
V_AW, V_AX = 11, 250
V_FR = 16
V_S = [40, 56]
V_Q = 72
V_O = 104
V_QB = 168
V_FR2 = 200
A_R = 216


def lane_setup_A(p):
    t0, t1, t2, t3 = 16, 17, 18, 19
    p.I(f"v_lshrrev_b32 v{t0}, 5, v0")
    p.I(f"v_and_b32 v{t1}, 31, v0")
    p.I(f"v_bfe_u32 v{t2}, v0, 1, 3")
    p.I(f"v_xor_b32 v{t2}, v{t2}, v{t0}")
    p.I(f"v_lshlrev_b32 v{t2}, 4, v{t2}")
    p.I(f"v_lshrrev_b32 v{t3}, 2, v{t1}")
    p.I(f"v_lshlrev_b32 v{t3}, 10, v{t3}")
    p.I(f"v_and_b32 v20, 3, v{t1}")
    p.I(f"v_lshl_add_u32 v{t3}, v20, 7, v{t3}")
    p.I(f"v_add_u32 v{V_AK}, v{t3}, v{t2}")
    for i in range(1, 4):
        p.I(f"v_xor_b32 v{V_AK+i}, {i*32}, v{V_AK}")
    p.I(f"v_lshlrev_b32 v{t3}, 7, v{t1}")
    p.I(f"v_add3_u32 v{V_AX}, v{t3}, v{t2}, s{S_M0B}")
    for i in range(1, 4):
        p.I(f"v_xor_b32 v{V_AX+i}, {i*32}, v{V_AX}")
    tr_lane_base(p, t2, t1, t3)
    p.I(f"v_and_b32 v{t3}, 3, v0")
    p.I(f"v_lshl_add_u32 v20, v{t3}, 3, v{t2}")
    p.I(f"v_lshl_add_u32 v{V_AV}, v{t0}, 10, v20")
    p.I(f"v_xor_b32 v{V_AV+1}, 64, v{V_AV}")
    add_pi(p, 20, t2, t3)
    p.I(f"v_lshl_add_u32 v{V_AW}, v{t0}, 11, v20")
    p.I(f"v_xor_b32 v{V_AW+1}, 64, v{V_AW}")
    p.I(f"v_lshlrev_b32 v{V_ST}, 4, v0")
    p.I(f"v_add_u32 v{V_ST}, s{S_M0B}, v{V_ST}")


def flag_store(p, sreg, I=None):
    I = I or p.I
    p.I(f"v_mov_b32 v{V_T}, 1")
    p.I(f"v_mov_b32 v{V_MX}, 0")
    p.I(f"s_mov_b64 {sr(S_EX,2)}, exec")
    p.I("s_mov_b64 exec, 1")
    I(f"buffer_store_dword v{V_T}, v{V_MX}, {sr(SRD_WS,4)}, s{sreg} offen sc1")
    p.I(f"s_mov_b64 exec, {sr(S_EX,2)}")


def gemm_phase(p, nunits, open_unit, frag_item, mfma, ring_base, nfr, extra=None, cls=None):
    items = [frag_item(c, s, mb) for c in range(nunits) for s in range(4) for mb in range(4)]
    ring = (cls or FragRing)(p, items, ring_base, nfr)
    open_unit(0)
    opened = 1
    for _ in range(5):
        ring.issue_next()
    AH = nfr - 1
    idle = 0
    n = 16 * nunits
    for fi in range(n):
        c, s, mb = fi // 16, (fi // 4) % 4, fi % 4
        mfma(c, s, mb, ring.reg(fi))
        for _ in range(2):
            if ring.issued < min(opened * 16, fi + 1 + AH, n):
                ring.issue_next()
        if extra:
            extra(fi)
        if ring.issued == opened * 16 and opened < nunits:
            idle += 1
            if idle >= 3:
                open_unit(opened)
                opened += 1
                idle = 0


def gen_A(p, scheds):
    stamp(p, 0)
    CPF = int(os.environ.get("CPF", "0"))
    if CPF:
        p.raw("  s_getpc_b64 s[40:41]")
        p.label("L_pc")
        p.raw(f"  s_sub_u32 s40, s40, L_pc-{KNAME}")
        p.raw("  s_subb_u32 s41, s41, 0")
        p.I(f"s_lshr_b32 s{S_T0}, s2, 3")
        p.I(f"s_lshl_b32 s{S_T0}, s{S_T0}, 2")
        p.I(f"s_add_u32 s{S_T0}, s{S_T0}, s{S_G}")
        p.I(f"s_lshl_b32 s{S_T0}, s{S_T0}, 6")
        for k in range(CPF):
            p.raw(f"  s_load_dword s101, s[40:41], s{S_T0} offset:{k*8192}")
    lane_setup_A(p)
    scalars2(p)
    if PRIO_A:
        p.I(f"s_setprio {PRIO_A}")
    p.I(f"s_mov_b32 s{S_HEADCNT}, 0")
    p.I(f"s_mov_b32 s{S_SEG}, 99")
    p.I(f"s_mov_b32 s{SRD_X}, s{SRD_WS}")
    p.I(f"s_mov_b32 s{SRD_X+1}, s{SRD_WS+1}")
    p.I(f"s_mov_b32 s{SRD_X+2}, 0")
    ak, aw, av, ax = AddrSet(p, [V_AK + i for i in range(4)]), AddrSet(p, [V_AW, V_AW + 1]), AddrSet(p, [V_AV, V_AV + 1]), AddrSet(p, [V_AX + i for i in range(4)])

    def open_u(u):
        c, h = u // 2, u % 2
        p.wait(lgkm=0)
        p.I("s_barrier")
        if u == 0:
            stamp(p, 1)
        if h == 0:
            off = ax.to(QSL[0][c])
            for ss in range(4):
                p.I(f"ds_read_b128 {vr(V_S[c % 2] + 4 * ss, 4)}, v{V_AX + ss} offset:{off}")

    def mk_w(u, s, mb):
        def f(reg):
            off = aw.to(QSL[1 + u % 2][u // 2]) + s * 4096 + (mb // 2) * 512
            p.I(f"ds_read_b64_tr_b16 {vr(reg, 2)}, v{V_AW + mb % 2} offset:{off}")
            p.I(f"ds_read_b64_tr_b16 {vr(reg + 2, 2)}, v{V_AW + mb % 2} offset:{off + 1024}")
        return f

    def q_mfma(u, s, mb, reg):
        acc = vr((V_O, V_QB)[u % 2] + 16 * mb, 16)
        p.I(f"v_mfma_f32_32x32x16_bf16 {acc}, {vr(reg, 4)}, {vr(V_S[(u // 2) % 2] + 4 * s, 4)}, {'0' if (u < 2 and s == 0) else acc}")

    def pack_ops(src, dst):
        ops = []
        for mb in range(4):
            for i in range(16):
                ops.append(f"v_mul_f32 v{src+16*mb+i}, s{S_SCALE}, v{src+16*mb+i}")
            for i in range(8):
                ops.append(f"v_cvt_pk_bf16_f32 v{dst+8*mb+i}, v{src+16*mb+2*i}, v{src+16*mb+2*i+1}")
        return ops

    qring = [V_FR + 4 * i for i in range(6)] + [232 + 4 * i for i in range(4)]

    class RR(FragRing):
        def reg(self, i):
            return qring[i % len(qring)]
    pk = pack_ops(V_O, V_Q)

    def qextra(fi):
        if fi >= 243:
            for _ in range(8):
                if pk:
                    p.I(pk.pop(0))
    gemm_phase(p, 16, open_u, mk_w, q_mfma, V_FR, len(qring), extra=qextra, cls=RR)
    while pk:
        p.I(pk.pop(0))

    segs = sorted(set(sc.at for sc in scheds if sc.at < 16))

    def open_tile(T):
        if T in segs:
            p.I(f"s_cmp_eq_u32 s{S_SEG}, {T}")
            p.I(f"s_cbranch_scc1 L_A_seg{T}")
            p.label(f"L_A_segb{T}")
        if T == 16:
            p.I(f"s_cmp_eq_u32 s{S_HEADCNT}, 1")
            p.I("s_cbranch_scc1 L_A_nobar")
            p.I("s_barrier")
            p.label("L_A_nobar")
        else:
            p.I("s_barrier")

    def mk_k(j, ks):
        def f(reg):
            if j % 2 == 0 and ks == 0:
                open_tile(j)
            off = ak.to(slot_kv(j - j % 2)) + (j % 2) * 8192 + (ks // 4) * 512
            p.I(f"ds_read_b128 {vr(reg, 4)}, v{V_AK + ks % 4} offset:{off}")
        f.n = 1
        return f

    def mk_v(j, h, mb):
        def f(reg):
            if j % 2 == 0 and h == 0 and mb == 0:
                open_tile(j + 1)
            off = av.to(slot_kv(j - j % 2 + 1)) + ((j % 2) * 2 + h) * 4096 + (mb // 2) * 512
            p.I(f"ds_read_b64_tr_b16 {vr(reg, 2)}, v{V_AV + mb % 2} offset:{off}")
            p.I(f"ds_read_b64_tr_b16 {vr(reg + 2, 2)}, v{V_AV + mb % 2} offset:{off + 2048}")
        f.n = 2
        return f

    seq = []
    for j in range(1, 16):
        seq += [("k", j, ks) for ks in range(8)]
        seq += [("v", j - 1, x) for x in range(8)]
    seq += [("v", 15, x) for x in range(8)]
    seq += [("k", 16, ks) for ks in range(8)]
    item = lambda e: mk_k(e[1], e[2]) if e[0] == "k" else mk_v(e[1], e[2] // 4, e[2] % 4)
    g6 = [V_FR + 4 * i for i in range(6)]
    r0 = Pref(p, [mk_k(0, ks) for ks in range(8)] + [item(e) for e in seq[:6]], g6, lambda i: 1)
    r0.fill(-1, maxn=6, cap=99)
    stamp(p, 2)
    pk = pack_ops(V_QB, V_QB)
    for ks in range(8):
        S = vr(V_S[0], 16)
        p.I(f"v_mfma_f32_32x32x16_bf16 {S}, {vr(r0.reg(ks), 4)}, {vr(V_Q + 4 * ks, 4)}, {S if ks else '0'}")
        r0.fill(ks, maxn=1, cap=99)
        for _ in range(12):
            p.I(pk.pop(0))
    entry_regs = r0.regs[8:14]
    av.to(slot_kv(15))
    ent = (ak.hi, av.hi)
    p.wait(lgkm=0)
    p.flush_hazards()
    p.label("L_A_head")
    p.reset_state()
    p.I(f"v_mov_b32 v{V_L}, 0")
    p.I(f"v_mov_b32 v{V_L+1}, 0")
    p.I(f"v_mov_b32 v{V_M}, 0")
    p.I(f"s_mov_b32 s{S_THR}, {THR}")
    p.I(f"s_mov_b32 s{S_FIRST}, 1")
    items = [item(e) for e in seq] + [item(e) for e in seq[:6]]
    ring = Pref(p, items, g6 + [V_FR2 + 4 * i for i in range(2)], lambda i: items[i].n)
    ring.regs = list(entry_regs)
    ring.issued = 6
    for i, g in enumerate(entry_regs):
        ring.busy[g] = i
        ring.force[len(seq) + i] = g

    def max_ops(i):
        S = V_S[i % 2]
        a = (lambda r: f"|v{r}|") if i == 0 else (lambda r: f"v{r}")
        return [f"v_max3_f32 v{V_MX}, {a(S)}, {a(S+1)}, {a(S+2)}",
                f"v_max3_f32 v{V_T}, {a(S+3)}, {a(S+4)}, {a(S+5)}",
                f"v_max3_f32 v{V_MX}, v{V_MX}, {a(S+6)}, {a(S+7)}",
                f"v_max3_f32 v{V_T}, v{V_T}, {a(S+8)}, {a(S+9)}",
                f"v_max3_f32 v{V_MX}, v{V_MX}, {a(S+10)}, {a(S+11)}",
                f"v_max3_f32 v{V_T}, v{V_T}, {a(S+12)}, {a(S+13)}",
                f"v_max3_f32 v{V_MX}, v{V_MX}, {a(S+14)}, {a(S+15)}",
                f"v_max_f32 v{V_MX}, v{V_MX}, v{V_T}",
                f"v_cmp_nge_f32 vcc, s{S_THR}, v{V_MX}"]

    def exp_ops(i):
        S = V_S[i % 2]
        ops = []
        for k in range(9):
            if k < 8:
                ops.append(f"v_exp_f32 v{S+2*k}, v{S+2*k}")
            if k >= 1:
                a = S + 2 * k - 2
                ops.append(f"v_add_f32 v{V_L}, v{V_L}, v{a}")
            if k < 8:
                ops.append(f"v_exp_f32 v{S+2*k+1}, v{S+2*k+1}")
            if k >= 1:
                ops.append(f"v_add_f32 v{V_L+1}, v{V_L+1}, v{a+1}")
                ops.append(f"v_cvt_pk_bf16_f32 v{S+k-1}, v{a}, v{a+1}")
        return ops

    cost = lambda o: 2 if o.startswith("v_exp") else 1
    stubs, q = [], []
    start_at, end_at = {0: -1}, {}
    for m, e in enumerate(seq):
        if e[0] == "k" and e[2] == 7 and e[1] < 16:
            start_at[e[1]] = m + 2
        if e[0] == "v" and e[2] == 0:
            end_at[e[1]] = m
    epi, cur, nseq = None, 0, len(seq)
    brk = [False]

    def run_valu(budget):
        while q and budget > 0:
            o = q[0]
            if o.startswith("BR"):
                if brk[0] and budget < 10 ** 5:
                    brk[0] = False
                    return
                q.pop(0)
                i = int(o[3:])
                p.I(f"s_cbranch_vccnz L_A_stub{i}")
                p.label(f"L_A_back{i}")
                if i == 0:
                    p.I(f"s_mov_b32 s{S_FIRST}, 0")
                stubs.append(i)
            else:
                q.pop(0)
                budget -= cost(o)
                p.I(o)
                if o.startswith("v_cmp"):
                    brk[0] = budget > 0

    q += max_ops(0) + ["BR 0"] + exp_ops(0)
    run_valu(12)
    for m, e in enumerate(seq):
        kind, j, x = e
        if m == nseq - 8:
            p.I(f"s_cmp_eq_u32 s{S_HEADCNT}, 1")
            p.I("s_cbranch_scc1 L_A_tail")
            epi = epi_ops()
            if SPREAD:
                epi = []
                for f in range(8):
                    a = V_O + 8 * f
                    for i in range(8):
                        epi.append(f"v_mul_f32 v{a+i}, v{V_M}, v{a+i}")
                    for i in range(4):
                        epi.append(f"v_cvt_pk_bf16_f32 v{V_QB+4*f+i}, v{a+2*i}, v{a+2*i+1}")
            if os.environ.get("NOST"):
                epi = [o for o in epi if not o.startswith("buffer_store")]
        if kind == "v" and x == 0 and cur == j:
            run_valu(10 ** 6)
        if m % 2 == 0:
            p.touch([ring.reg(m + 1) + k for k in range(4)])
        if kind == "k":
            S = vr(V_S[j % 2], 16)
            p.I(f"v_mfma_f32_32x32x16_bf16 {S}, {vr(ring.reg(m), 4)}, {vr(V_Q + 4 * x, 4)}, {S if x else '0'}")
        else:
            h, mb = x // 4, x % 4
            acc = vr(V_O + 16 * mb, 16)
            p.I(f"v_mfma_f32_32x32x16_bf16 {acc}, {vr(ring.reg(m), 4)}, {vr(V_S[j % 2] + 4 * h, 4)}, {'0' if (j == 0 and h == 0) else acc}")
        if q and q[0].startswith("BR"):
            run_valu(1)
        ring.fill(m, maxn=2)
        for i, s0 in start_at.items():
            if s0 == m:
                assert not q
                q += max_ops(i) + [f"BR {i}"] + exp_ops(i)
                cur = i
        if q:
            slots = max(1, end_at[cur] - m)
            tot = sum(cost(o) for o in q if not o.startswith("BR"))
            run_valu(-(-tot // slots))
        if SPREAD and kind == "k" and SP0 <= j < SP0 + 8 and x == 3:
            f = j - SP0
            if f % 4 == 0:
                p.I(f"s_sub_u32 s{S_T2}, s{S_OBASE}, {4*32768 - (f // 4) * 16384}")
            p.I(f"buffer_store_dwordx4 {vr(V_QB + 4*f, 4)}, v{V_ST}, {sr(SRD_X,4)}, s{S_T2} offen offset:{(f % 4)*1024} {STFLAGS}")
        if kind == "k" and j == PUBJ and x == 1:
            p.I(f"s_cmp_eq_u32 s{S_HEADCNT}, 0")
            p.I("s_cbranch_scc1 L_A_nopub")
            t_keep = p.t
            p.raw("  s_waitcnt vmcnt(0)")
            p.I(f"s_add_u32 s{S_T0}, s{S_PUB}, 512")
            flag_store(p, S_T0)
            p.label("L_A_nopub")
            p.t = t_keep
        if kind == "v" and j == 15 and x == 1:
            p.I(f"v_add_f32 v{V_L}, v{V_L}, v{V_L+1}")
            p.I(f"v_mov_b32 v{V_T}, v{V_L}")
            p.I(f"v_permlane32_swap_b32 v{V_T}, v{V_L}")
            p.I(f"v_add_f32 v{V_L}, v{V_L}, v{V_T}")
            p.I(f"v_rcp_f32 v{V_M}, v{V_L}")
        if kind == "v" and j == 15 and x >= 2:
            for k in range(6):
                r = (x - 2) * 6 + k
                if r < 32:
                    p.I(f"v_mov_b32 v{V_Q+r}, v{V_QB+r}")
        if epi is not None and m >= nseq - 7:
            for _ in range(16):
                if epi:
                    p.I(epi.pop(0))
        if m in (119, 247):
            stamp(p, 3 if m == 119 else 4)
    ring.fill(nseq - 1, maxn=6, cap=99)
    while epi:
        p.I(epi.pop(0))
    assert ring.regs[nseq:nseq + 6] == entry_regs
    assert (ak.hi, av.hi) == ent, ((ak.hi, av.hi), ent)
    p.I(f"s_add_u32 s{S_OBASE}, s{S_OBASE}, {4*32768}")
    p.I(f"s_mov_b32 s{S_HEADCNT}, 1")
    p.I(f"s_mov_b32 s{SRD_X+2}, s{SRD_WS+2}")
    p.I(f"s_mov_b32 s{S_SEG}, {scheds[0].at}")
    for c in range(1, NCLS):
        p.I(f"s_cmp_eq_u32 s{S_CLS}, {c}")
        p.I(f"s_cselect_b32 s{S_SEG}, {scheds[c].at}, s{S_SEG}")
    loader_setup(p, A_R, "o")
    p.wait(lgkm=0)
    if STAMP in (1, 2):
        for i in range(4):
            p.I(f"s_mov_b32 s{S_STAMP+10+i}, s{S_STAMP+6+i}")
    p.flush_hazards()
    p.I("s_branch L_A_head")
    for c, sc in enumerate(scheds):
        if sc.at < 16:
            assert sum(1 for x in scheds if x.at == sc.at) == 1
            p.label(f"L_A_seg{sc.at}")
            p.reset_state()
            p.I(f"s_mov_b64 {sr(S_SRET,2)}, vcc")
            ld = Loader(p, A_R, f"a1c{c}")
            for s in range(sc.seg, sc.seg_end):
                ld.wait_for(s)
                p.I("s_barrier")
                ld.issue_at(sc, "A", s)
            p.I(f"s_mov_b64 vcc, {sr(S_SRET,2)}")
            p.flush_hazards()
            p.I(f"s_branch L_A_segb{sc.at}")
    p.label("L_A_tail")
    p.reset_state()
    p.nop(12)
    for o in epi_ops():
        p.I(o)
    for c in range(1, NCLS):
        p.I(f"s_cmp_eq_u32 s{S_CLS}, {c}")
        p.I(f"s_cbranch_scc1 L_A_s2c{c}")
    for c, sc in enumerate(scheds):
        if c:
            p.label(f"L_A_s2c{c}")
        p.reset_state()
        p.nop(2)
        ld = Loader(p, A_R, f"a2c{c}")

        def pub():
            p.wait(vm=ld.cnt)
            p.I(f"s_add_u32 s{S_T0}, s{S_PUB}, {3*512}")
            flag_store(p, S_T0, ld.I)
            stamp(p, 7)
        early = any(e.gate == 3 and e.at <= sc.tail0 + 1 for e in sc.issued)
        if early:
            pub()
        if sc.pre_tail:
            for e in sc.pre_tail:
                ld.issue(e)
        for s in range(sc.tail0, sc.n):
            ld.wait_for(s)
            p.I("s_barrier")
            ld.issue_at(sc, "A", s)
            if s == sc.tail0 and not early:
                pub()
        if STAMP in (1, 2):
            p.I(f"s_cmp_lg_u32 s{S_WAVE}, 0")
            p.I("s_cbranch_scc1 L_exit")
            stamp_store(p, 8, 1)
        p.I("s_endpgm")

    for i in stubs:
        p.label(f"L_A_stub{i}")
        p.raw(f"  s_call_b64 {sr(S_RET,2)}, L_A_fix{i % 2}")
        p.raw(f"  s_branch L_A_back{i}")
    for par in range(2):
        S, Pp = V_S[par], V_S[1 - par]
        p.label(f"L_A_fix{par}")
        p.reset_state()
        p.nop(16)
        p.I(f"s_mov_b32 s{S_THR}, 0xff800000")
        for k in range(16):
            p.I(f"v_sub_f32 v{S+k}, v{S+k}, v{V_M}")
        p.I(f"v_max3_f32 v{V_MX}, v{S}, v{S+1}, v{S+2}")
        for k in range(3, 15, 2):
            p.I(f"v_max3_f32 v{V_MX}, v{V_MX}, v{S+k}, v{S+k+1}")
        p.I(f"v_max_f32 v{V_MX}, v{V_MX}, v{S+15}")
        p.I(f"v_mov_b32 v{V_T}, v{V_MX}")
        p.I(f"v_permlane32_swap_b32 v{V_T}, v{V_MX}")
        p.I(f"v_max_f32 v{V_MX}, v{V_MX}, v{V_T}")
        p.I(f"v_ceil_f32 v{V_MX}, v{V_MX}")
        p.I(f"s_cmp_eq_u32 s{S_FIRST}, 1")
        p.I(f"s_cbranch_scc1 L_A_fixa{par}")
        p.I(f"v_max_f32 v{V_MX}, 0, v{V_MX}")
        p.label(f"L_A_fixa{par}")
        p.nop(2)
        for k in range(16):
            p.I(f"v_sub_f32 v{S+k}, v{S+k}, v{V_MX}")
        p.I(f"v_add_f32 v{V_M}, v{V_M}, v{V_MX}")
        p.I(f"s_cbranch_scc1 L_A_fixd{par}")
        p.I(f"v_exp_f32 v{V_MX}, -v{V_MX}")
        for k in range(2):
            p.I(f"v_mul_f32 v{V_L+k}, v{V_L+k}, v{V_MX}")
        for k in range(64):
            p.I(f"v_mul_f32 v{V_O+k}, v{V_O+k}, v{V_MX}")
        for k in range(8):
            r = Pp + k
            p.I(f"v_lshlrev_b32 v{V_T}, 16, v{r}")
            p.I(f"v_and_b32 v{r}, 0xffff0000, v{r}")
            p.I(f"v_mul_f32 v{V_T}, v{V_T}, v{V_MX}")
            p.I(f"v_mul_f32 v{r}, v{r}, v{V_MX}")
            p.I(f"v_cvt_pk_bf16_f32 v{r}, v{V_T}, v{r}")
        p.label(f"L_A_fixd{par}")
        p.nop(4)
        p.raw(f"  s_setpc_b64 {sr(S_RET,2)}")


def epi_ops():
    ops = []
    for f in range(8):
        a = V_O + 8 * f
        for i in range(8):
            ops.append(f"v_mul_f32 v{a+i}, v{V_M}, v{a+i}")
        for i in range(4):
            ops.append(f"v_cvt_pk_bf16_f32 v{a+i}, v{a+2*i}, v{a+2*i+1}")
        if f % 4 == 0:
            ops.append(f"s_add_u32 s{S_T0}, s{S_OBASE}, {(f // 4) * 16384}")
        ops.append(f"buffer_store_dwordx4 {vr(a,4)}, v{V_ST}, {sr(SRD_WS,4)}, s{S_T0} offen offset:{(f % 4)*1024} {STFLAGS}")
    return ops


G_R = 8
G_AX = 1
G_AW = 5
G_AWO = 7
G_AO = G_R + LT + 7
G_ACC = 64
G_XF = 128
G_B = 128
G_W = [128, 144]
G_FR = 40
G_FR2 = 160


def gen_G_setup2(p):
    loader_setup(p, G_R, "o")
    scalars2(p)
    tr_lane_base(p, 40, 41, 42)
    add_pi(p, 40, 40, 42)
    p.I("v_lshrrev_b32 v43, 5, v0")
    p.I(f"v_lshl_add_u32 v{G_AWO}, v43, 10, v40")
    p.I(f"s_and_b32 s{S_T0}, s{S_G}, 1")
    p.I(f"s_lshl_b32 s{S_T0}, s{S_T0}, 6")
    p.I(f"v_xor_b32 v{G_AWO}, s{S_T0}, v{G_AWO}")
    p.I(f"s_lshr_b32 s{S_T0}, s{S_G}, 1")
    p.I(f"s_lshl_b32 s{S_T0}, s{S_T0}, 9")
    p.I(f"v_add_u32 v{G_AWO}, s{S_T0}, v{G_AWO}")
    p.I(f"v_lshlrev_b32 v{G_AO}, 4, v0")
    p.I(f"v_lshl_add_u32 v{G_AW}, v43, 11, v40")
    p.I(f"v_xor_b32 v{G_AW+1}, 64, v{G_AW}")
    p.I(f"v_bfe_u32 v42, v0, 1, 3")
    p.I(f"v_xor_b32 v42, v42, v43")
    p.I(f"v_lshlrev_b32 v42, 4, v42")
    p.I(f"v_and_b32 v40, 31, v0")
    p.I(f"v_lshlrev_b32 v40, 7, v40")
    p.I(f"v_add3_u32 v{G_AX}, v40, v42, s{S_M0B}")
    for i in range(1, 4):
        p.I(f"v_xor_b32 v{G_AX+i}, {i*32}, v{G_AX}")


def gen_reset(p, tag):
    p.I(f"s_cmp_lg_u32 s{S_WAVE}, 4")
    p.I(f"s_cbranch_scc1 L_G_norst{tag}")
    p.I(f"s_lshl_b32 s{S_T0}, s{S_B}, 2")
    p.I(f"s_add_u32 s{S_T0}, s{S_T0}, s{S_HG}")
    p.I(f"s_lshl_b32 s{S_T0}, s{S_T0}, 11")
    p.I(f"s_lshl_b32 s{S_T1}, s{S_P}, 2")
    p.I(f"s_add_u32 s{S_T0}, s{S_T0}, s{S_T1}")
    p.I(f"s_add_u32 s{S_T0}, s{S_T0}, {WS_F1}")
    p.I(f"v_lshlrev_b32 v48, 7, v0")
    p.I(f"v_add_u32 v48, s{S_T0}, v48")
    p.I(f"s_lshl_b32 s{S_T0}, s{S_B}, 2")
    p.I(f"s_add_u32 s{S_T0}, s{S_T0}, s{S_P}")
    p.I(f"s_lshl_b32 s{S_T0}, s{S_T0}, 11")
    p.I(f"s_lshl_b32 s{S_T1}, s{S_HG}, 2")
    p.I(f"s_add_u32 s{S_T0}, s{S_T0}, s{S_T1}")
    p.I(f"s_add_u32 s{S_T0}, s{S_T0}, {WS_F2 - 16*128}")
    p.I(f"v_lshlrev_b32 v49, 7, v0")
    p.I(f"v_add_u32 v49, s{S_T0}, v49")
    p.I("v_cmp_gt_u32 vcc, 16, v0")
    p.I("v_cndmask_b32 v48, v49, v48, vcc")
    p.I("v_mov_b32 v49, 0")
    p.I(f"s_mov_b64 {sr(S_EX,2)}, exec")
    p.I("s_mov_b32 exec_hi, 0")
    p.raw(f"  buffer_store_dword v49, v48, {sr(SRD_WS,4)}, 0 offen sc1")
    p.I(f"s_mov_b64 exec, {sr(S_EX,2)}")
    p.label(f"L_G_norst{tag}")


def gen_reset_done(p, tag):
    p.I(f"s_cmp_lg_u32 s{S_WAVE}, 4")
    p.I(f"s_cbranch_scc1 L_G_nord{tag}")
    p.I("v_mov_b32 v49, 1")
    p.I(f"s_lshl_b32 s{S_T0}, s{S_B}, 4")
    p.I(f"v_mov_b32 v48, s{S_T0}")
    p.I(f"s_mov_b64 {sr(S_EX,2)}, exec")
    p.I("s_mov_b64 exec, 1")
    p.raw(f"  buffer_atomic_add v49, v48, {sr(SRD_DBG,4)}, 0 offen sc1")
    p.I(f"s_mov_b64 exec, {sr(S_EX,2)}")
    p.label(f"L_G_nord{tag}")


def gen_G_class(p, c, sc):
    tag = f"c{c}"
    ld = Loader(p, G_R, f"g{tag}")
    awo, ao = AddrSet(p, [G_AWO]), AddrSet(p, [G_AO])
    aw, ax = AddrSet(p, [G_AW, G_AW + 1]), AddrSet(p, [G_AX + i for i in range(4)])
    by = {(e.kind, e.idx): e for e in sc.ents}

    def issue_at(s):
        ld.issue_at(sc, "G", s)

    def handoff():
        p.I(f"s_lshl_b32 s{S_T0}, s{S_G}, 13")
        p.I(f"s_add_u32 s{S_T0}, s{S_T0}, {HSLOT*16384}")
        p.I(f"v_add_u32 v48, s{S_T0}, v{G_R+LOV}")
        for mb in range(4):
            for h in range(2):
                p.I(f"ds_write_b128 v48, {vr(G_ACC + 16*mb + 4*h, 4)} offset:{(2*mb+h)*1024}")

    wbuf = {u: 128 + 16 * i for i, u in enumerate(PRE)}
    for u in range(16):
        if u not in wbuf:
            used = {wbuf[v] for v in wbuf if v >= u - 1}
            wbuf[u] = [b for b in range(128, 256, 16) if b not in used][0]

    def read_w(e):
        off = awo.to(e.slot)
        for s4 in range(4):
            r = wbuf[e.idx] + 4 * s4
            p.I(f"ds_read_b64_tr_b16 {vr(r,2)}, v{G_AWO} offset:{off + s4*4096}")
            p.I(f"ds_read_b64_tr_b16 {vr(r+2,2)}, v{G_AWO} offset:{off + s4*4096 + 2048}")

    stamp(p, 0)
    gen_reset(p, tag)
    issue_at(-1)
    gen_G_setup2(p)
    if PRIO_G:
        p.I(f"s_setprio {PRIO_G}")
    nm = [1]

    def mark():
        if nm[0] < 10:
            stamp(p, nm[0])
            nm[0] += 1

    s = 0
    first_o = True
    while s < sc.n:
        name, idx = sc.steps[s]
        if name in ("QA", "K"):
            ld.wait_for(s, **({"lgkm": 0} if p.lgkm else {}))
            p.I("s_barrier")
            if (name == "QA" and idx == 0) or (name == "K" and idx % 8 == 0):
                mark()
            for e in sc.ents:
                if e.kind == "wp" and e.need == s:
                    read_w(e)
                if hasattr(e, "reg") and e.wat == s:
                    p.I(f"s_add_u32 s{S_T0}, s{S_M0B}, {e.slot * 16384}")
                    p.I(f"v_add_u32 v48, s{S_T0}, v{G_R+LOV}")
                    for j in range(4):
                        p.I(f"ds_write_b128 v48, {vr(e.reg + 4*j, 4)} offset:{j*1024}")
            if s == 2:
                gen_reset_done(p, tag)
            if s == sc.ka0 + 4:
                p.I(f"s_lshl_b32 s{S_T0}, s{S_B}, 4")
                p.I(f"v_mov_b32 v48, 0")
                ld.I(f"buffer_load_dword v{G_R+LDPOLL}, v48, {sr(SRD_DBG,4)}, s{S_T0} offen sc1")
            if s == sc.ka0 + 14:
                p.I(f"v_cmp_gt_u32 vcc, 16, v{G_R+LDPOLL}")
                p.I(f"s_cbranch_vccz L_dok{tag}")
                t_keep, saved, ck = p.t, list(p.vm), ld.cnt
                ld.spin("d", 0)
                p.label(f"L_dok{tag}")
                p.t, p.vm, ld.cnt = t_keep, saved, ck
            issue_at(s)
            if name == "K" and WPF >= 0 and WPF <= idx < WPF + 128 // WPN:
                if idx == WPF:
                    p.I(f"s_lshr_b32 s{S_T2}, s2, 3")
                    p.I(f"s_lshl_b32 s{S_T2}, s{S_T2}, 15")
                    p.I(f"s_lshl_b32 s{S_T0}, s{S_HG}, 20")
                    p.I(f"s_add_u32 s{S_T2}, s{S_T2}, s{S_T0}")
                    p.I(f"s_lshl_b32 s{S_T0}, s{S_G}, 13")
                    p.I(f"s_add_u32 s{S_T2}, s{S_T2}, s{S_T0}")
                for k in range(WPN):
                    p.raw(f"  s_buffer_load_dword s101, {sr(SRD_WO,4)}, s{S_T2} offset:{((idx - WPF) * WPN + k) * 64}")
            s += 1
        else:
            s0 = s
            n = 0
            while s + n < sc.n and sc.steps[s + n][0] == "O":
                n += 1
            o0 = [e.idx for e in sc.ents if e.kind == "o" and e.need == s0][0]
            fz = first_o
            first_o = False

            def open_u(u):
                ld.wait_for(s0 + u, lgkm=0)
                p.I("s_barrier")
                if u == 0 or (o0 + u) in (8, 12):
                    mark()
                if ("wo", o0 + u) in by:
                    read_w(by[("wo", o0 + u)])

            def item(u, s4, mb):
                def f(reg):
                    off = ao.to(by[("o", o0 + u)].slot) + mb * 4096 + s4 * 1024
                    p.I(f"ds_read_b128 {vr(reg,4)}, v{G_AO} offset:{off}")
                return f

            def mf(u, s4, mb, reg):
                acc = vr(G_ACC + 16 * mb, 16)
                cin = "0" if (fz and u == 0 and s4 == 0) else acc
                p.I(f"v_mfma_f32_32x32x16_bf16 {acc}, {vr(wbuf[o0 + u] + 4*s4, 4)}, {vr(reg,4)}, {cin}")
            oring = [40 + 4 * i for i in range(6)] + ([8 + 4 * i for i in range(4)] if s0 + n == sc.n else [])

            class RG(FragRing):
                def reg(self, i):
                    return oring[i % len(oring)]
            gemm_phase(p, n, open_u, item, mf, 0, len(oring), cls=RG)
            s += n
    while nm[0] < 10:
        mark()
    p.flush_hazards()
    p.I("s_branch L_G_final")


def gen_G_final(p):
    p.label("L_G_final")
    p.reset_state()
    stamp(p, 10)
    SG = S_G
    OV, PA, POLL = G_R + LOV, G_R + LPA, G_R + LPOLL
    p.I(f"s_lshl_b32 s{S_T0}, s{S_B}, 2")
    p.I(f"s_add_u32 s{S_T2}, s{S_T0}, s{S_P}")
    p.I(f"s_lshl_b32 s{S_T3}, s{S_T2}, 18")
    p.I(f"s_add_u32 s{S_T3}, s{S_T3}, {WS_PART}")
    p.I(f"s_add_u32 s{S_T3}, s{S_T3}, s{S_M0B}")
    p.I(f"s_lshl_b32 s{S_T2}, s{S_T2}, 11")
    p.I(f"s_add_u32 s{S_T2}, s{S_T2}, {WS_F2}")
    p.I(f"s_lshl_b32 s{S_T0}, s{SG}, 7")
    p.I(f"s_add_u32 s{S_T2}, s{S_T2}, s{S_T0}")
    p.I(f"s_lshl_b32 s{S_T1}, s{S_HG}, 14")
    p.I(f"s_add_u32 s{S_DS}, s{S_T3}, s{S_T1}")
    for d in range(4):
        p.I(f"s_cmp_eq_u32 s{S_HG}, {d}")
        p.I(f"s_cbranch_scc1 L_G_own{d}")
        for j in range(4):
            p.I(f"buffer_store_dwordx4 {vr(G_ACC + 16*d + 4*j, 4)}, v{OV}, {sr(SRD_WS,4)}, s{S_DS} offen offset:{j*1024} {STFLAGS}")
        p.I(f"s_branch L_G_nx{d}")
        p.label(f"L_G_own{d}")
        for k in range(16):
            p.I(f"v_mov_b32 v{G_B+k}, v{G_ACC+16*d+k}")
        p.label(f"L_G_nx{d}")
        if d < 3:
            p.I(f"s_add_u32 s{S_DS}, s{S_DS}, 65536")
    p.I(f"v_lshlrev_b32 v49, 7, v{PA}")
    p.I(f"s_lshl_b32 s{S_T1}, s{S_HG}, 2")
    p.I(f"s_add_u32 s{S_T0}, s{S_T2}, s{S_T1}")
    p.I("v_mov_b32 v48, 1")
    p.I(f"s_mov_b64 {sr(S_EX,2)}, exec")
    p.I("s_mov_b64 exec, 15")
    p.wait(vm=0)
    p.I(f"buffer_store_dword v48, v49, {sr(SRD_WS,4)}, s{S_T0} offen sc1")
    p.I(f"s_mov_b64 exec, {sr(S_EX,2)}")
    stamp(p, 11)
    p.I(f"s_lshl_b32 s{S_T0}, s{S_HG}, 9")
    p.I(f"s_add_u32 s{S_T2}, s{S_T2}, s{S_T0}")
    p.I(f"v_cmp_ne_u32 {sr(S_EX,2)}, s{S_T1}, v{PA}")
    p.I(f"s_mov_b32 s{S_SPIN}, {SPIN}")
    p.label("L_G_sp2")
    p.I(f"buffer_load_dword v{POLL}, v{PA}, {sr(SRD_WS,4)}, s{S_T2} offen sc1")
    p.I(f"v_cmp_ne_u32 vcc, 1, v{POLL}")
    p.I(f"s_and_b64 vcc, vcc, {sr(S_EX,2)}")
    p.I("s_cbranch_vccz L_G_ok2")
    if int(os.environ.get("FSL", "0")):
        p.I(f"s_sleep {os.environ['FSL']}")
    p.I(f"s_sub_u32 s{S_SPIN}, s{S_SPIN}, 1")
    p.I(f"s_cmp_lg_u32 s{S_SPIN}, 0")
    p.I("s_cbranch_scc1 L_G_sp2")
    p.label("L_G_ok2")
    stamp(p, 12)
    p.I(f"s_lshl_b32 s{S_T0}, s{S_HG}, 16")
    p.I(f"s_add_u32 s{S_T3}, s{S_T3}, s{S_T0}")
    for i in range(3):
        p.I(f"s_add_u32 s{S_T0}, s{S_HG}, {i+1}")
        p.I(f"s_and_b32 s{S_T0}, s{S_T0}, 3")
        p.I(f"s_lshl_b32 s{S_T0}, s{S_T0}, 14")
        p.I(f"s_add_u32 s{S_T0}, s{S_T0}, s{S_T3}")
        for j in range(4):
            p.I(f"buffer_load_dwordx4 {vr(G_B + 16*(i+1) + 4*j, 4)}, v{OV}, {sr(SRD_WS,4)}, s{S_T0} offen offset:{j*1024} sc1")
    p.I("v_and_b32 v48, 31, v0")
    p.I("v_lshlrev_b32 v48, 10, v48")
    p.I("v_lshrrev_b32 v49, 5, v0")
    p.I("v_lshl_add_u32 v48, v49, 4, v48")
    p.I(f"s_lshl_b32 s{S_T0}, s{S_B}, 17")
    p.I(f"s_lshl_b32 s{S_T1}, s{S_HG}, 15")
    p.I(f"s_add_u32 s{S_T0}, s{S_T0}, s{S_T1}")
    p.I(f"s_lshl_b32 s{S_T1}, s{S_P}, 8")
    p.I(f"s_add_u32 s{S_T0}, s{S_T0}, s{S_T1}")
    p.I(f"s_lshl_b32 s{S_T1}, s{SG}, 6")
    p.I(f"s_add_u32 s{S_T0}, s{S_T0}, s{S_T1}")
    for i in range(3):
        for k in range(16):
            p.I(f"v_add_f32 v{G_B+k}, v{G_B+k}, v{G_B+16*(i+1)+k}")
    for k in range(8):
        p.I(f"v_cvt_pk_bf16_f32 v{G_B+k}, v{G_B+2*k}, v{G_B+2*k+1}")
    p.I(f"buffer_store_dwordx4 {vr(G_B,4)}, v48, {sr(SRD_OUT,4)}, s{S_T0} offen")
    p.I(f"buffer_store_dwordx4 {vr(G_B+4,4)}, v48, {sr(SRD_OUT,4)}, s{S_T0} offen offset:32")
    if STAMP in (1, 2):
        p.wait(vm=0)
        stamp(p, 13)
        p.I(f"s_cmp_lg_u32 s{S_WAVE}, 4")
        p.I("s_cbranch_scc1 L_exit")
        if os.environ.get("DBGOUT"):
            p.raw("  s_waitcnt lgkmcnt(0)")
            p.I("s_mov_b64 exec, 1")
            words = [1, 2, 3, 5, 6, 7, 9, 10, 11, 13, 14, 15]
            p.I(f"s_not_b32 s{S_T0}, s{S_STAMP}")
            p.I(f"v_mov_b32 v32, s{S_T0}")
            p.I(f"v_mov_b32 v30, {4*words[0]}")
            p.I(f"buffer_atomic_umax v32, v30, {sr(SRD_DBG,4)}, 0 offen sc1")
            for w, i in zip(words[1:], [0, 1, 2, 3, 4, 5, 6, 7, 10, 12, 13]):
                p.nop(2)
                p.I(f"v_mov_b32 v32, s{S_STAMP+2*i}")
                p.I(f"v_mov_b32 v30, {4*w}")
                p.I(f"buffer_atomic_umax v32, v30, {sr(SRD_DBG,4)}, 0 offen sc1")
        else:
            stamp_store(p, 14, 0)
    p.I("s_endpgm")


def main():
    out = sys.argv[1]
    scheds = [Sched(c) for c in CLASSES]
    if os.environ.get("SHOW"):
        for sc in scheds:
            print(" ".join(f"{e.kind}{e.idx}@{e.at}{e.who}>{e.need}[{e.slot}]" for e in sc.issued))
    p = Prog()
    prologue(p, 256)
    p.I(f"s_cmp_lt_u32 s{S_WAVE}, 4")
    p.I("s_cbranch_scc1 L_A")
    loader_setup(p, G_R, "xwkv")
    for c in range(1, NCLS):
        p.I(f"s_cmp_eq_u32 s{S_CLS}, {c}")
        p.I(f"s_cbranch_scc1 L_G_cls{c}")
    for c in range(NCLS):
        if c:
            p.label(f"L_G_cls{c}")
        p.reset_state()
        p.nop(2)
        gen_G_class(p, c, scheds[c])
    gen_G_final(p)
    p.label("L_A")
    p.reset_state()
    gen_A(p, scheds)
    p.label("L_exit")
    p.I("s_endpgm")
    s = "; @launch grid=(256,1,1) block=(512,1,1) lds=163840\n"
    s += '.amdgcn_target "amdgcn-amd-amdhsa--gfx950"\n.text\n'
    s += kernel_header(KNAME) + p.text()
    s += '.section .rodata,"a"\n'
    s += kernel_desc(KNAME, 256, 102, 256)
    open(out, "w").write(s)
    print("nops inserted:", p.nops_inserted, "lines", len(p.lines))


main()
```

```python
import sys, math, struct, os
from asmlib import Prog, vr, sr, kernel_header, kernel_desc

STAMP = int(os.environ.get("STAMP", "0"))
KVFLAGS = os.environ.get("KVFLAGS", "nt")
AUXFLAGS = os.environ.get("AUXFLAGS", "")
OFLAGS = os.environ.get("OFLAGS", "sc1")
STFLAGS = os.environ.get("STFLAGS", "sc1")
PRIO_A = int(os.environ.get("PRIO_A", "0"))
PRIO_G = int(os.environ.get("PRIO_G", "0"))
ROT = int(os.environ.get("ROT", "1"))
DT = int(os.environ.get("DT", "4"))
CLASSES = eval(os.environ.get("CLASSES", "[dict()]"))
NCLS = len(CLASSES)
KD = int(os.environ.get("KD", "4"))
GLEAD = int(os.environ.get("GLEAD", "2"))
PER = int(os.environ.get("PER", "3"))
KEARLY = int(os.environ.get("KEARLY", "0"))
KNAME = "standalone__mha_block_cached__near_ridge_kernel"
if KVFLAGS == "-":
    KVFLAGS = ""

WS_PART = 16 << 20
WS_STAMP = 32 << 20
WS_F1 = 48 << 20
WS_F2 = 49 << 20
SPIN = "0x20000"
HSLOT = 2


def f32bits(x):
    return struct.unpack("<I", struct.pack("<f", x))[0]


QSCALE = hex(f32bits(math.log2(math.e) / math.sqrt(128.0)))
THR = hex(f32bits(40.0))

S_WAVE = 3
SRD_X, SRD_K, SRD_V, SRD_WQ, SRD_WO, SRD_OUT, SRD_WS, SRD_DBG = 8, 12, 16, 20, 24, 28, 32, 4
S_B, S_H, S_T0, S_T1, S_T2, S_T3 = 36, 37, 38, 39, 56, 57
S_HEADCNT = 58
S_XBASE, S_WQBASE, S_KVBASE, S_OBASE = 59, 60, 61, 62
S_HG = 63
S_RET = 64
S_SCALE, S_THR = 66, 67
S_M0B = 68
S_P = 69
S_CLS = 70
S_BL = 71
S_DS = 54
S_FLAG = 46
S_PUB = 45
S_G = 47
S_C0 = 48
S_WOB = 49
S_OINB = 50
S_SPIN = 51
S_EX = 52
S_FIRST = 44
S_SEG = 43
S_SRET = 40
HOLD = int(os.environ.get("HOLD", "3"))
PRE = eval(os.environ.get("PRE", "[]"))
PRE0, PRED = int(os.environ.get("PRE0", "3")), int(os.environ.get("PRED", "3"))
KPOS = eval(os.environ.get("KPOS", "[]"))
PBF = int(os.environ.get("PBF", "0"))
DTH = int(os.environ.get("DTH", "5"))
KROT = int(os.environ.get("KROT", "1"))
FINE = int(os.environ.get("FINE", "0"))
WPF = int(os.environ.get("WPF", "-1"))
WPN = int(os.environ.get("WPN", "8"))
RES = eval(os.environ.get("RES", "[14,18,22,26,30]"))
RP0, RPD = int(os.environ.get("RP0", "6")), int(os.environ.get("RPD", "4"))
S_KR = 55
PUBJ = int(os.environ.get("PUBJ", "3"))
SPREAD = int(os.environ.get("SPREAD", "0"))
SP0 = int(os.environ.get("SP0", "1"))
S_STAMP = 72


def stamp(p, idx):
    if STAMP in (1, 2):
        p.raw(f"  {'s_memtime' if STAMP == 2 else 's_memrealtime'} s[{S_STAMP+2*idx}:{S_STAMP+1+2*idx}]")


def stamp_store(p, n, kern):
    p.raw("  s_waitcnt lgkmcnt(0)")
    p.I(f"s_lshl_b32 s{S_T0}, s2, 8")
    p.I(f"s_add_u32 s{S_T0}, s{S_T0}, {WS_STAMP + kern*65536}")
    p.I("v_mov_b32 v30, 0")
    for i in range(n):
        p.I(f"v_mov_b32 v32, s{S_STAMP+2*i}")
        p.I(f"v_mov_b32 v33, s{S_STAMP+1+2*i}")
        p.I(f"buffer_store_dwordx2 v[32:33], v30, {sr(SRD_WS,4)}, s{S_T0} offen offset:{8*i}")
        p.nop(2)


def prologue(p, nwg):
    p.I(f"s_cmp_ge_u32 s2, {nwg}")
    p.I("s_cbranch_scc1 L_exit")
    p.I("s_load_dwordx8 s[40:47], s[0:1], 0")
    p.I("s_load_dwordx8 s[48:55], s[0:1], 32")
    p.I("v_lshrrev_b32 v1, 6, v0")
    p.I(f"v_readfirstlane_b32 s{S_WAVE}, v1")
    CPF = int(os.environ.get("CPF", "0"))
    if CPF:
        p.I(f"s_cmp_ge_u32 s{S_WAVE}, 4")
        p.I("s_cbranch_scc1 L_nocpf")
        p.raw("  s_getpc_b64 s[96:97]")
        p.label("L_pc")
        p.raw(f"  s_sub_u32 s96, s96, L_pc-{KNAME}")
        p.raw("  s_subb_u32 s97, s97, 0")
        if CPF == 1:
            p.I(f"s_lshl_b32 s{S_T0}, s{S_WAVE}, 6")
            for k in range(8):
                p.raw(f"  s_load_dword s101, s[96:97], s{S_T0} offset:{256 + k*256}")
            p.I(f"s_lshr_b32 s{S_T1}, s2, 3")
            p.I(f"s_lshl_b32 s{S_T1}, s{S_T1}, 8")
            p.I(f"s_add_u32 s{S_T0}, s{S_T0}, s{S_T1}")
            for k in range(5):
                if k == 4:
                    p.raw(f"  s_min_u32 s{S_T0}, s{S_T0}, L_exit-{KNAME}-32768")
                p.raw(f"  s_load_dword s101, s[96:97], s{S_T0} offset:{k*8192}")
        else:
            p.I("v_lshlrev_b32 v2, 6, v0")
            p.I(f"s_bfe_u32 s{S_T0}, s2, {(2 << 16) | 3}")
            p.I(f"s_min_u32 s{S_T0}, s{S_T0}, 2")
            p.I(f"s_mul_i32 s{S_T0}, s{S_T0}, 12288")
            p.I(f"v_add_u32 v2, s{S_T0}, v2")
            p.raw(f"  v_min_u32 v2, L_exit-{KNAME}, v2")
            p.raw("  global_load_dword v255, v2, s[96:97]")
        p.label("L_nocpf")
    p.I("v_and_b32 v0, 63, v0")
    p.I(f"s_bfe_u32 s{S_BL}, s2, {(3 << 16) | 3}")
    p.I(f"s_and_b32 s{S_T0}, s2, 1")
    p.I(f"s_lshl_b32 s{S_T0}, s{S_T0}, 3")
    p.I(f"s_add_u32 s{S_B}, s{S_T0}, s{S_BL}")
    p.I(f"s_bfe_u32 s{S_HG}, s2, {(2 << 16) | 1}")
    p.I(f"s_lshr_b32 s{S_P}, s2, 6")
    p.I(f"s_lshl_b32 s{S_T0}, s{S_HG}, 3")
    p.I(f"s_add_u32 s{S_H}, s{S_T0}, s{S_P}")
    p.I(f"s_and_b32 s{S_CLS}, s{S_BL}, {NCLS-1}")
    p.raw("  s_waitcnt lgkmcnt(0)")
    for srd, src, size in ((SRD_X, 40, 2 << 20), (SRD_WQ, 46, 4 << 20), (SRD_K, 42, 64 << 20), (SRD_V, 44, 64 << 20),
                           (SRD_WO, 48, 4 << 20), (SRD_OUT, 50, 2 << 20), (SRD_DBG, 52, 256), (SRD_WS, 54, 256 << 20)):
        p.I(f"s_mov_b32 s{srd}, s{src}")
        p.I(f"s_and_b32 s{srd+1}, s{src+1}, 0xffff")
        p.I(f"s_mov_b32 s{srd+2}, {size}")
        p.I(f"s_mov_b32 s{srd+3}, 0x20000")
    WSB = int(os.environ.get("WSB", "0")) << 20
    if WSB:
        p.I(f"s_add_u32 s{SRD_WS}, s{SRD_WS}, {WSB}")
        p.I(f"s_addc_u32 s{SRD_WS+1}, s{SRD_WS+1}, 0")
        p.I(f"s_mov_b32 s{SRD_WS+2}, {(256 << 20) - WSB}")
    p.I(f"s_and_b32 s{S_G}, s{S_WAVE}, 3")
    p.I(f"s_lshl_b32 s{S_M0B}, s{S_G}, 12")
    if KROT == 1:
        p.I(f"s_lshr_b32 s{S_KR}, s2, 3")
        p.I(f"s_add_u32 s{S_KR}, s{S_KR}, s2")
        p.I(f"s_lshr_b32 s{S_T0}, s2, 6")
        p.I(f"s_add_u32 s{S_KR}, s{S_KR}, s{S_T0}")
    else:
        p.I(f"s_mov_b32 s{S_KR}, s{S_BL}")
    p.I(f"s_lshl_b32 s{S_XBASE}, s{S_B}, 17")
    p.I(f"s_lshl_b32 s{S_WQBASE}, s{S_H}, 8")
    p.I(f"s_lshl_b32 s{S_T0}, s{S_B}, 5")
    p.I(f"s_add_u32 s{S_T0}, s{S_T0}, s{S_H}")
    p.I(f"s_lshl_b32 s{S_KVBASE}, s{S_T0}, 17")
    p.I(f"s_lshl_b32 s{S_OBASE}, s{S_T0}, 15")
    if ROT == 1:
        p.I(f"s_lshl_b32 s{S_T0}, s{S_P}, 1")
        p.I(f"s_add_u32 s{S_C0}, s{S_BL}, s{S_T0}")
    elif ROT == 2:
        p.I(f"s_add_u32 s{S_T0}, s{S_BL}, s{S_P}")
        p.I(f"s_and_b32 s{S_T0}, s{S_T0}, 1")
        p.I(f"s_lshl_b32 s{S_C0}, s{S_T0}, 2")
    else:
        p.I(f"s_mov_b32 s{S_C0}, 0")


def scalars2(p):
    p.I(f"s_lshl_b32 s{S_WOB}, s{S_HG}, 20")
    p.I(f"s_lshl_b32 s{S_T0}, s{S_P}, 8")
    p.I(f"s_add_u32 s{S_WOB}, s{S_WOB}, s{S_T0}")
    p.I(f"s_lshl_b32 s{S_OINB}, s{S_B}, 20")
    p.I(f"s_lshl_b32 s{S_T0}, s{S_HG}, 18")
    p.I(f"s_add_u32 s{S_OINB}, s{S_OINB}, s{S_T0}")
    p.I(f"s_add_u32 s{S_OINB}, s{S_OINB}, s{S_M0B}")
    p.I(f"s_lshl_b32 s{S_T0}, s{S_B}, 2")
    p.I(f"s_add_u32 s{S_T0}, s{S_T0}, s{S_HG}")
    p.I(f"s_lshl_b32 s{S_T0}, s{S_T0}, 11")
    p.I(f"s_lshl_b32 s{S_T1}, s{S_G}, 7")
    p.I(f"s_add_u32 s{S_T0}, s{S_T0}, s{S_T1}")
    p.I(f"s_add_u32 s{S_FLAG}, s{S_T0}, {WS_F1}")
    p.I(f"s_lshl_b32 s{S_T1}, s{S_P}, 2")
    p.I(f"s_add_u32 s{S_PUB}, s{S_FLAG}, s{S_T1}")
    p.I(f"s_mov_b32 s{S_SCALE}, {QSCALE}")


QSL = [(3 * c) % 7 for c in range(8)], [(3 * c + 1) % 7 for c in range(8)], [(3 * c + 2) % 7 for c in range(8)]


def slot_kv(T):
    return [7, 8, 9, 3, 4, 5, 6, 0][T % 8]


class AddrSet:
    def __init__(self, p, regs):
        self.p, self.regs, self.hi = p, regs, 0

    def to(self, slot):
        hi = slot // 4
        if hi != self.hi:
            d = (hi - self.hi) * 65536
            for r in self.regs:
                if d > 0:
                    self.p.I(f"v_add_u32 v{r}, {d}, v{r}")
                else:
                    self.p.I(f"v_subrev_u32 v{r}, {-d}, v{r}")
            self.hi = hi
        return (slot % 4) * 16384


def tr_lane_base(p, dst, t1, t3):
    p.I(f"v_bfe_u32 v{t1}, v0, 2, 2")
    p.I(f"v_bfe_u32 v{dst}, v0, 3, 1")
    p.I(f"v_lshlrev_b32 v{dst}, 6, v{dst}")
    p.I(f"v_lshl_add_u32 v{dst}, v{t1}, 7, v{dst}")
    p.I(f"v_bfe_u32 v{t3}, v0, 4, 1")
    p.I(f"v_lshl_add_u32 v{dst}, v{t3}, 5, v{dst}")


def add_pi(p, dst, src, t3):
    p.I(f"v_and_b32 v{t3}, 1, v0")
    p.I(f"v_lshl_add_u32 v{dst}, v{t3}, 4, v{src}")
    p.I(f"v_bfe_u32 v{t3}, v0, 1, 1")
    p.I(f"v_lshl_add_u32 v{dst}, v{t3}, 3, v{dst}")


class FragRing:
    def __init__(self, p, items, base, n):
        self.p, self.items, self.base, self.n = p, items, base, n
        self.issued = 0

    def reg(self, i):
        return self.base + 4 * (i % self.n)

    def issue_next(self):
        if self.issued >= len(self.items):
            return False
        i = self.issued
        self.items[i](self.reg(i))
        self.issued += 1
        return True


class Pref:
    def __init__(self, p, items, groups, ops):
        self.p, self.items, self.groups, self.ops = p, items, groups, ops
        self.issued = 0
        self.regs = []
        self.busy = {g: -1 for g in groups}
        self.force = {}

    def reg(self, i):
        return self.regs[i]

    def fill(self, m, lim=10 ** 9, maxn=2, cap=15):
        n = 0
        while n < maxn and self.issued < min(lim, len(self.items)):
            i = self.issued
            if len(self.p.lgkm) + self.ops(i) > cap and i > m + 2:
                break
            c = [g for g in self.groups if self.busy[g] <= m and self.force.get(i, g) == g]
            if not c:
                break
            g = min(c, key=lambda g: self.busy[g])
            self.busy[g] = i
            self.regs.append(g)
            self.issued += 1
            self.items[i](g)
            n += 1


LX, LW, LK, LV, LWO, LOV, LPA, LPOLL, LDPOLL, LT = 0, 4, 8, 12, 16, 20, 21, 22, 23, 24


def loader_setup(p, R, which):
    t = lambda i: R + LT + i
    l8, m8, u1, l16, rr, hf, sw, tmp = [t(i) for i in range(8)]
    p.I(f"v_lshrrev_b32 v{l8}, 3, v0")
    p.I(f"v_and_b32 v{m8}, 7, v0")
    p.I(f"v_bfe_u32 v{u1}, v0, 4, 1")
    p.I(f"v_lshrrev_b32 v{l16}, 4, v0")
    p.I(f"v_bfe_u32 v{rr}, v0, 3, 2")
    p.I(f"v_lshrrev_b32 v{hf}, 5, v0")
    p.I(f"v_lshlrev_b32 v{sw}, 2, v{u1}")
    p.I(f"v_xor_b32 v{sw}, v{sw}, v{m8}")
    p.I(f"v_lshlrev_b32 v{sw}, 4, v{sw}")
    for w in which:
        if w == "x":
            p.I(f"s_lshl_b32 s{S_T0}, s{S_G}, 15")
            for j in range(4):
                p.I(f"v_add_u32 v{tmp}, {4*j}, v{l16}")
                p.I(f"v_and_b32 v{tmp}, 7, v{tmp}")
                p.I(f"v_xor_b32 v{tmp}, v{tmp}, v{m8}")
                p.I(f"v_lshlrev_b32 v{tmp}, 4, v{tmp}")
                p.I(f"v_lshl_add_u32 v{tmp}, v{l8}, 10, v{tmp}")
                p.I(f"v_add_u32 v{tmp}, {8*j*1024 - j*1024}, v{tmp}")
                p.I(f"v_add_u32 v{R+LX+j}, s{S_T0}, v{tmp}")
        elif w == "w":
            p.I(f"v_lshl_add_u32 v{tmp}, v{rr}, 13, v{sw}")
            p.I(f"v_lshl_add_u32 v{tmp}, v{hf}, 7, v{tmp}")
            p.I(f"s_lshl_b32 s{S_T0}, s{S_G}, 17")
            p.I(f"v_add_u32 v{tmp}, s{S_T0}, v{tmp}")
            for j in range(4):
                p.I(f"v_add_u32 v{R+LW+j}, {4*j*8192 - j*1024}, v{tmp}")
        elif w == "k":
            for j in range(4):
                p.I(f"v_add_u32 v{tmp}, {2*j}, v{u1}")
                p.I(f"v_xor_b32 v{tmp}, v{tmp}, v{m8}")
                p.I(f"v_lshlrev_b32 v{tmp}, 4, v{tmp}")
                p.I(f"v_lshl_add_u32 v{tmp}, v{rr}, 8, v{tmp}")
                p.I(f"v_lshl_add_u32 v{tmp}, v{hf}, 7, v{tmp}")
                p.I(f"v_add_u32 v{R+LK+j}, s{S_M0B}, v{tmp}")
        elif w == "v":
            p.I(f"v_lshl_add_u32 v{tmp}, v{rr}, 8, v{sw}")
            p.I(f"v_lshl_add_u32 v{tmp}, v{hf}, 7, v{tmp}")
            p.I(f"v_add_u32 v{R+LV}, s{S_M0B}, v{tmp}")
        elif w == "o":
            p.I(f"v_lshl_add_u32 v{tmp}, v{rr}, 10, v{sw}")
            p.I(f"v_lshl_add_u32 v{tmp}, v{hf}, 7, v{tmp}")
            p.I(f"s_lshl_b32 s{S_T0}, s{S_G}, 14")
            p.I(f"v_add_u32 v{tmp}, s{S_T0}, v{tmp}")
            for j in range(4):
                p.I(f"v_add_u32 v{R+LWO+j}, {4*j*1024 - j*1024}, v{tmp}")
            p.I(f"v_lshlrev_b32 v{R+LOV}, 4, v0")
            p.I(f"v_and_b32 v{tmp}, 3, v0")
            p.I(f"v_lshlrev_b32 v{R+LPA}, 2, v{tmp}")


class E:
    def __init__(self, kind, idx, need, slot=None, rel=None, gate=None):
        self.kind, self.idx, self.need, self.slot, self.rel, self.gate = kind, idx, need, slot, rel, gate
        self.free = -1
        self.at = None
        self.who = None


class Sched:
    def __init__(self, cfg):
        npre, mid, at = cfg.get("npre", 0), cfg.get("mid", 0), cfg.get("at", 16)
        self.at = at if mid else 99
        self.steps = []
        ents = []
        st = self.steps

        def ostep(o, n):
            for i in range(n):
                s = len(st)
                g = ({0: 1, 10: 5, 12: 6, 14: 7} if FINE else {0: 1, 8: 3}).get(o + i)
                if o + i not in PRE:
                    ents.append(E("wo", o + i, s, None, s + 1))
                ents.append(E("o", o + i, s, None, s + 1, gate=g))
                st.append(("O", i))
        for c in range(8):
            s = len(st)
            ents.extend([E("x", c, s, QSL[0][c], s + 1), E("w", c, s, QSL[1][c], s + 1), E("wb", c, s + 1, QSL[2][c], s + 2)])
            st += [("QA", 2 * c), ("QA", 2 * c + 1)]
        self.ka0 = len(st)
        kvs = []
        for g in range(32):
            if mid and g == 16 + at:
                self.seg = len(st)
                ostep(0, mid)
                self.seg_end = len(st)
            s = len(st)
            e = E("k" if g % 2 == 0 else "v", g // 2, s, slot_kv(g), None)
            kvs.append(e)
            ents.append(e)
            st.append(("K", g))
        for g, e in enumerate(kvs):
            e.rel = kvs[g + 2].need if g + 2 < 32 else len(st)
            if mid and g == 16 + at - 2:
                e.rel = self.seg
        for i, u in enumerate(PRE):
            n = kvs[PRE0 + PRED * i].need
            ents.append(E("wp", u, n, None, n + 1))
        self.seg1 = kvs[16].need
        self.tail0 = len(st)
        ostep(mid, 16 - mid)
        self.n = len(st)
        ents.sort(key=lambda e: e.need)
        held = [kvs[g] for g in range(16 + at, min(32, 16 + at + HOLD))] if mid else []
        sf = {x: -1 for x in range(10)}
        fixed = [e for e in ents if e.slot is not None]
        for e in ents:
            if e.slot is None:
                def cost(x):
                    if any(h.slot == x and h.need > e.need for h in held):
                        return (2000, 0)
                    nxt = min((f.need for f in fixed if f.slot == x and f.need >= e.need), default=10 ** 6)
                    if sf[x] > e.need - 1:
                        return (1000, 0)
                    return (max(0, (e.rel + 2) - nxt), sf[x])
                e.slot = min(range(10), key=cost)
            e.free = sf[e.slot]
            assert e.free <= e.need - 1, (e.kind, e.idx, e.need, e.free)
            sf[e.slot] = e.rel
        self.ents = ents
        order = list(ents)
        for e in kvs[:npre]:
            order.remove(e)
        order = kvs[:npre] + order
        for e, q in zip(kvs, KPOS):
            order.remove(e)
            order.insert(q, e)
            held.append(e)
        for i, g in enumerate(RES):
            e = kvs[g]
            e.reg = 64 + 16 * i
            e.wat = max(e.free, e.need - 2)
            assert e.wat <= e.need - 1
            e.free = -1
            order.remove(e)
            order.insert(RP0 + RPD * i, e)
            held.append(e)
            e.lneed, e.need = e.need, 10 ** 6
        held0 = list(held)
        held = [h for h in held if self.seg1 < h.need < 10 ** 6]
        self.held = held0
        if held:
            for e in held:
                order.remove(e)
            pos = order.index([e for e in order if e.kind == "wo"][0])
            order[pos:pos] = held
        self.order = order
        for e in order:
            if e.gate == 1:
                e.free = max(e.free, self.seg1 + PUBJ + 1)
            if e.gate == 3:
                e.free = max(e.free, self.tail0)
            if FINE and e.kind == "o" and e.idx >= 8:
                e.free = max(e.free, self.tail0 + 1)
        self._plan()

    def consumer(self, s):
        return "A" if self.steps[s][0] in ("QA", "K", "V") else "G"

    def loader(self, s):
        if s < 0:
            return "G"
        return "G" if self.consumer(s) == "A" else "A"

    def _plan(self):
        order = list(self.order)
        self.pre_tail = []
        for e in list(order):
            if e.kind == "o" and e.idx >= 8 and e.need <= self.tail0 + 1 and any(f.gate == 3 and f.need == self.tail0 for f in self.order):
                order.remove(e)
                e.at, e.who = self.tail0 - 0.5, "A"
                self.pre_tail.append(e)
        if self.pre_tail:
            for e in order:
                if e.kind == "o" and e.idx >= 8:
                    e.free = max(e.free, self.tail0)
        issued = []
        landed = set()
        for s in range(-1, self.n):
            for e in issued:
                if e.need <= s:
                    for f in issued[:issued.index(e) + 1]:
                        landed.add(f)
            nstep = 0
            while order:
                infl = sum(1 for e in issued if e not in landed)
                cand = None
                for i, e in enumerate(order[:12]):
                    if i > 0 and not e.kind in ("o", "wo"):
                        break
                    if e.kind == "o" and any(f.kind == "o" for f in order[:i]):
                        continue
                    if e.free <= s and not (e.gate and e.need > s + GLEAD):
                        cand = e
                        break
                    if e.kind != "o":
                        break
                if cand is None:
                    break
                must = any(f.need <= s + 1 for f in order)
                infl -= sum(1 for e in issued if e in self.held and e not in landed and s - e.at >= 2)
                if (infl >= (DTH if cand.kind in ("k", "v") and s >= self.ka0 else DT) or (nstep >= PER and s >= 0)) and not must:
                    break
                who = self.loader(s)
                if who == "A" and cand.kind in ("k", "v"):
                    break
                nstep += 1
                cand.at, cand.who = s, who
                issued.append(cand)
                order.remove(cand)
            for e in order:
                assert e.need > s + 1 or s == self.n - 1, ("not issued in time", e.kind, e.idx, e.need, s, e.free)
        assert not order
        self.issued = issued + self.pre_tail


class Loader:
    def __init__(self, p, R, tag):
        self.p, self.R, self.tag = p, R, tag
        self.cnt = 0
        self.mark = {}
        self.dchecked = False

    def I(self, t):
        if t.startswith("buffer_"):
            self.cnt += 1
        self.p.I(t)

    def kappa(self, o):
        p = self.p
        if o >= 8 and FINE:
            p.I(f"s_lshl_b32 s{S_T1}, s{S_P}, 1")
            p.I(f"s_add_u32 s{S_T1}, s{S_T1}, {o}")
        else:
            p.I(f"s_add_u32 s{S_T1}, s{S_BL}, {o}")
        p.I(f"s_and_b32 s{S_T1}, s{S_T1}, 7")
        if o >= 8:
            p.I(f"s_add_u32 s{S_T1}, s{S_T1}, 8")

    def spin(self, kind, ev):
        p, R = self.p, self.R
        name = f"{self.tag}{kind}{ev}"
        p.flush_hazards()
        p.I(f"s_mov_b32 s{S_SPIN}, {SPIN}")
        if kind == "d":
            p.I(f"s_lshl_b32 s{S_T0}, s{S_B}, 4")
            p.I(f"v_mov_b32 v{R+LT}, 0")
        else:
            p.I(f"s_add_u32 s{S_T0}, s{S_FLAG}, {ev*512}")
        p.label(f"L_sp_{name}")
        if kind == "d":
            self.I(f"buffer_load_dword v{R+LPOLL}, v{R+LT}, {sr(SRD_DBG,4)}, s{S_T0} offen sc1")
            p.wait(vm=0)
            p.I(f"v_cmp_gt_u32 vcc, 16, v{R+LPOLL}")
        else:
            self.I(f"buffer_load_dword v{R+LPOLL}, v{R+LPA}, {sr(SRD_WS,4)}, s{S_T0} offen sc1")
            p.wait(vm=0)
            p.I(f"v_cmp_ne_u32 vcc, 1, v{R+LPOLL}")
        p.I(f"s_cbranch_vccz L_ok_{name}")
        p.I(f"s_sub_u32 s{S_SPIN}, s{S_SPIN}, 1")
        p.I(f"s_cmp_lg_u32 s{S_SPIN}, 0")
        p.I(f"s_cbranch_scc1 L_sp_{name}")
        p.label(f"L_ok_{name}")

    def issue_at(self, sc, who, s):
        for e in sc.issued:
            if e.who == who and e.at == s:
                self.issue(e)
        for e in sc.issued:
            if e.gate and e.who == who and e.at == s + 1 and sc.loader(s) == who and s > sc.seg1:
                self.p.I(f"s_add_u32 s{S_T0}, s{S_FLAG}, {min(e.gate, 3)*512}")
                self.I(f"buffer_load_dword v{self.R+LPOLL}, v{self.R+LPA}, {sr(SRD_WS,4)}, s{S_T0} offen sc1")
                self.prepolled = e.gate

    def issue(self, e):
        p, R = self.p, self.R
        if e.gate and e.gate > 4:
            name = f"{self.tag}f{e.gate}"
            pl = lambda: self.I(f"buffer_load_dword v{R+LPOLL}, v{R+LPA}, {sr(SRD_WS,4)}, s{S_FLAG} offen offset:1536 sc1")
            p.I(f"s_add_u32 s{S_T0}, s{S_P}, {e.gate - 4}")
            p.I(f"s_and_b32 s{S_T0}, s{S_T0}, 3")
            if getattr(self, "prepolled", 0) != e.gate:
                pl()
            p.I(f"v_cmp_eq_u32 vcc, 1, v{R+LPOLL}")
            p.I(f"s_bitcmp1_b32 vcc_lo, s{S_T0}")
            p.I(f"s_cbranch_scc1 L_ok_{name}")
            keep = (p.t, list(p.vm), self.cnt)
            p.I(f"s_mov_b32 s{S_SPIN}, {SPIN}")
            p.label(f"L_sp_{name}")
            pl()
            p.wait(vm=0)
            p.I(f"v_cmp_eq_u32 vcc, 1, v{R+LPOLL}")
            p.I(f"s_bitcmp1_b32 vcc_lo, s{S_T0}")
            p.I(f"s_cbranch_scc1 L_ok_{name}")
            p.I("s_sleep 1")
            p.I(f"s_sub_u32 s{S_SPIN}, s{S_SPIN}, 1")
            p.I(f"s_cmp_lg_u32 s{S_SPIN}, 0")
            p.I(f"s_cbranch_scc1 L_sp_{name}")
            p.label(f"L_ok_{name}")
            p.t, p.vm, self.cnt = keep
        elif e.gate:
            if getattr(self, "prepolled", 0) == e.gate:
                p.I(f"v_cmp_ne_u32 vcc, 1, v{R+LPOLL}")
                p.I(f"s_cbranch_vccz L_ok_{self.tag}f{e.gate}")
                keep = (p.t, list(p.vm), self.cnt)
                self.spin("f", e.gate)
                p.t, p.vm, self.cnt = keep
            else:
                self.spin("f", e.gate)
        k = e.kind
        fl = AUXFLAGS
        if k in ("x", "w", "wb"):
            p.I(f"s_add_u32 s{S_T1}, s{S_C0}, {e.idx}")
            p.I(f"s_and_b32 s{S_T1}, s{S_T1}, 7")
            if k == "x":
                p.I(f"s_lshl_b32 s{S_DS}, s{S_T1}, 7")
                p.I(f"s_add_u32 s{S_DS}, s{S_DS}, s{S_XBASE}")
                vo, srd = [R + LX + j for j in range(4)], SRD_X
            else:
                p.I(f"s_lshl_b32 s{S_DS}, s{S_T1}, 19")
                p.I(f"s_add_u32 s{S_DS}, s{S_DS}, s{S_WQBASE}")
                if k == "wb":
                    p.I(f"s_add_u32 s{S_DS}, s{S_DS}, 1024")
                vo, srd = [R + LW + j for j in range(4)], SRD_WQ
        elif k in ("k", "v"):
            hd, t = e.idx // 8, e.idx % 8
            if KROT:
                p.I(f"s_add_u32 s{S_T1}, s{S_KR}, {t}")
                p.I(f"s_and_b32 s{S_T1}, s{S_T1}, 7")
                p.I(f"s_lshl_b32 s{S_T1}, s{S_T1}, 14")
                p.I(f"s_add_u32 s{S_DS}, s{S_KVBASE}, s{S_T1}")
                if hd:
                    p.I(f"s_add_u32 s{S_DS}, s{S_DS}, {4 * 131072}")
            else:
                off = hd * 4 * 131072 + t * 16384
                p.I(f"s_add_u32 s{S_DS}, s{S_KVBASE}, {off}")
            vo, srd = ([R + LK + j for j in range(4)], SRD_K) if k == "k" else ([R + LV] * 4, SRD_V)
            fl = KVFLAGS
        elif k in ("wo", "wp"):
            self.kappa(e.idx)
            p.I(f"s_lshl_b32 s{S_DS}, s{S_T1}, 16")
            p.I(f"s_add_u32 s{S_DS}, s{S_DS}, s{S_WOB}")
            vo, srd = [R + LWO + j for j in range(4)], SRD_WO
        else:
            self.kappa(e.idx)
            p.I(f"s_lshl_b32 s{S_DS}, s{S_T1}, 14")
            p.I(f"s_add_u32 s{S_DS}, s{S_DS}, s{S_OINB}")
            vo, srd, fl = [R + LOV] * 4, SRD_WS, OFLAGS
        if hasattr(e, "reg"):
            for j in range(4):
                self.I(f"buffer_load_dwordx4 {vr(e.reg + 4*j, 4)}, v{vo[j]}, {sr(srd,4)}, s{S_DS} offen offset:{j*1024} {fl}")
            self.mark[e] = self.cnt
            return
        p.I(f"s_add_u32 m0, s{S_M0B}, {e.slot * 16384}")
        for j in range(4):
            self.I(f"buffer_load_dwordx4 v{vo[j]}, {sr(srd,4)}, s{S_DS} offen offset:{j*1024} {fl} lds")
        self.mark[e] = self.cnt

    def wait_for(self, s, **kw):
        need = [m for e, m in self.mark.items() if e.need == s]
        if need:
            self.p.wait(vm=self.cnt - max(need), **kw)
        elif kw:
            self.p.wait(**kw)


V_T, V_AK, V_AV, V_M, V_L, V_ST, V_MX = 1, 2, 6, 8, 9, 14, 15
V_AW, V_AX = 11, 250
V_FR = 16
V_S = [40, 56]
V_Q = 72
V_O = 104
V_QB = 168
V_FR2 = 200
A_R = 216


def lane_setup_A(p):
    t0, t1, t2, t3 = 16, 17, 18, 19
    p.I(f"v_lshrrev_b32 v{t0}, 5, v0")
    p.I(f"v_and_b32 v{t1}, 31, v0")
    p.I(f"v_bfe_u32 v{t2}, v0, 1, 3")
    p.I(f"v_xor_b32 v{t2}, v{t2}, v{t0}")
    p.I(f"v_lshlrev_b32 v{t2}, 4, v{t2}")
    p.I(f"v_lshrrev_b32 v{t3}, 2, v{t1}")
    p.I(f"v_lshlrev_b32 v{t3}, 10, v{t3}")
    p.I(f"v_and_b32 v20, 3, v{t1}")
    p.I(f"v_lshl_add_u32 v{t3}, v20, 7, v{t3}")
    p.I(f"v_add_u32 v{V_AK}, v{t3}, v{t2}")
    for i in range(1, 4):
        p.I(f"v_xor_b32 v{V_AK+i}, {i*32}, v{V_AK}")
    p.I(f"v_lshlrev_b32 v{t3}, 7, v{t1}")
    p.I(f"v_add3_u32 v{V_AX}, v{t3}, v{t2}, s{S_M0B}")
    for i in range(1, 4):
        p.I(f"v_xor_b32 v{V_AX+i}, {i*32}, v{V_AX}")
    tr_lane_base(p, t2, t1, t3)
    p.I(f"v_and_b32 v{t3}, 3, v0")
    p.I(f"v_lshl_add_u32 v20, v{t3}, 3, v{t2}")
    p.I(f"v_lshl_add_u32 v{V_AV}, v{t0}, 10, v20")
    p.I(f"v_xor_b32 v{V_AV+1}, 64, v{V_AV}")
    add_pi(p, 20, t2, t3)
    p.I(f"v_lshl_add_u32 v{V_AW}, v{t0}, 11, v20")
    p.I(f"v_xor_b32 v{V_AW+1}, 64, v{V_AW}")
    p.I(f"v_lshlrev_b32 v{V_ST}, 4, v0")
    p.I(f"v_add_u32 v{V_ST}, s{S_M0B}, v{V_ST}")


def flag_store(p, sreg, I=None):
    I = I or p.I
    p.I(f"v_mov_b32 v{V_T}, 1")
    p.I(f"v_mov_b32 v{V_MX}, 0")
    p.I(f"s_mov_b64 {sr(S_EX,2)}, exec")
    p.I("s_mov_b64 exec, 1")
    I(f"buffer_store_dword v{V_T}, v{V_MX}, {sr(SRD_WS,4)}, s{sreg} offen sc1")
    p.I(f"s_mov_b64 exec, {sr(S_EX,2)}")


def gemm_phase(p, nunits, open_unit, frag_item, mfma, ring_base, nfr, extra=None, cls=None):
    items = [frag_item(c, s, mb) for c in range(nunits) for s in range(4) for mb in range(4)]
    ring = (cls or FragRing)(p, items, ring_base, nfr)
    open_unit(0)
    opened = 1
    for _ in range(5):
        ring.issue_next()
    AH = nfr - 1
    idle = 0
    n = 16 * nunits
    for fi in range(n):
        c, s, mb = fi // 16, (fi // 4) % 4, fi % 4
        mfma(c, s, mb, ring.reg(fi))
        for _ in range(2):
            if ring.issued < min(opened * 16, fi + 1 + AH, n):
                ring.issue_next()
        if extra:
            extra(fi)
        if ring.issued == opened * 16 and opened < nunits:
            idle += 1
            if idle >= 3:
                open_unit(opened)
                opened += 1
                idle = 0


def gen_A(p, scheds):
    stamp(p, 0)
    lane_setup_A(p)
    scalars2(p)
    if PRIO_A:
        p.I(f"s_setprio {PRIO_A}")
    p.I(f"s_mov_b32 s{S_HEADCNT}, 0")
    p.I(f"s_mov_b32 s{S_SEG}, 99")
    p.I(f"s_mov_b32 s{SRD_X}, s{SRD_WS}")
    p.I(f"s_mov_b32 s{SRD_X+1}, s{SRD_WS+1}")
    p.I(f"s_mov_b32 s{SRD_X+2}, 0")
    ak, aw, av, ax = AddrSet(p, [V_AK + i for i in range(4)]), AddrSet(p, [V_AW, V_AW + 1]), AddrSet(p, [V_AV, V_AV + 1]), AddrSet(p, [V_AX + i for i in range(4)])

    def open_u(u):
        c, h = u // 2, u % 2
        p.wait(lgkm=0)
        p.I("s_barrier")
        if u == 0:
            stamp(p, 1)
        if h == 0:
            off = ax.to(QSL[0][c])
            for ss in range(4):
                p.I(f"ds_read_b128 {vr(V_S[c % 2] + 4 * ss, 4)}, v{V_AX + ss} offset:{off}")

    def mk_w(u, s, mb):
        def f(reg):
            off = aw.to(QSL[1 + u % 2][u // 2]) + s * 4096 + (mb // 2) * 512
            p.I(f"ds_read_b64_tr_b16 {vr(reg, 2)}, v{V_AW + mb % 2} offset:{off}")
            p.I(f"ds_read_b64_tr_b16 {vr(reg + 2, 2)}, v{V_AW + mb % 2} offset:{off + 1024}")
        return f

    def q_mfma(u, s, mb, reg):
        acc = vr((V_O, V_QB)[u % 2] + 16 * mb, 16)
        p.I(f"v_mfma_f32_32x32x16_bf16 {acc}, {vr(reg, 4)}, {vr(V_S[(u // 2) % 2] + 4 * s, 4)}, {'0' if (u < 2 and s == 0) else acc}")

    def pack_ops(src, dst):
        ops = []
        for mb in range(4):
            for i in range(16):
                ops.append(f"v_mul_f32 v{src+16*mb+i}, s{S_SCALE}, v{src+16*mb+i}")
            for i in range(8):
                ops.append(f"v_cvt_pk_bf16_f32 v{dst+8*mb+i}, v{src+16*mb+2*i}, v{src+16*mb+2*i+1}")
        return ops

    qring = [V_FR + 4 * i for i in range(6)] + [232 + 4 * i for i in range(4)]

    class RR(FragRing):
        def reg(self, i):
            return qring[i % len(qring)]
    pk = pack_ops(V_O, V_Q)

    def qextra(fi):
        if fi >= 243:
            for _ in range(8):
                if pk:
                    p.I(pk.pop(0))
    gemm_phase(p, 16, open_u, mk_w, q_mfma, V_FR, len(qring), extra=qextra, cls=RR)
    while pk:
        p.I(pk.pop(0))

    segs = sorted(set(sc.at for sc in scheds if sc.at < 16))

    def open_tile(T):
        if T in segs:
            p.I(f"s_cmp_eq_u32 s{S_SEG}, {T}")
            p.I(f"s_cbranch_scc1 L_A_seg{T}")
            p.label(f"L_A_segb{T}")
        if T == 16:
            p.I(f"s_cmp_eq_u32 s{S_HEADCNT}, 1")
            p.I("s_cbranch_scc1 L_A_nobar")
            p.I("s_barrier")
            p.label("L_A_nobar")
        else:
            p.I("s_barrier")

    def mk_k(j, ks):
        def f(reg):
            if j % 2 == 0 and ks == 0:
                open_tile(j)
            off = ak.to(slot_kv(j - j % 2)) + (j % 2) * 8192 + (ks // 4) * 512
            p.I(f"ds_read_b128 {vr(reg, 4)}, v{V_AK + ks % 4} offset:{off}")
        f.n = 1
        return f

    def mk_v(j, h, mb):
        def f(reg):
            if j % 2 == 0 and h == 0 and mb == 0:
                open_tile(j + 1)
            off = av.to(slot_kv(j - j % 2 + 1)) + ((j % 2) * 2 + h) * 4096 + (mb // 2) * 512
            p.I(f"ds_read_b64_tr_b16 {vr(reg, 2)}, v{V_AV + mb % 2} offset:{off}")
            p.I(f"ds_read_b64_tr_b16 {vr(reg + 2, 2)}, v{V_AV + mb % 2} offset:{off + 2048}")
        f.n = 2
        return f

    seq = []
    for j in range(1, 16):
        seq += [("k", j, ks) for ks in range(8)]
        seq += [("v", j - 1, x) for x in range(8)]
    seq += [("v", 15, x) for x in range(8)]
    seq += [("k", 16, ks) for ks in range(8)]
    item = lambda e: mk_k(e[1], e[2]) if e[0] == "k" else mk_v(e[1], e[2] // 4, e[2] % 4)
    g6 = [V_FR + 4 * i for i in range(6)]
    r0 = Pref(p, [mk_k(0, ks) for ks in range(8)] + [item(e) for e in seq[:6]], g6, lambda i: 1)
    r0.fill(-1, maxn=6, cap=99)
    stamp(p, 2)
    pk = pack_ops(V_QB, V_QB)
    for ks in range(8):
        S = vr(V_S[0], 16)
        p.I(f"v_mfma_f32_32x32x16_bf16 {S}, {vr(r0.reg(ks), 4)}, {vr(V_Q + 4 * ks, 4)}, {S if ks else '0'}")
        r0.fill(ks, maxn=1, cap=99)
        for _ in range(12):
            p.I(pk.pop(0))
    entry_regs = r0.regs[8:14]
    av.to(slot_kv(15))
    ent = (ak.hi, av.hi)
    p.wait(lgkm=0)
    p.flush_hazards()
    p.label("L_A_head")
    p.reset_state()
    p.I(f"v_mov_b32 v{V_L}, 0")
    p.I(f"v_mov_b32 v{V_L+1}, 0")
    p.I(f"v_mov_b32 v{V_M}, 0")
    p.I(f"s_mov_b32 s{S_THR}, {THR}")
    p.I(f"s_mov_b32 s{S_FIRST}, 1")
    items = [item(e) for e in seq] + [item(e) for e in seq[:6]]
    ring = Pref(p, items, g6 + [V_FR2 + 4 * i for i in range(2)], lambda i: items[i].n)
    ring.regs = list(entry_regs)
    ring.issued = 6
    for i, g in enumerate(entry_regs):
        ring.busy[g] = i
        ring.force[len(seq) + i] = g

    def max_ops(i):
        S = V_S[i % 2]
        a = (lambda r: f"|v{r}|") if i == 0 else (lambda r: f"v{r}")
        return [f"v_max3_f32 v{V_MX}, {a(S)}, {a(S+1)}, {a(S+2)}",
                f"v_max3_f32 v{V_T}, {a(S+3)}, {a(S+4)}, {a(S+5)}",
                f"v_max3_f32 v{V_MX}, v{V_MX}, {a(S+6)}, {a(S+7)}",
                f"v_max3_f32 v{V_T}, v{V_T}, {a(S+8)}, {a(S+9)}",
                f"v_max3_f32 v{V_MX}, v{V_MX}, {a(S+10)}, {a(S+11)}",
                f"v_max3_f32 v{V_T}, v{V_T}, {a(S+12)}, {a(S+13)}",
                f"v_max3_f32 v{V_MX}, v{V_MX}, {a(S+14)}, {a(S+15)}",
                f"v_max_f32 v{V_MX}, v{V_MX}, v{V_T}",
                f"v_cmp_nge_f32 vcc, s{S_THR}, v{V_MX}"]

    def exp_ops(i):
        S = V_S[i % 2]
        ops = []
        for k in range(9):
            if k < 8:
                ops.append(f"v_exp_f32 v{S+2*k}, v{S+2*k}")
            if k >= 1:
                a = S + 2 * k - 2
                ops.append(f"v_add_f32 v{V_L}, v{V_L}, v{a}")
            if k < 8:
                ops.append(f"v_exp_f32 v{S+2*k+1}, v{S+2*k+1}")
            if k >= 1:
                ops.append(f"v_add_f32 v{V_L+1}, v{V_L+1}, v{a+1}")
                ops.append(f"v_cvt_pk_bf16_f32 v{S+k-1}, v{a}, v{a+1}")
        return ops

    cost = lambda o: 2 if o.startswith("v_exp") else 1
    stubs, q = [], []
    start_at, end_at = {0: -1}, {}
    for m, e in enumerate(seq):
        if e[0] == "k" and e[2] == 7 and e[1] < 16:
            start_at[e[1]] = m + 2
        if e[0] == "v" and e[2] == 0:
            end_at[e[1]] = m
    epi, cur, nseq = None, 0, len(seq)
    brk = [False]

    def run_valu(budget):
        while q and budget > 0:
            o = q[0]
            if o.startswith("BR"):
                if brk[0] and budget < 10 ** 5:
                    brk[0] = False
                    return
                q.pop(0)
                i = int(o[3:])
                p.I(f"s_cbranch_vccnz L_A_stub{i}")
                p.label(f"L_A_back{i}")
                if i == 0:
                    p.I(f"s_mov_b32 s{S_FIRST}, 0")
                stubs.append(i)
            else:
                q.pop(0)
                budget -= cost(o)
                p.I(o)
                if o.startswith("v_cmp"):
                    brk[0] = budget > 0

    q += max_ops(0) + ["BR 0"] + exp_ops(0)
    run_valu(12)
    for m, e in enumerate(seq):
        kind, j, x = e
        if m == nseq - 8:
            p.I(f"s_cmp_eq_u32 s{S_HEADCNT}, 1")
            p.I("s_cbranch_scc1 L_A_tail")
            epi = epi_ops()
            if SPREAD:
                epi = []
                for f in range(8):
                    a = V_O + 8 * f
                    for i in range(8):
                        epi.append(f"v_mul_f32 v{a+i}, v{V_M}, v{a+i}")
                    for i in range(4):
                        epi.append(f"v_cvt_pk_bf16_f32 v{V_QB+4*f+i}, v{a+2*i}, v{a+2*i+1}")
            if os.environ.get("NOST"):
                epi = [o for o in epi if not o.startswith("buffer_store")]
        if kind == "v" and x == 0 and cur == j:
            run_valu(10 ** 6)
        if m % 2 == 0:
            p.touch([ring.reg(m + 1) + k for k in range(4)])
        if kind == "k":
            S = vr(V_S[j % 2], 16)
            p.I(f"v_mfma_f32_32x32x16_bf16 {S}, {vr(ring.reg(m), 4)}, {vr(V_Q + 4 * x, 4)}, {S if x else '0'}")
        else:
            h, mb = x // 4, x % 4
            acc = vr(V_O + 16 * mb, 16)
            p.I(f"v_mfma_f32_32x32x16_bf16 {acc}, {vr(ring.reg(m), 4)}, {vr(V_S[j % 2] + 4 * h, 4)}, {'0' if (j == 0 and h == 0) else acc}")
        if q and q[0].startswith("BR"):
            run_valu(1)
        ring.fill(m, maxn=2)
        for i, s0 in start_at.items():
            if s0 == m:
                assert not q
                q += max_ops(i) + [f"BR {i}"] + exp_ops(i)
                cur = i
        if q:
            slots = max(1, end_at[cur] - m)
            tot = sum(cost(o) for o in q if not o.startswith("BR"))
            run_valu(-(-tot // slots))
        if SPREAD and kind == "k" and SP0 <= j < SP0 + 8 and x == 3:
            f = j - SP0
            if f % 4 == 0:
                p.I(f"s_sub_u32 s{S_T2}, s{S_OBASE}, {4*32768 - (f // 4) * 16384}")
            p.I(f"buffer_store_dwordx4 {vr(V_QB + 4*f, 4)}, v{V_ST}, {sr(SRD_X,4)}, s{S_T2} offen offset:{(f % 4)*1024} {STFLAGS}")
        if kind == "k" and j == PUBJ and x == 1:
            p.I(f"s_cmp_eq_u32 s{S_HEADCNT}, 0")
            p.I("s_cbranch_scc1 L_A_nopub")
            t_keep = p.t
            p.raw("  s_waitcnt vmcnt(0)")
            p.I(f"s_add_u32 s{S_T0}, s{S_PUB}, 512")
            flag_store(p, S_T0)
            p.label("L_A_nopub")
            p.t = t_keep
        if kind == "v" and j == 15 and x == 1:
            p.I(f"v_add_f32 v{V_L}, v{V_L}, v{V_L+1}")
            p.I(f"v_mov_b32 v{V_T}, v{V_L}")
            p.I(f"v_permlane32_swap_b32 v{V_T}, v{V_L}")
            p.I(f"v_add_f32 v{V_L}, v{V_L}, v{V_T}")
            p.I(f"v_rcp_f32 v{V_M}, v{V_L}")
        if kind == "v" and j == 15 and x >= 2:
            for k in range(6):
                r = (x - 2) * 6 + k
                if r < 32:
                    p.I(f"v_mov_b32 v{V_Q+r}, v{V_QB+r}")
        if epi is not None and m >= nseq - 7:
            for _ in range(16):
                if epi:
                    p.I(epi.pop(0))
        if m in (119, 247):
            stamp(p, 3 if m == 119 else 4)
    ring.fill(nseq - 1, maxn=6, cap=99)
    while epi:
        p.I(epi.pop(0))
    assert ring.regs[nseq:nseq + 6] == entry_regs
    assert (ak.hi, av.hi) == ent, ((ak.hi, av.hi), ent)
    p.I(f"s_add_u32 s{S_OBASE}, s{S_OBASE}, {4*32768}")
    p.I(f"s_mov_b32 s{S_HEADCNT}, 1")
    p.I(f"s_mov_b32 s{SRD_X+2}, s{SRD_WS+2}")
    p.I(f"s_mov_b32 s{S_SEG}, {scheds[0].at}")
    for c in range(1, NCLS):
        p.I(f"s_cmp_eq_u32 s{S_CLS}, {c}")
        p.I(f"s_cselect_b32 s{S_SEG}, {scheds[c].at}, s{S_SEG}")
    loader_setup(p, A_R, "o")
    p.wait(lgkm=0)
    if STAMP in (1, 2):
        for i in range(4):
            p.I(f"s_mov_b32 s{S_STAMP+10+i}, s{S_STAMP+6+i}")
    p.flush_hazards()
    p.I("s_branch L_A_head")
    for c, sc in enumerate(scheds):
        if sc.at < 16:
            assert sum(1 for x in scheds if x.at == sc.at) == 1
            p.label(f"L_A_seg{sc.at}")
            p.reset_state()
            p.I(f"s_mov_b64 {sr(S_SRET,2)}, vcc")
            ld = Loader(p, A_R, f"a1c{c}")
            for s in range(sc.seg, sc.seg_end):
                ld.wait_for(s)
                p.I("s_barrier")
                ld.issue_at(sc, "A", s)
            p.I(f"s_mov_b64 vcc, {sr(S_SRET,2)}")
            p.flush_hazards()
            p.I(f"s_branch L_A_segb{sc.at}")
    p.label("L_A_tail")
    p.reset_state()
    p.nop(12)
    for o in epi_ops():
        p.I(o)
    for c in range(1, NCLS):
        p.I(f"s_cmp_eq_u32 s{S_CLS}, {c}")
        p.I(f"s_cbranch_scc1 L_A_s2c{c}")
    for c, sc in enumerate(scheds):
        if c:
            p.label(f"L_A_s2c{c}")
        p.reset_state()
        p.nop(2)
        ld = Loader(p, A_R, f"a2c{c}")

        def pub():
            p.wait(vm=ld.cnt)
            p.I(f"s_add_u32 s{S_T0}, s{S_PUB}, {3*512}")
            flag_store(p, S_T0, ld.I)
            stamp(p, 7)
        early = any(e.gate == 3 and e.at <= sc.tail0 + 1 for e in sc.issued)
        if early:
            pub()
        if sc.pre_tail:
            for e in sc.pre_tail:
                ld.issue(e)
        for s in range(sc.tail0, sc.n):
            ld.wait_for(s)
            p.I("s_barrier")
            ld.issue_at(sc, "A", s)
            if s == sc.tail0 and not early:
                pub()
        if STAMP in (1, 2):
            p.I(f"s_cmp_lg_u32 s{S_WAVE}, 0")
            p.I("s_cbranch_scc1 L_exit")
            stamp_store(p, 8, 1)
        p.I("s_endpgm")

    for i in stubs:
        p.label(f"L_A_stub{i}")
        p.raw(f"  s_call_b64 {sr(S_RET,2)}, L_A_fix{i % 2}")
        p.raw(f"  s_branch L_A_back{i}")
    for par in range(2):
        S, Pp = V_S[par], V_S[1 - par]
        p.label(f"L_A_fix{par}")
        p.reset_state()
        p.nop(16)
        p.I(f"s_mov_b32 s{S_THR}, 0xff800000")
        for k in range(16):
            p.I(f"v_sub_f32 v{S+k}, v{S+k}, v{V_M}")
        p.I(f"v_max3_f32 v{V_MX}, v{S}, v{S+1}, v{S+2}")
        for k in range(3, 15, 2):
            p.I(f"v_max3_f32 v{V_MX}, v{V_MX}, v{S+k}, v{S+k+1}")
        p.I(f"v_max_f32 v{V_MX}, v{V_MX}, v{S+15}")
        p.I(f"v_mov_b32 v{V_T}, v{V_MX}")
        p.I(f"v_permlane32_swap_b32 v{V_T}, v{V_MX}")
        p.I(f"v_max_f32 v{V_MX}, v{V_MX}, v{V_T}")
        p.I(f"v_ceil_f32 v{V_MX}, v{V_MX}")
        p.I(f"s_cmp_eq_u32 s{S_FIRST}, 1")
        p.I(f"s_cbranch_scc1 L_A_fixa{par}")
        p.I(f"v_max_f32 v{V_MX}, 0, v{V_MX}")
        p.label(f"L_A_fixa{par}")
        p.nop(2)
        for k in range(16):
            p.I(f"v_sub_f32 v{S+k}, v{S+k}, v{V_MX}")
        p.I(f"v_add_f32 v{V_M}, v{V_M}, v{V_MX}")
        p.I(f"s_cbranch_scc1 L_A_fixd{par}")
        p.I(f"v_exp_f32 v{V_MX}, -v{V_MX}")
        for k in range(2):
            p.I(f"v_mul_f32 v{V_L+k}, v{V_L+k}, v{V_MX}")
        for k in range(64):
            p.I(f"v_mul_f32 v{V_O+k}, v{V_O+k}, v{V_MX}")
        for k in range(8):
            r = Pp + k
            p.I(f"v_lshlrev_b32 v{V_T}, 16, v{r}")
            p.I(f"v_and_b32 v{r}, 0xffff0000, v{r}")
            p.I(f"v_mul_f32 v{V_T}, v{V_T}, v{V_MX}")
            p.I(f"v_mul_f32 v{r}, v{r}, v{V_MX}")
            p.I(f"v_cvt_pk_bf16_f32 v{r}, v{V_T}, v{r}")
        p.label(f"L_A_fixd{par}")
        p.nop(4)
        p.raw(f"  s_setpc_b64 {sr(S_RET,2)}")


def epi_ops():
    ops = []
    for f in range(8):
        a = V_O + 8 * f
        for i in range(8):
            ops.append(f"v_mul_f32 v{a+i}, v{V_M}, v{a+i}")
        for i in range(4):
            ops.append(f"v_cvt_pk_bf16_f32 v{a+i}, v{a+2*i}, v{a+2*i+1}")
        if f % 4 == 0:
            ops.append(f"s_add_u32 s{S_T0}, s{S_OBASE}, {(f // 4) * 16384}")
        ops.append(f"buffer_store_dwordx4 {vr(a,4)}, v{V_ST}, {sr(SRD_WS,4)}, s{S_T0} offen offset:{(f % 4)*1024} {STFLAGS}")
    return ops


G_R = 8
G_AX = 1
G_AW = 5
G_AWO = 7
G_AO = G_R + LT + 7
G_ACC = 64
G_XF = 128
G_B = 128
G_W = [128, 144]
G_FR = 40
G_FR2 = 160


def gen_G_setup2(p):
    loader_setup(p, G_R, "o")
    scalars2(p)
    tr_lane_base(p, 40, 41, 42)
    add_pi(p, 40, 40, 42)
    p.I("v_lshrrev_b32 v43, 5, v0")
    p.I(f"v_lshl_add_u32 v{G_AWO}, v43, 10, v40")
    p.I(f"s_and_b32 s{S_T0}, s{S_G}, 1")
    p.I(f"s_lshl_b32 s{S_T0}, s{S_T0}, 6")
    p.I(f"v_xor_b32 v{G_AWO}, s{S_T0}, v{G_AWO}")
    p.I(f"s_lshr_b32 s{S_T0}, s{S_G}, 1")
    p.I(f"s_lshl_b32 s{S_T0}, s{S_T0}, 9")
    p.I(f"v_add_u32 v{G_AWO}, s{S_T0}, v{G_AWO}")
    p.I(f"v_lshlrev_b32 v{G_AO}, 4, v0")
    p.I(f"v_lshl_add_u32 v{G_AW}, v43, 11, v40")
    p.I(f"v_xor_b32 v{G_AW+1}, 64, v{G_AW}")
    p.I(f"v_bfe_u32 v42, v0, 1, 3")
    p.I(f"v_xor_b32 v42, v42, v43")
    p.I(f"v_lshlrev_b32 v42, 4, v42")
    p.I(f"v_and_b32 v40, 31, v0")
    p.I(f"v_lshlrev_b32 v40, 7, v40")
    p.I(f"v_add3_u32 v{G_AX}, v40, v42, s{S_M0B}")
    for i in range(1, 4):
        p.I(f"v_xor_b32 v{G_AX+i}, {i*32}, v{G_AX}")


def gen_reset(p, tag):
    p.I(f"s_cmp_lg_u32 s{S_WAVE}, 4")
    p.I(f"s_cbranch_scc1 L_G_norst{tag}")
    p.I(f"s_lshl_b32 s{S_T0}, s{S_B}, 2")
    p.I(f"s_add_u32 s{S_T0}, s{S_T0}, s{S_HG}")
    p.I(f"s_lshl_b32 s{S_T0}, s{S_T0}, 11")
    p.I(f"s_lshl_b32 s{S_T1}, s{S_P}, 2")
    p.I(f"s_add_u32 s{S_T0}, s{S_T0}, s{S_T1}")
    p.I(f"s_add_u32 s{S_T0}, s{S_T0}, {WS_F1}")
    p.I(f"v_lshlrev_b32 v48, 7, v0")
    p.I(f"v_add_u32 v48, s{S_T0}, v48")
    p.I(f"s_lshl_b32 s{S_T0}, s{S_B}, 2")
    p.I(f"s_add_u32 s{S_T0}, s{S_T0}, s{S_P}")
    p.I(f"s_lshl_b32 s{S_T0}, s{S_T0}, 11")
    p.I(f"s_lshl_b32 s{S_T1}, s{S_HG}, 2")
    p.I(f"s_add_u32 s{S_T0}, s{S_T0}, s{S_T1}")
    p.I(f"s_add_u32 s{S_T0}, s{S_T0}, {WS_F2 - 16*128}")
    p.I(f"v_lshlrev_b32 v49, 7, v0")
    p.I(f"v_add_u32 v49, s{S_T0}, v49")
    p.I("v_cmp_gt_u32 vcc, 16, v0")
    p.I("v_cndmask_b32 v48, v49, v48, vcc")
    p.I("v_mov_b32 v49, 0")
    p.I(f"s_mov_b64 {sr(S_EX,2)}, exec")
    p.I("s_mov_b32 exec_hi, 0")
    p.raw(f"  buffer_store_dword v49, v48, {sr(SRD_WS,4)}, 0 offen sc1")
    p.I(f"s_mov_b64 exec, {sr(S_EX,2)}")
    p.label(f"L_G_norst{tag}")


def gen_reset_done(p, tag):
    p.I(f"s_cmp_lg_u32 s{S_WAVE}, 4")
    p.I(f"s_cbranch_scc1 L_G_nord{tag}")
    p.I("v_mov_b32 v49, 1")
    p.I(f"s_lshl_b32 s{S_T0}, s{S_B}, 4")
    p.I(f"v_mov_b32 v48, s{S_T0}")
    p.I(f"s_mov_b64 {sr(S_EX,2)}, exec")
    p.I("s_mov_b64 exec, 1")
    p.raw(f"  buffer_atomic_add v49, v48, {sr(SRD_DBG,4)}, 0 offen sc1")
    p.I(f"s_mov_b64 exec, {sr(S_EX,2)}")
    p.label(f"L_G_nord{tag}")


def gen_G_class(p, c, sc):
    tag = f"c{c}"
    ld = Loader(p, G_R, f"g{tag}")
    awo, ao = AddrSet(p, [G_AWO]), AddrSet(p, [G_AO])
    aw, ax = AddrSet(p, [G_AW, G_AW + 1]), AddrSet(p, [G_AX + i for i in range(4)])
    by = {(e.kind, e.idx): e for e in sc.ents}

    def issue_at(s):
        ld.issue_at(sc, "G", s)

    def handoff():
        p.I(f"s_lshl_b32 s{S_T0}, s{S_G}, 13")
        p.I(f"s_add_u32 s{S_T0}, s{S_T0}, {HSLOT*16384}")
        p.I(f"v_add_u32 v48, s{S_T0}, v{G_R+LOV}")
        for mb in range(4):
            for h in range(2):
                p.I(f"ds_write_b128 v48, {vr(G_ACC + 16*mb + 4*h, 4)} offset:{(2*mb+h)*1024}")

    wbuf = {u: 128 + 16 * i for i, u in enumerate(PRE)}
    for u in range(16):
        if u not in wbuf:
            used = {wbuf[v] for v in wbuf if v >= u - 1}
            wbuf[u] = [b for b in range(128, 256, 16) if b not in used][0]

    def read_w(e):
        off = awo.to(e.slot)
        for s4 in range(4):
            r = wbuf[e.idx] + 4 * s4
            p.I(f"ds_read_b64_tr_b16 {vr(r,2)}, v{G_AWO} offset:{off + s4*4096}")
            p.I(f"ds_read_b64_tr_b16 {vr(r+2,2)}, v{G_AWO} offset:{off + s4*4096 + 2048}")

    stamp(p, 0)
    gen_reset(p, tag)
    issue_at(-1)
    gen_G_setup2(p)
    if PRIO_G:
        p.I(f"s_setprio {PRIO_G}")
    nm = [1]

    def mark():
        if nm[0] < 10:
            stamp(p, nm[0])
            nm[0] += 1

    s = 0
    first_o = True
    while s < sc.n:
        name, idx = sc.steps[s]
        if name in ("QA", "K"):
            ld.wait_for(s, **({"lgkm": 0} if p.lgkm else {}))
            p.I("s_barrier")
            if (name == "QA" and idx == 0) or (name == "K" and idx % 8 == 0):
                mark()
            for e in sc.ents:
                if e.kind == "wp" and e.need == s:
                    read_w(e)
                if hasattr(e, "reg") and e.wat == s:
                    p.I(f"s_add_u32 s{S_T0}, s{S_M0B}, {e.slot * 16384}")
                    p.I(f"v_add_u32 v48, s{S_T0}, v{G_R+LOV}")
                    for j in range(4):
                        p.I(f"ds_write_b128 v48, {vr(e.reg + 4*j, 4)} offset:{j*1024}")
            if s == 2:
                gen_reset_done(p, tag)
            if s == sc.ka0 + 4:
                p.I(f"s_lshl_b32 s{S_T0}, s{S_B}, 4")
                p.I(f"v_mov_b32 v48, 0")
                ld.I(f"buffer_load_dword v{G_R+LDPOLL}, v48, {sr(SRD_DBG,4)}, s{S_T0} offen sc1")
            if s == sc.ka0 + 14:
                p.I(f"v_cmp_gt_u32 vcc, 16, v{G_R+LDPOLL}")
                p.I(f"s_cbranch_vccz L_dok{tag}")
                t_keep, saved, ck = p.t, list(p.vm), ld.cnt
                ld.spin("d", 0)
                p.label(f"L_dok{tag}")
                p.t, p.vm, ld.cnt = t_keep, saved, ck
            issue_at(s)
            if name == "K" and WPF >= 0 and WPF <= idx < WPF + 128 // WPN:
                if idx == WPF:
                    p.I(f"s_lshr_b32 s{S_T2}, s2, 3")
                    p.I(f"s_lshl_b32 s{S_T2}, s{S_T2}, 15")
                    p.I(f"s_lshl_b32 s{S_T0}, s{S_HG}, 20")
                    p.I(f"s_add_u32 s{S_T2}, s{S_T2}, s{S_T0}")
                    p.I(f"s_lshl_b32 s{S_T0}, s{S_G}, 13")
                    p.I(f"s_add_u32 s{S_T2}, s{S_T2}, s{S_T0}")
                for k in range(WPN):
                    p.raw(f"  s_buffer_load_dword s101, {sr(SRD_WO,4)}, s{S_T2} offset:{((idx - WPF) * WPN + k) * 64}")
            s += 1
        else:
            s0 = s
            n = 0
            while s + n < sc.n and sc.steps[s + n][0] == "O":
                n += 1
            o0 = [e.idx for e in sc.ents if e.kind == "o" and e.need == s0][0]
            fz = first_o
            first_o = False

            def open_u(u):
                ld.wait_for(s0 + u, lgkm=0)
                p.I("s_barrier")
                if u == 0 or (o0 + u) in (8, 12):
                    mark()
                if ("wo", o0 + u) in by:
                    read_w(by[("wo", o0 + u)])

            def item(u, s4, mb):
                def f(reg):
                    off = ao.to(by[("o", o0 + u)].slot) + mb * 4096 + s4 * 1024
                    p.I(f"ds_read_b128 {vr(reg,4)}, v{G_AO} offset:{off}")
                return f

            def mf(u, s4, mb, reg):
                acc = vr(G_ACC + 16 * mb, 16)
                cin = "0" if (fz and u == 0 and s4 == 0) else acc
                p.I(f"v_mfma_f32_32x32x16_bf16 {acc}, {vr(wbuf[o0 + u] + 4*s4, 4)}, {vr(reg,4)}, {cin}")
            oring = [40 + 4 * i for i in range(6)] + ([8 + 4 * i for i in range(4)] if s0 + n == sc.n else [])

            class RG(FragRing):
                def reg(self, i):
                    return oring[i % len(oring)]
            gemm_phase(p, n, open_u, item, mf, 0, len(oring), cls=RG)
            s += n
    while nm[0] < 10:
        mark()
    p.flush_hazards()
    p.I("s_branch L_G_final")


def gen_G_final(p):
    p.label("L_G_final")
    p.reset_state()
    stamp(p, 10)
    SG = S_G
    OV, PA, POLL = G_R + LOV, G_R + LPA, G_R + LPOLL
    p.I(f"s_lshl_b32 s{S_T0}, s{S_B}, 2")
    p.I(f"s_add_u32 s{S_T2}, s{S_T0}, s{S_P}")
    p.I(f"s_lshl_b32 s{S_T3}, s{S_T2}, 18")
    p.I(f"s_add_u32 s{S_T3}, s{S_T3}, {WS_PART}")
    p.I(f"s_add_u32 s{S_T3}, s{S_T3}, s{S_M0B}")
    p.I(f"s_lshl_b32 s{S_T2}, s{S_T2}, 11")
    p.I(f"s_add_u32 s{S_T2}, s{S_T2}, {WS_F2}")
    p.I(f"s_lshl_b32 s{S_T0}, s{SG}, 7")
    p.I(f"s_add_u32 s{S_T2}, s{S_T2}, s{S_T0}")
    p.I(f"s_lshl_b32 s{S_T1}, s{S_HG}, 14")
    p.I(f"s_add_u32 s{S_DS}, s{S_T3}, s{S_T1}")
    for d in range(4):
        p.I(f"s_cmp_eq_u32 s{S_HG}, {d}")
        p.I(f"s_cbranch_scc1 L_G_own{d}")
        for j in range(4):
            p.I(f"buffer_store_dwordx4 {vr(G_ACC + 16*d + 4*j, 4)}, v{OV}, {sr(SRD_WS,4)}, s{S_DS} offen offset:{j*1024} {STFLAGS}")
        p.I(f"s_branch L_G_nx{d}")
        p.label(f"L_G_own{d}")
        for k in range(16):
            p.I(f"v_mov_b32 v{G_B+k}, v{G_ACC+16*d+k}")
        p.label(f"L_G_nx{d}")
        if d < 3:
            p.I(f"s_add_u32 s{S_DS}, s{S_DS}, 65536")
    p.I(f"v_lshlrev_b32 v49, 7, v{PA}")
    p.I(f"s_lshl_b32 s{S_T1}, s{S_HG}, 2")
    p.I(f"s_add_u32 s{S_T0}, s{S_T2}, s{S_T1}")
    p.I("v_mov_b32 v48, 1")
    p.I(f"s_mov_b64 {sr(S_EX,2)}, exec")
    p.I("s_mov_b64 exec, 15")
    p.wait(vm=0)
    p.I(f"buffer_store_dword v48, v49, {sr(SRD_WS,4)}, s{S_T0} offen sc1")
    p.I(f"s_mov_b64 exec, {sr(S_EX,2)}")
    stamp(p, 11)
    p.I(f"s_lshl_b32 s{S_T0}, s{S_HG}, 9")
    p.I(f"s_add_u32 s{S_T2}, s{S_T2}, s{S_T0}")
    p.I(f"v_cmp_ne_u32 {sr(S_EX,2)}, s{S_T1}, v{PA}")
    p.I(f"s_mov_b32 s{S_SPIN}, {SPIN}")
    p.label("L_G_sp2")
    p.I(f"buffer_load_dword v{POLL}, v{PA}, {sr(SRD_WS,4)}, s{S_T2} offen sc1")
    p.I(f"v_cmp_ne_u32 vcc, 1, v{POLL}")
    p.I(f"s_and_b64 vcc, vcc, {sr(S_EX,2)}")
    p.I("s_cbranch_vccz L_G_ok2")
    if int(os.environ.get("FSL", "0")):
        p.I(f"s_sleep {os.environ['FSL']}")
    p.I(f"s_sub_u32 s{S_SPIN}, s{S_SPIN}, 1")
    p.I(f"s_cmp_lg_u32 s{S_SPIN}, 0")
    p.I("s_cbranch_scc1 L_G_sp2")
    p.label("L_G_ok2")
    stamp(p, 12)
    p.I(f"s_lshl_b32 s{S_T0}, s{S_HG}, 16")
    p.I(f"s_add_u32 s{S_T3}, s{S_T3}, s{S_T0}")
    for i in range(3):
        p.I(f"s_add_u32 s{S_T0}, s{S_HG}, {i+1}")
        p.I(f"s_and_b32 s{S_T0}, s{S_T0}, 3")
        p.I(f"s_lshl_b32 s{S_T0}, s{S_T0}, 14")
        p.I(f"s_add_u32 s{S_T0}, s{S_T0}, s{S_T3}")
        for j in range(4):
            p.I(f"buffer_load_dwordx4 {vr(G_B + 16*(i+1) + 4*j, 4)}, v{OV}, {sr(SRD_WS,4)}, s{S_T0} offen offset:{j*1024} sc1")
    p.I("v_and_b32 v48, 31, v0")
    p.I("v_lshlrev_b32 v48, 10, v48")
    p.I("v_lshrrev_b32 v49, 5, v0")
    p.I("v_lshl_add_u32 v48, v49, 4, v48")
    p.I(f"s_lshl_b32 s{S_T0}, s{S_B}, 17")
    p.I(f"s_lshl_b32 s{S_T1}, s{S_HG}, 15")
    p.I(f"s_add_u32 s{S_T0}, s{S_T0}, s{S_T1}")
    p.I(f"s_lshl_b32 s{S_T1}, s{S_P}, 8")
    p.I(f"s_add_u32 s{S_T0}, s{S_T0}, s{S_T1}")
    p.I(f"s_lshl_b32 s{S_T1}, s{SG}, 6")
    p.I(f"s_add_u32 s{S_T0}, s{S_T0}, s{S_T1}")
    for i in range(3):
        for k in range(16):
            p.I(f"v_add_f32 v{G_B+k}, v{G_B+k}, v{G_B+16*(i+1)+k}")
    for k in range(8):
        p.I(f"v_cvt_pk_bf16_f32 v{G_B+k}, v{G_B+2*k}, v{G_B+2*k+1}")
    p.I(f"buffer_store_dwordx4 {vr(G_B,4)}, v48, {sr(SRD_OUT,4)}, s{S_T0} offen")
    p.I(f"buffer_store_dwordx4 {vr(G_B+4,4)}, v48, {sr(SRD_OUT,4)}, s{S_T0} offen offset:32")
    if STAMP in (1, 2):
        p.wait(vm=0)
        stamp(p, 13)
        p.I(f"s_cmp_lg_u32 s{S_WAVE}, 4")
        p.I("s_cbranch_scc1 L_exit")
        if os.environ.get("DBGOUT"):
            p.raw("  s_waitcnt lgkmcnt(0)")
            p.I("s_mov_b64 exec, 1")
            words = [1, 2, 3, 5, 6, 7, 9, 10, 11, 13, 14, 15]
            p.I(f"s_not_b32 s{S_T0}, s{S_STAMP}")
            p.I(f"v_mov_b32 v32, s{S_T0}")
            p.I(f"v_mov_b32 v30, {4*words[0]}")
            p.I(f"buffer_atomic_umax v32, v30, {sr(SRD_DBG,4)}, 0 offen sc1")
            for w, i in zip(words[1:], [0, 1, 2, 3, 4, 5, 6, 7, 10, 12, 13]):
                p.nop(2)
                p.I(f"v_mov_b32 v32, s{S_STAMP+2*i}")
                p.I(f"v_mov_b32 v30, {4*w}")
                p.I(f"buffer_atomic_umax v32, v30, {sr(SRD_DBG,4)}, 0 offen sc1")
        else:
            stamp_store(p, 14, 0)
    p.I("s_endpgm")


def main():
    out = sys.argv[1]
    scheds = [Sched(c) for c in CLASSES]
    if os.environ.get("SHOW"):
        for sc in scheds:
            print(" ".join(f"{e.kind}{e.idx}@{e.at}{e.who}>{e.need}[{e.slot}]" for e in sc.issued))
    p = Prog()
    prologue(p, 256)
    p.I(f"s_cmp_lt_u32 s{S_WAVE}, 4")
    p.I("s_cbranch_scc1 L_A")
    loader_setup(p, G_R, "xwkv")
    for c in range(1, NCLS):
        p.I(f"s_cmp_eq_u32 s{S_CLS}, {c}")
        p.I(f"s_cbranch_scc1 L_G_cls{c}")
    for c in range(NCLS):
        if c:
            p.label(f"L_G_cls{c}")
        p.reset_state()
        p.nop(2)
        gen_G_class(p, c, scheds[c])
    gen_G_final(p)
    p.label("L_A")
    p.reset_state()
    gen_A(p, scheds)
    p.label("L_exit")
    p.I("s_endpgm")
    s = "; @launch grid=(256,1,1) block=(512,1,1) lds=163840\n"
    s += '.amdgcn_target "amdgcn-amd-amdhsa--gfx950"\n.text\n'
    s += kernel_header(KNAME) + p.text()
    s += '.section .rodata,"a"\n'
    s += kernel_desc(KNAME, 256, 102, 256)
    open(out, "w").write(s)
    print("nops inserted:", p.nops_inserted, "lines", len(p.lines))


main()
```

```python
import sys, math, struct, os
from asmlib import Prog, vr, sr, kernel_header, kernel_desc

STAMP = int(os.environ.get("STAMP", "0"))
KVFLAGS = os.environ.get("KVFLAGS", "nt")
AUXFLAGS = os.environ.get("AUXFLAGS", "")
OFLAGS = os.environ.get("OFLAGS", "sc1")
STFLAGS = os.environ.get("STFLAGS", "sc1")
PRIO_A = int(os.environ.get("PRIO_A", "0"))
PRIO_G = int(os.environ.get("PRIO_G", "0"))
ROT = int(os.environ.get("ROT", "1"))
DT = int(os.environ.get("DT", "4"))
CLASSES = eval(os.environ.get("CLASSES", "[dict()]"))
NCLS = len(CLASSES)
KD = int(os.environ.get("KD", "4"))
GLEAD = int(os.environ.get("GLEAD", "2"))
PER = int(os.environ.get("PER", "3"))
KEARLY = int(os.environ.get("KEARLY", "0"))
KNAME = "standalone__mha_block_cached__near_ridge_kernel"
if KVFLAGS == "-":
    KVFLAGS = ""

WS_PART = 16 << 20
WS_STAMP = 32 << 20
WS_F1 = 48 << 20
WS_F2 = 49 << 20
SPIN = "0x20000"
HSLOT = 2


def f32bits(x):
    return struct.unpack("<I", struct.pack("<f", x))[0]


QSCALE = hex(f32bits(math.log2(math.e) / math.sqrt(128.0)))
THR = hex(f32bits(40.0))

S_WAVE = 3
SRD_X, SRD_K, SRD_V, SRD_WQ, SRD_WO, SRD_OUT, SRD_WS, SRD_DBG = 8, 12, 16, 20, 24, 28, 32, 4
S_B, S_H, S_T0, S_T1, S_T2, S_T3 = 36, 37, 38, 39, 56, 57
S_HEADCNT = 58
S_XBASE, S_WQBASE, S_KVBASE, S_OBASE = 59, 60, 61, 62
S_HG = 63
S_RET = 64
S_SCALE, S_THR = 66, 67
S_M0B = 68
S_P = 69
S_CLS = 70
S_BL = 71
S_DS = 54
S_FLAG = 46
S_PUB = 45
S_G = 47
S_C0 = 48
S_WOB = 49
S_OINB = 50
S_SPIN = 51
S_EX = 52
S_FIRST = 44
S_SEG = 43
S_SRET = 40
HOLD = int(os.environ.get("HOLD", "3"))
PRE = eval(os.environ.get("PRE", "[]"))
PRE0, PRED = int(os.environ.get("PRE0", "3")), int(os.environ.get("PRED", "3"))
KPOS = eval(os.environ.get("KPOS", "[]"))
PBF = int(os.environ.get("PBF", "0"))
DTH = int(os.environ.get("DTH", "5"))
KROT = int(os.environ.get("KROT", "1"))
FINE = int(os.environ.get("FINE", "0"))
WPF = int(os.environ.get("WPF", "-1"))
WPN = int(os.environ.get("WPN", "8"))
RES = eval(os.environ.get("RES", "[14,18,22,26,30]"))
RP0, RPD = int(os.environ.get("RP0", "6")), int(os.environ.get("RPD", "4"))
S_KR = 55
OUTF = os.environ.get("OUTF", "")
PUBD = int(os.environ.get("PUBD", "0"))
HX = int(os.environ.get("HX", "4"))
S_SW = 99
SWAP = int(os.environ.get("SWAP", "0"))
PUBJ = int(os.environ.get("PUBJ", "3"))
SPREAD = int(os.environ.get("SPREAD", "0"))
SP0 = int(os.environ.get("SP0", "1"))
S_STAMP = 72


def stamp(p, idx):
    if STAMP in (1, 2):
        p.raw(f"  {'s_memtime' if STAMP == 2 else 's_memrealtime'} s[{S_STAMP+2*idx}:{S_STAMP+1+2*idx}]")


def stamp_store(p, n, kern):
    p.raw("  s_waitcnt lgkmcnt(0)")
    p.I(f"s_lshl_b32 s{S_T0}, s2, 8")
    p.I(f"s_add_u32 s{S_T0}, s{S_T0}, {WS_STAMP + kern*65536}")
    p.I("v_mov_b32 v30, 0")
    for i in range(n):
        p.I(f"v_mov_b32 v32, s{S_STAMP+2*i}")
        p.I(f"v_mov_b32 v33, s{S_STAMP+1+2*i}")
        p.I(f"buffer_store_dwordx2 v[32:33], v30, {sr(SRD_WS,4)}, s{S_T0} offen offset:{8*i}")
        p.nop(2)


KA = 76


def srds(p, which):
    tab = {"x": (SRD_X, 0, 2 << 20), "k": (SRD_K, 2, 64 << 20), "v": (SRD_V, 4, 64 << 20), "q": (SRD_WQ, 6, 4 << 20),
           "o": (SRD_WO, 8, 4 << 20), "u": (SRD_OUT, 10, 2 << 20), "d": (SRD_DBG, 12, 256), "w": (SRD_WS, 14, 256 << 20)}
    for c in which:
        srd, src, size = tab[c]
        p.I(f"s_mov_b32 s{srd}, s{KA+src}")
        p.I(f"s_and_b32 s{srd+1}, s{KA+src+1}, 0xffff")
        p.I(f"s_mov_b32 s{srd+2}, {size}")
        p.I(f"s_mov_b32 s{srd+3}, 0x20000")


def code_prefetch(p):
    if not int(os.environ.get("CPF", "0")):
        return
    p.raw("  s_getpc_b64 s[96:97]")
    p.label("L_pc")
    p.raw(f"  s_sub_u32 s96, s96, L_pc-{KNAME}")
    p.raw("  s_subb_u32 s97, s97, 0")
    p.I(f"s_lshl_b32 s{S_T0}, s{S_WAVE}, 6")
    for k in range(8):
        p.raw(f"  s_load_dword s101, s[96:97], s{S_T0} offset:{256 + k*256}")
    p.I(f"s_lshr_b32 s{S_T1}, s2, 3")
    p.I(f"s_lshl_b32 s{S_T1}, s{S_T1}, 8")
    p.I(f"s_add_u32 s{S_T0}, s{S_T0}, s{S_T1}")
    for k in range(5):
        if k == 4:
            p.raw(f"  s_min_u32 s{S_T0}, s{S_T0}, L_exit-{KNAME}-32768")
        p.raw(f"  s_load_dword s101, s[96:97], s{S_T0} offset:{k*8192}")


def prologue(p, nwg):
    p.I(f"s_cmp_ge_u32 s2, {nwg}")
    p.I("s_cbranch_scc1 L_exit")
    p.I(f"s_load_dwordx16 s[{KA}:{KA+15}], s[0:1], 0")
    p.I("v_lshrrev_b32 v1, 6, v0")
    p.I(f"v_readfirstlane_b32 s{S_WAVE}, v1")
    p.I("v_and_b32 v0, 63, v0")
    p.I(f"s_cmp_ge_u32 s{S_WAVE}, 4")
    p.I("s_cbranch_scc1 L_nocpf")
    code_prefetch(p)
    p.label("L_nocpf")
    p.I(f"s_bfe_u32 s{S_BL}, s2, {(3 << 16) | 3}")
    p.I(f"s_and_b32 s{S_T0}, s2, 1")
    p.I(f"s_lshl_b32 s{S_T0}, s{S_T0}, 3")
    p.I(f"s_add_u32 s{S_B}, s{S_T0}, s{S_BL}")
    p.I(f"s_bfe_u32 s{S_HG}, s2, {(2 << 16) | 1}")
    p.I(f"s_lshr_b32 s{S_P}, s2, 6")
    p.I(f"s_lshl_b32 s{S_T0}, s{S_HG}, 3")
    p.I(f"s_add_u32 s{S_H}, s{S_T0}, s{S_P}")
    p.I(f"s_and_b32 s{S_G}, s{S_WAVE}, 3")
    p.I(f"s_lshl_b32 s{S_M0B}, s{S_G}, 12")
    p.I(f"s_lshl_b32 s{S_XBASE}, s{S_B}, 17")
    p.I(f"s_lshl_b32 s{S_WQBASE}, s{S_H}, 8")
    if ROT == 1:
        p.I(f"s_lshl_b32 s{S_T0}, s{S_P}, 1")
        p.I(f"s_add_u32 s{S_C0}, s{S_BL}, s{S_T0}")
    elif ROT == 2:
        p.I(f"s_add_u32 s{S_T0}, s{S_BL}, s{S_P}")
        p.I(f"s_and_b32 s{S_T0}, s{S_T0}, 1")
        p.I(f"s_lshl_b32 s{S_C0}, s{S_T0}, 2")
    else:
        p.I(f"s_mov_b32 s{S_C0}, 0")


def scalars1(p):
    p.I(f"s_mov_b32 s{S_SW}, 0")
    p.I(f"s_and_b32 s{S_CLS}, s{S_BL}, {NCLS-1}")
    p.I(f"s_lshr_b32 s{S_KR}, s2, 3")
    p.I(f"s_add_u32 s{S_KR}, s{S_KR}, s2")
    p.I(f"s_add_u32 s{S_KR}, s{S_KR}, s{S_P}")
    p.I(f"s_lshl_b32 s{S_T0}, s{S_B}, 5")
    p.I(f"s_add_u32 s{S_T0}, s{S_T0}, s{S_H}")
    p.I(f"s_lshl_b32 s{S_KVBASE}, s{S_T0}, 17")
    p.I(f"s_lshl_b32 s{S_OBASE}, s{S_T0}, 15")


def scalars2(p):
    p.I(f"s_lshl_b32 s{S_WOB}, s{S_HG}, 20")
    p.I(f"s_lshl_b32 s{S_T0}, s{S_P}, 8")
    p.I(f"s_add_u32 s{S_WOB}, s{S_WOB}, s{S_T0}")
    p.I(f"s_lshl_b32 s{S_OINB}, s{S_B}, 20")
    p.I(f"s_lshl_b32 s{S_T0}, s{S_HG}, 18")
    p.I(f"s_add_u32 s{S_OINB}, s{S_OINB}, s{S_T0}")
    p.I(f"s_add_u32 s{S_OINB}, s{S_OINB}, s{S_M0B}")
    p.I(f"s_lshl_b32 s{S_T0}, s{S_B}, 2")
    p.I(f"s_add_u32 s{S_T0}, s{S_T0}, s{S_HG}")
    p.I(f"s_lshl_b32 s{S_T0}, s{S_T0}, 11")
    p.I(f"s_lshl_b32 s{S_T1}, s{S_G}, 7")
    p.I(f"s_add_u32 s{S_T0}, s{S_T0}, s{S_T1}")
    p.I(f"s_add_u32 s{S_FLAG}, s{S_T0}, {WS_F1}")
    p.I(f"s_lshl_b32 s{S_T1}, s{S_P}, 2")
    p.I(f"s_add_u32 s{S_PUB}, s{S_FLAG}, s{S_T1}")
    p.I(f"s_mov_b32 s{S_SCALE}, {QSCALE}")


QSL = [(3 * c) % 7 for c in range(8)], [(3 * c + 1) % 7 for c in range(8)], [(3 * c + 2) % 7 for c in range(8)]


def slot_kv(T):
    return [7, 8, 9, 3, 4, 5, 6, 0][T % 8]


class AddrSet:
    def __init__(self, p, regs):
        self.p, self.regs, self.hi = p, regs, 0

    def to(self, slot):
        hi = slot // 4
        if hi != self.hi:
            d = (hi - self.hi) * 65536
            for r in self.regs:
                if d > 0:
                    self.p.I(f"v_add_u32 v{r}, {d}, v{r}")
                else:
                    self.p.I(f"v_subrev_u32 v{r}, {-d}, v{r}")
            self.hi = hi
        return (slot % 4) * 16384


def tr_lane_base(p, dst, t1, t3):
    p.I(f"v_bfe_u32 v{t1}, v0, 2, 2")
    p.I(f"v_bfe_u32 v{dst}, v0, 3, 1")
    p.I(f"v_lshlrev_b32 v{dst}, 6, v{dst}")
    p.I(f"v_lshl_add_u32 v{dst}, v{t1}, 7, v{dst}")
    p.I(f"v_bfe_u32 v{t3}, v0, 4, 1")
    p.I(f"v_lshl_add_u32 v{dst}, v{t3}, 5, v{dst}")


def add_pi(p, dst, src, t3):
    p.I(f"v_and_b32 v{t3}, 1, v0")
    p.I(f"v_lshl_add_u32 v{dst}, v{t3}, 4, v{src}")
    p.I(f"v_bfe_u32 v{t3}, v0, 1, 1")
    p.I(f"v_lshl_add_u32 v{dst}, v{t3}, 3, v{dst}")


class FragRing:
    def __init__(self, p, items, base, n):
        self.p, self.items, self.base, self.n = p, items, base, n
        self.issued = 0

    def reg(self, i):
        return self.base + 4 * (i % self.n)

    def issue_next(self):
        if self.issued >= len(self.items):
            return False
        i = self.issued
        self.items[i](self.reg(i))
        self.issued += 1
        return True


class Pref:
    def __init__(self, p, items, groups, ops):
        self.p, self.items, self.groups, self.ops = p, items, groups, ops
        self.issued = 0
        self.regs = []
        self.busy = {g: -1 for g in groups}
        self.force = {}

    def reg(self, i):
        return self.regs[i]

    def fill(self, m, lim=10 ** 9, maxn=2, cap=15):
        n = 0
        while n < maxn and self.issued < min(lim, len(self.items)):
            i = self.issued
            if len(self.p.lgkm) + self.ops(i) > cap and i > m + 2:
                break
            c = [g for g in self.groups if self.busy[g] <= m and self.force.get(i, g) == g]
            if not c:
                break
            g = min(c, key=lambda g: self.busy[g])
            self.busy[g] = i
            self.regs.append(g)
            self.issued += 1
            self.items[i](g)
            n += 1


LX, LW, LK, LV, LWO, LOV, LPA, LPOLL, LDPOLL, LT = 0, 4, 8, 12, 16, 20, 21, 22, 23, 24


def loader_setup(p, R, which):
    t = lambda i: R + LT + i
    l8, m8, u1, l16, rr, hf, sw, tmp = [t(i) for i in range(8)]
    p.I(f"v_lshrrev_b32 v{l8}, 3, v0")
    p.I(f"v_and_b32 v{m8}, 7, v0")
    p.I(f"v_bfe_u32 v{u1}, v0, 4, 1")
    p.I(f"v_lshrrev_b32 v{l16}, 4, v0")
    p.I(f"v_bfe_u32 v{rr}, v0, 3, 2")
    p.I(f"v_lshrrev_b32 v{hf}, 5, v0")
    p.I(f"v_lshlrev_b32 v{sw}, 2, v{u1}")
    p.I(f"v_xor_b32 v{sw}, v{sw}, v{m8}")
    p.I(f"v_lshlrev_b32 v{sw}, 4, v{sw}")
    for w in which:
        if w == "x":
            p.I(f"s_lshl_b32 s{S_T0}, s{S_G}, 15")
            for j in range(4):
                p.I(f"v_add_u32 v{tmp}, {4*j}, v{l16}")
                p.I(f"v_and_b32 v{tmp}, 7, v{tmp}")
                p.I(f"v_xor_b32 v{tmp}, v{tmp}, v{m8}")
                p.I(f"v_lshlrev_b32 v{tmp}, 4, v{tmp}")
                p.I(f"v_lshl_add_u32 v{tmp}, v{l8}, 10, v{tmp}")
                p.I(f"v_add_u32 v{tmp}, {8*j*1024 - j*1024}, v{tmp}")
                p.I(f"v_add_u32 v{R+LX+j}, s{S_T0}, v{tmp}")
        elif w == "w":
            p.I(f"v_lshl_add_u32 v{tmp}, v{rr}, 13, v{sw}")
            p.I(f"v_lshl_add_u32 v{tmp}, v{hf}, 7, v{tmp}")
            p.I(f"s_lshl_b32 s{S_T0}, s{S_G}, 17")
            p.I(f"v_add_u32 v{tmp}, s{S_T0}, v{tmp}")
            for j in range(4):
                p.I(f"v_add_u32 v{R+LW+j}, {4*j*8192 - j*1024}, v{tmp}")
        elif w == "k":
            for j in range(4):
                p.I(f"v_add_u32 v{tmp}, {2*j}, v{u1}")
                p.I(f"v_xor_b32 v{tmp}, v{tmp}, v{m8}")
                p.I(f"v_lshlrev_b32 v{tmp}, 4, v{tmp}")
                p.I(f"v_lshl_add_u32 v{tmp}, v{rr}, 8, v{tmp}")
                p.I(f"v_lshl_add_u32 v{tmp}, v{hf}, 7, v{tmp}")
                p.I(f"v_add_u32 v{R+LK+j}, s{S_M0B}, v{tmp}")
        elif w == "v":
            p.I(f"v_lshl_add_u32 v{tmp}, v{rr}, 8, v{sw}")
            p.I(f"v_lshl_add_u32 v{tmp}, v{hf}, 7, v{tmp}")
            p.I(f"v_add_u32 v{R+LV}, s{S_M0B}, v{tmp}")
        elif w == "o":
            p.I(f"v_lshl_add_u32 v{tmp}, v{rr}, 10, v{sw}")
            p.I(f"v_lshl_add_u32 v{tmp}, v{hf}, 7, v{tmp}")
            p.I(f"s_lshl_b32 s{S_T0}, s{S_G}, 14")
            p.I(f"v_add_u32 v{tmp}, s{S_T0}, v{tmp}")
            for j in range(4):
                p.I(f"v_add_u32 v{R+LWO+j}, {4*j*1024 - j*1024}, v{tmp}")
            p.I(f"v_lshlrev_b32 v{R+LOV}, 4, v0")
            p.I(f"v_and_b32 v{tmp}, 3, v0")
            p.I(f"v_lshlrev_b32 v{R+LPA}, 2, v{tmp}")


class E:
    def __init__(self, kind, idx, need, slot=None, rel=None, gate=None):
        self.kind, self.idx, self.need, self.slot, self.rel, self.gate = kind, idx, need, slot, rel, gate
        self.free = -1
        self.at = None
        self.who = None


class Sched:
    def __init__(self, cfg):
        npre, mid, at = cfg.get("npre", 0), cfg.get("mid", 0), cfg.get("at", 16)
        self.at = at if mid else 99
        self.steps = []
        ents = []
        st = self.steps

        def ostep(o, n):
            for i in range(n):
                s = len(st)
                g = ({0: 1, 10: 5, 12: 6, 14: 7} if FINE else {0: 1, 8: 3}).get(o + i)
                if o + i not in PRE:
                    ents.append(E("wo", o + i, s, None, s + 1))
                ents.append(E("o", o + i, s, None, s + 1, gate=g))
                st.append(("O", i))
        for c in range(8):
            s = len(st)
            ents.extend([E("x", c, s, QSL[0][c], s + 1), E("w", c, s, QSL[1][c], s + 1), E("wb", c, s + 1, QSL[2][c], s + 2)])
            st += [("QA", 2 * c), ("QA", 2 * c + 1)]
        self.ka0 = len(st)
        kvs = []
        for g in range(32):
            if mid and g == 16 + at:
                self.seg = len(st)
                ostep(0, mid)
                self.seg_end = len(st)
            s = len(st)
            e = E("k" if g % 2 == 0 else "v", g // 2, s, slot_kv(g), None)
            kvs.append(e)
            ents.append(e)
            st.append(("K", g))
        for g, e in enumerate(kvs):
            e.rel = kvs[g + 2].need if g + 2 < 32 else len(st)
            if mid and g == 16 + at - 2:
                e.rel = self.seg
        for i, u in enumerate(PRE):
            n = kvs[PRE0 + PRED * i].need
            ents.append(E("wp", u, n, None, n + 1))
        self.seg1 = kvs[16].need
        self.tail0 = len(st)
        ostep(mid, 16 - mid)
        self.n = len(st)
        ents.sort(key=lambda e: e.need)
        held = [kvs[g] for g in range(16 + at, min(32, 16 + at + HOLD))] if mid else []
        sf = {x: -1 for x in range(10)}
        fixed = [e for e in ents if e.slot is not None]
        for e in ents:
            if e.slot is None:
                def cost(x):
                    if any(h.slot == x and h.need > e.need for h in held):
                        return (2000, 0)
                    nxt = min((f.need for f in fixed if f.slot == x and f.need >= e.need), default=10 ** 6)
                    if sf[x] > e.need - 1:
                        return (1000, 0)
                    return (max(0, (e.rel + 2) - nxt), sf[x])
                e.slot = min(range(10), key=cost)
            e.free = sf[e.slot]
            assert e.free <= e.need - 1, (e.kind, e.idx, e.need, e.free)
            sf[e.slot] = e.rel
        self.ents = ents
        order = list(ents)
        for e in kvs[:npre]:
            order.remove(e)
        order = kvs[:npre] + order
        for e, q in zip(kvs, KPOS):
            order.remove(e)
            order.insert(q, e)
            held.append(e)
        for i, g in enumerate(RES):
            e = kvs[g]
            e.reg = 64 + 16 * i
            e.wat = max(e.free, e.need - 2)
            assert e.wat <= e.need - 1
            e.free = -1
            order.remove(e)
            order.insert(RP0 + RPD * i, e)
            held.append(e)
            e.lneed, e.need = e.need, 10 ** 6
        held0 = list(held)
        held = [h for h in held if self.seg1 < h.need < 10 ** 6]
        self.held = held0
        if held:
            for e in held:
                order.remove(e)
            pos = order.index([e for e in order if e.kind == "wo"][0])
            order[pos:pos] = held
        self.order = order
        for e in order:
            if e.gate == 1:
                e.free = max(e.free, self.seg1 + PUBJ + 1)
            if e.gate == 3:
                e.free = max(e.free, self.tail0)
            if FINE and e.kind == "o" and e.idx >= 8:
                e.free = max(e.free, self.tail0 + 1)
        self._plan()

    def consumer(self, s):
        return "A" if self.steps[s][0] in ("QA", "K", "V") else "G"

    def loader(self, s):
        if s < 0:
            return "G"
        return "G" if self.consumer(s) == "A" else "A"

    def _plan(self):
        order = list(self.order)
        self.pre_tail = []
        for e in list(order):
            if e.kind == "o" and e.idx >= 8 and e.need <= self.tail0 + 1 and any(f.gate == 3 and f.need == self.tail0 for f in self.order):
                order.remove(e)
                e.at, e.who = self.tail0 - 0.5, "A"
                self.pre_tail.append(e)
        if self.pre_tail:
            for e in order:
                if e.kind == "o" and e.idx >= 8:
                    e.free = max(e.free, self.tail0)
        issued = []
        landed = set()
        for s in range(-1, self.n):
            for e in issued:
                if e.need <= s:
                    for f in issued[:issued.index(e) + 1]:
                        landed.add(f)
            nstep = 0
            while order:
                infl = sum(1 for e in issued if e not in landed)
                cand = None
                for i, e in enumerate(order[:12]):
                    if i > 0 and not e.kind in ("o", "wo"):
                        break
                    if e.kind == "o" and any(f.kind == "o" for f in order[:i]):
                        continue
                    if e.free <= s and not (e.gate and e.need > s + GLEAD):
                        cand = e
                        break
                    if e.kind != "o":
                        break
                if cand is None:
                    break
                must = any(f.need <= s + 1 for f in order)
                infl -= sum(1 for e in issued if e in self.held and e not in landed and s - e.at >= 2)
                if (infl >= (DTH if cand.kind in ("k", "v") and s >= self.ka0 else DT) or (nstep >= PER and s >= 0)) and not must:
                    break
                who = self.loader(s)
                if who == "A" and cand.kind in ("k", "v"):
                    break
                nstep += 1
                cand.at, cand.who = s, who
                issued.append(cand)
                order.remove(cand)
            for e in order:
                assert e.need > s + 1 or s == self.n - 1, ("not issued in time", e.kind, e.idx, e.need, s, e.free)
        assert not order
        self.issued = issued + self.pre_tail


class Loader:
    def __init__(self, p, R, tag):
        self.p, self.R, self.tag = p, R, tag
        self.cnt = 0
        self.mark = {}
        self.dchecked = False

    def I(self, t):
        if t.startswith("buffer_"):
            self.cnt += 1
        self.p.I(t)

    def kappa(self, o):
        p = self.p
        if o >= 8 and FINE:
            p.I(f"s_lshl_b32 s{S_T1}, s{S_P}, 1")
            p.I(f"s_add_u32 s{S_T1}, s{S_T1}, {o}")
        else:
            p.I(f"s_add_u32 s{S_T1}, s{S_BL}, {o}")
        p.I(f"s_and_b32 s{S_T1}, s{S_T1}, 7")
        if o >= 8:
            p.I(f"s_add_u32 s{S_T1}, s{S_T1}, 8")
        p.I(f"s_xor_b32 s{S_T1}, s{S_T1}, s{S_SW}")

    def spin(self, kind, ev):
        p, R = self.p, self.R
        name = f"{self.tag}{kind}{ev}"
        p.flush_hazards()
        p.I(f"s_mov_b32 s{S_SPIN}, {SPIN}")
        if kind == "d":
            p.I(f"s_lshl_b32 s{S_T0}, s{S_B}, 4")
            p.I(f"v_mov_b32 v{R+LT}, 0")
        else:
            p.I(f"s_add_u32 s{S_T0}, s{S_FLAG}, {ev*512}")
        p.label(f"L_sp_{name}")
        if kind == "d":
            self.I(f"buffer_load_dword v{R+LPOLL}, v{R+LT}, {sr(SRD_DBG,4)}, s{S_T0} offen sc1")
            p.wait(vm=0)
            p.I(f"v_cmp_gt_u32 vcc, 16, v{R+LPOLL}")
        else:
            self.I(f"buffer_load_dword v{R+LPOLL}, v{R+LPA}, {sr(SRD_WS,4)}, s{S_T0} offen sc1")
            p.wait(vm=0)
            p.I(f"v_cmp_ne_u32 vcc, 1, v{R+LPOLL}")
        p.I(f"s_cbranch_vccz L_ok_{name}")
        p.I(f"s_sub_u32 s{S_SPIN}, s{S_SPIN}, 1")
        p.I(f"s_cmp_lg_u32 s{S_SPIN}, 0")
        p.I(f"s_cbranch_scc1 L_sp_{name}")
        p.label(f"L_ok_{name}")

    def issue_at(self, sc, who, s):
        for e in sc.issued:
            if e.who == who and e.at == s:
                self.issue(e)
        for e in sc.issued:
            if e.gate and e.who == who and e.at == s + 1 and sc.loader(s) == who and s > sc.seg1:
                self.p.I(f"s_add_u32 s{S_T0}, s{S_FLAG}, {min(e.gate, 3)*512}")
                self.I(f"buffer_load_dword v{self.R+LPOLL}, v{self.R+LPA}, {sr(SRD_WS,4)}, s{S_T0} offen sc1")
                self.prepolled = e.gate

    def issue(self, e):
        p, R = self.p, self.R
        if e.gate and e.gate > 4:
            name = f"{self.tag}f{e.gate}"
            pl = lambda: self.I(f"buffer_load_dword v{R+LPOLL}, v{R+LPA}, {sr(SRD_WS,4)}, s{S_FLAG} offen offset:1536 sc1")
            p.I(f"s_add_u32 s{S_T0}, s{S_P}, {e.gate - 4}")
            p.I(f"s_and_b32 s{S_T0}, s{S_T0}, 3")
            if getattr(self, "prepolled", 0) != e.gate:
                pl()
            p.I(f"v_cmp_eq_u32 vcc, 1, v{R+LPOLL}")
            p.I(f"s_bitcmp1_b32 vcc_lo, s{S_T0}")
            p.I(f"s_cbranch_scc1 L_ok_{name}")
            keep = (p.t, list(p.vm), self.cnt)
            p.I(f"s_mov_b32 s{S_SPIN}, {SPIN}")
            p.label(f"L_sp_{name}")
            pl()
            p.wait(vm=0)
            p.I(f"v_cmp_eq_u32 vcc, 1, v{R+LPOLL}")
            p.I(f"s_bitcmp1_b32 vcc_lo, s{S_T0}")
            p.I(f"s_cbranch_scc1 L_ok_{name}")
            p.I("s_sleep 1")
            p.I(f"s_sub_u32 s{S_SPIN}, s{S_SPIN}, 1")
            p.I(f"s_cmp_lg_u32 s{S_SPIN}, 0")
            p.I(f"s_cbranch_scc1 L_sp_{name}")
            p.label(f"L_ok_{name}")
            p.t, p.vm, self.cnt = keep
        elif e.gate:
            if getattr(self, "prepolled", 0) == e.gate:
                p.I(f"v_cmp_ne_u32 vcc, 1, v{R+LPOLL}")
                p.I(f"s_cbranch_vccz L_ok_{self.tag}f{e.gate}")
                keep = (p.t, list(p.vm), self.cnt)
                self.spin("f", e.gate)
                p.t, p.vm, self.cnt = keep
            else:
                self.spin("f", e.gate)
        k = e.kind
        fl = AUXFLAGS
        if k in ("x", "w", "wb"):
            p.I(f"s_add_u32 s{S_T1}, s{S_C0}, {e.idx}")
            p.I(f"s_and_b32 s{S_T1}, s{S_T1}, 7")
            if k == "x":
                p.I(f"s_lshl_b32 s{S_DS}, s{S_T1}, 7")
                p.I(f"s_add_u32 s{S_DS}, s{S_DS}, s{S_XBASE}")
                vo, srd = [R + LX + j for j in range(4)], SRD_X
            else:
                p.I(f"s_lshl_b32 s{S_DS}, s{S_T1}, 19")
                p.I(f"s_add_u32 s{S_DS}, s{S_DS}, s{S_WQBASE}")
                if k == "wb":
                    p.I(f"s_xor_b32 s{S_DS}, s{S_DS}, {HX * 256}")
                vo, srd = [R + LW + j for j in range(4)], SRD_WQ
        elif k in ("k", "v"):
            hd, t = e.idx // 8, e.idx % 8
            if KROT:
                p.I(f"s_add_u32 s{S_T1}, s{S_KR}, {t}")
                p.I(f"s_and_b32 s{S_T1}, s{S_T1}, 7")
                p.I(f"s_lshl_b32 s{S_T1}, s{S_T1}, 14")
                p.I(f"s_add_u32 s{S_DS}, s{S_KVBASE}, s{S_T1}")
                if hd:
                    p.I(f"s_xor_b32 s{S_DS}, s{S_DS}, {HX * 131072}")
            else:
                off = hd * 4 * 131072 + t * 16384
                p.I(f"s_add_u32 s{S_DS}, s{S_KVBASE}, {off}")
            vo, srd = ([R + LK + j for j in range(4)], SRD_K) if k == "k" else ([R + LV] * 4, SRD_V)
            fl = KVFLAGS
        elif k in ("wo", "wp"):
            self.kappa(e.idx)
            p.I(f"s_lshl_b32 s{S_DS}, s{S_T1}, 16")
            p.I(f"s_add_u32 s{S_DS}, s{S_DS}, s{S_WOB}")
            vo, srd = [R + LWO + j for j in range(4)], SRD_WO
        else:
            self.kappa(e.idx)
            p.I(f"s_lshl_b32 s{S_DS}, s{S_T1}, 14")
            p.I(f"s_add_u32 s{S_DS}, s{S_DS}, s{S_OINB}")
            vo, srd, fl = [R + LOV] * 4, SRD_WS, OFLAGS
        if hasattr(e, "reg"):
            for j in range(4):
                self.I(f"buffer_load_dwordx4 {vr(e.reg + 4*j, 4)}, v{vo[j]}, {sr(srd,4)}, s{S_DS} offen offset:{j*1024} {fl}")
            self.mark[e] = self.cnt
            return
        p.I(f"s_add_u32 m0, s{S_M0B}, {e.slot * 16384}")
        for j in range(4):
            self.I(f"buffer_load_dwordx4 v{vo[j]}, {sr(srd,4)}, s{S_DS} offen offset:{j*1024} {fl} lds")
        self.mark[e] = self.cnt

    def wait_for(self, s, **kw):
        need = [m for e, m in self.mark.items() if e.need == s]
        if need:
            self.p.wait(vm=self.cnt - max(need), **kw)
        elif kw:
            self.p.wait(**kw)


V_T, V_AK, V_AV, V_M, V_L, V_ST, V_MX = 1, 2, 6, 8, 9, 14, 15
V_AW, V_AX = 11, 250
V_FR = 16
V_S = [40, 56]
V_Q = 72
V_O = 104
V_QB = 168
V_FR2 = 200
A_R = 216


def lane_setup_A(p):
    t0, t1, t2, t3 = 16, 17, 18, 19
    p.I(f"v_lshrrev_b32 v{t0}, 5, v0")
    p.I(f"v_and_b32 v{t1}, 31, v0")
    p.I(f"v_bfe_u32 v{t2}, v0, 1, 3")
    p.I(f"v_xor_b32 v{t2}, v{t2}, v{t0}")
    p.I(f"v_lshlrev_b32 v{t2}, 4, v{t2}")
    p.I(f"v_lshrrev_b32 v{t3}, 2, v{t1}")
    p.I(f"v_lshlrev_b32 v{t3}, 10, v{t3}")
    p.I(f"v_and_b32 v20, 3, v{t1}")
    p.I(f"v_lshl_add_u32 v{t3}, v20, 7, v{t3}")
    p.I(f"v_add_u32 v{V_AK}, v{t3}, v{t2}")
    for i in range(1, 4):
        p.I(f"v_xor_b32 v{V_AK+i}, {i*32}, v{V_AK}")
    p.I(f"v_lshlrev_b32 v{t3}, 7, v{t1}")
    p.I(f"v_add3_u32 v{V_AX}, v{t3}, v{t2}, s{S_M0B}")
    for i in range(1, 4):
        p.I(f"v_xor_b32 v{V_AX+i}, {i*32}, v{V_AX}")
    tr_lane_base(p, t2, t1, t3)
    p.I(f"v_and_b32 v{t3}, 3, v0")
    p.I(f"v_lshl_add_u32 v20, v{t3}, 3, v{t2}")
    p.I(f"v_lshl_add_u32 v{V_AV}, v{t0}, 10, v20")
    p.I(f"v_xor_b32 v{V_AV+1}, 64, v{V_AV}")
    add_pi(p, 20, t2, t3)
    p.I(f"v_lshl_add_u32 v{V_AW}, v{t0}, 11, v20")
    p.I(f"v_xor_b32 v{V_AW+1}, 64, v{V_AW}")
    p.I(f"v_lshlrev_b32 v{V_ST}, 4, v0")
    p.I(f"v_add_u32 v{V_ST}, s{S_M0B}, v{V_ST}")


def flag_store(p, sreg, I=None):
    I = I or p.I
    p.I(f"v_mov_b32 v{V_T}, 1")
    p.I(f"v_mov_b32 v{V_MX}, 0")
    p.I(f"s_mov_b64 {sr(S_EX,2)}, exec")
    p.I("s_mov_b64 exec, 1")
    I(f"buffer_store_dword v{V_T}, v{V_MX}, {sr(SRD_WS,4)}, s{sreg} offen sc1")
    p.I(f"s_mov_b64 exec, {sr(S_EX,2)}")


def gemm_phase(p, nunits, open_unit, frag_item, mfma, ring_base, nfr, extra=None, cls=None):
    items = [frag_item(c, s, mb) for c in range(nunits) for s in range(4) for mb in range(4)]
    ring = (cls or FragRing)(p, items, ring_base, nfr)
    open_unit(0)
    opened = 1
    for _ in range(5):
        ring.issue_next()
    AH = nfr - 1
    idle = 0
    n = 16 * nunits
    for fi in range(n):
        c, s, mb = fi // 16, (fi // 4) % 4, fi % 4
        mfma(c, s, mb, ring.reg(fi))
        for _ in range(2):
            if ring.issued < min(opened * 16, fi + 1 + AH, n):
                ring.issue_next()
        if extra:
            extra(fi)
        if ring.issued == opened * 16 and opened < nunits:
            idle += 1
            if idle >= 3:
                open_unit(opened)
                opened += 1
                idle = 0


def gen_A(p, scheds):
    stamp(p, 0)
    lane_setup_A(p)
    p.raw("  s_waitcnt lgkmcnt(0)")
    srds(p, "xow")
    scalars1(p)
    scalars2(p)
    if PRIO_A:
        p.I(f"s_setprio {PRIO_A}")
    p.I(f"s_mov_b32 s{S_HEADCNT}, 0")
    p.I(f"s_mov_b32 s{S_SEG}, 99")
    p.I(f"s_mov_b32 s{SRD_X}, s{SRD_WS}")
    p.I(f"s_mov_b32 s{SRD_X+1}, s{SRD_WS+1}")
    p.I(f"s_mov_b32 s{SRD_X+2}, 0")
    ak, aw, av, ax = AddrSet(p, [V_AK + i for i in range(4)]), AddrSet(p, [V_AW, V_AW + 1]), AddrSet(p, [V_AV, V_AV + 1]), AddrSet(p, [V_AX + i for i in range(4)])

    def open_u(u):
        c, h = u // 2, u % 2
        p.wait(lgkm=0)
        p.I("s_barrier")
        if u == 0:
            stamp(p, 1)
        if h == 0:
            off = ax.to(QSL[0][c])
            for ss in range(4):
                p.I(f"ds_read_b128 {vr(V_S[c % 2] + 4 * ss, 4)}, v{V_AX + ss} offset:{off}")

    def mk_w(u, s, mb):
        def f(reg):
            off = aw.to(QSL[1 + u % 2][u // 2]) + s * 4096 + (mb // 2) * 512
            p.I(f"ds_read_b64_tr_b16 {vr(reg, 2)}, v{V_AW + mb % 2} offset:{off}")
            p.I(f"ds_read_b64_tr_b16 {vr(reg + 2, 2)}, v{V_AW + mb % 2} offset:{off + 1024}")
        return f

    def q_mfma(u, s, mb, reg):
        acc = vr((V_O, V_QB)[u % 2] + 16 * mb, 16)
        p.I(f"v_mfma_f32_32x32x16_bf16 {acc}, {vr(reg, 4)}, {vr(V_S[(u // 2) % 2] + 4 * s, 4)}, {'0' if (u < 2 and s == 0) else acc}")

    def pack_ops(src, dst):
        ops = []
        for mb in range(4):
            for i in range(16):
                ops.append(f"v_mul_f32 v{src+16*mb+i}, s{S_SCALE}, v{src+16*mb+i}")
            for i in range(8):
                ops.append(f"v_cvt_pk_bf16_f32 v{dst+8*mb+i}, v{src+16*mb+2*i}, v{src+16*mb+2*i+1}")
        return ops

    qring = [V_FR + 4 * i for i in range(6)] + [232 + 4 * i for i in range(4)]

    class RR(FragRing):
        def reg(self, i):
            return qring[i % len(qring)]
    pk = pack_ops(V_O, V_Q)

    def qextra(fi):
        if fi >= 243:
            for _ in range(8):
                if pk:
                    p.I(pk.pop(0))
    gemm_phase(p, 16, open_u, mk_w, q_mfma, V_FR, len(qring), extra=qextra, cls=RR)
    while pk:
        p.I(pk.pop(0))

    segs = sorted(set(sc.at for sc in scheds if sc.at < 16))

    def open_tile(T):
        if T in segs:
            p.I(f"s_cmp_eq_u32 s{S_SEG}, {T}")
            p.I(f"s_cbranch_scc1 L_A_seg{T}")
            p.label(f"L_A_segb{T}")
        if T == 16:
            p.I(f"s_cmp_eq_u32 s{S_HEADCNT}, 1")
            p.I("s_cbranch_scc1 L_A_nobar")
            p.I("s_barrier")
            p.label("L_A_nobar")
        else:
            p.I("s_barrier")

    def mk_k(j, ks):
        def f(reg):
            if j % 2 == 0 and ks == 0:
                open_tile(j)
            off = ak.to(slot_kv(j - j % 2)) + (j % 2) * 8192 + (ks // 4) * 512
            p.I(f"ds_read_b128 {vr(reg, 4)}, v{V_AK + ks % 4} offset:{off}")
        f.n = 1
        return f

    def mk_v(j, h, mb):
        def f(reg):
            if j % 2 == 0 and h == 0 and mb == 0:
                open_tile(j + 1)
            off = av.to(slot_kv(j - j % 2 + 1)) + ((j % 2) * 2 + h) * 4096 + (mb // 2) * 512
            p.I(f"ds_read_b64_tr_b16 {vr(reg, 2)}, v{V_AV + mb % 2} offset:{off}")
            p.I(f"ds_read_b64_tr_b16 {vr(reg + 2, 2)}, v{V_AV + mb % 2} offset:{off + 2048}")
        f.n = 2
        return f

    seq = []
    for j in range(1, 16):
        seq += [("k", j, ks) for ks in range(8)]
        seq += [("v", j - 1, x) for x in range(8)]
    seq += [("v", 15, x) for x in range(8)]
    seq += [("k", 16, ks) for ks in range(8)]
    item = lambda e: mk_k(e[1], e[2]) if e[0] == "k" else mk_v(e[1], e[2] // 4, e[2] % 4)
    g6 = [V_FR + 4 * i for i in range(6)]
    r0 = Pref(p, [mk_k(0, ks) for ks in range(8)] + [item(e) for e in seq[:6]], g6, lambda i: 1)
    r0.fill(-1, maxn=6, cap=99)
    stamp(p, 2)
    pk = pack_ops(V_QB, V_QB)
    for ks in range(8):
        S = vr(V_S[0], 16)
        p.I(f"v_mfma_f32_32x32x16_bf16 {S}, {vr(r0.reg(ks), 4)}, {vr(V_Q + 4 * ks, 4)}, {S if ks else '0'}")
        r0.fill(ks, maxn=1, cap=99)
        for _ in range(12):
            p.I(pk.pop(0))
    entry_regs = r0.regs[8:14]
    av.to(slot_kv(15))
    ent = (ak.hi, av.hi)
    p.wait(lgkm=0)
    p.flush_hazards()
    p.label("L_A_head")
    p.reset_state()
    p.I(f"v_mov_b32 v{V_L}, 0")
    p.I(f"v_mov_b32 v{V_L+1}, 0")
    p.I(f"v_mov_b32 v{V_M}, 0")
    p.I(f"s_mov_b32 s{S_THR}, {THR}")
    p.I(f"s_mov_b32 s{S_FIRST}, 1")
    items = [item(e) for e in seq] + [item(e) for e in seq[:6]]
    ring = Pref(p, items, g6 + [V_FR2 + 4 * i for i in range(2)], lambda i: items[i].n)
    ring.regs = list(entry_regs)
    ring.issued = 6
    for i, g in enumerate(entry_regs):
        ring.busy[g] = i
        ring.force[len(seq) + i] = g

    def max_ops(i):
        S = V_S[i % 2]
        a = (lambda r: f"|v{r}|") if i == 0 else (lambda r: f"v{r}")
        return [f"v_max3_f32 v{V_MX}, {a(S)}, {a(S+1)}, {a(S+2)}",
                f"v_max3_f32 v{V_T}, {a(S+3)}, {a(S+4)}, {a(S+5)}",
                f"v_max3_f32 v{V_MX}, v{V_MX}, {a(S+6)}, {a(S+7)}",
                f"v_max3_f32 v{V_T}, v{V_T}, {a(S+8)}, {a(S+9)}",
                f"v_max3_f32 v{V_MX}, v{V_MX}, {a(S+10)}, {a(S+11)}",
                f"v_max3_f32 v{V_T}, v{V_T}, {a(S+12)}, {a(S+13)}",
                f"v_max3_f32 v{V_MX}, v{V_MX}, {a(S+14)}, {a(S+15)}",
                f"v_max_f32 v{V_MX}, v{V_MX}, v{V_T}",
                f"v_cmp_nge_f32 vcc, s{S_THR}, v{V_MX}"]

    def exp_ops(i):
        S = V_S[i % 2]
        ops = []
        for k in range(9):
            if k < 8:
                ops.append(f"v_exp_f32 v{S+2*k}, v{S+2*k}")
            if k >= 1:
                a = S + 2 * k - 2
                ops.append(f"v_add_f32 v{V_L}, v{V_L}, v{a}")
            if k < 8:
                ops.append(f"v_exp_f32 v{S+2*k+1}, v{S+2*k+1}")
            if k >= 1:
                ops.append(f"v_add_f32 v{V_L+1}, v{V_L+1}, v{a+1}")
                ops.append(f"v_cvt_pk_bf16_f32 v{S+k-1}, v{a}, v{a+1}")
        return ops

    cost = lambda o: 2 if o.startswith("v_exp") else 1
    stubs, q = [], []
    start_at, end_at = {0: -1}, {}
    for m, e in enumerate(seq):
        if e[0] == "k" and e[2] == 7 and e[1] < 16:
            start_at[e[1]] = m + 2
        if e[0] == "v" and e[2] == 0:
            end_at[e[1]] = m
    epi, cur, nseq = None, 0, len(seq)
    brk = [False]

    def run_valu(budget):
        while q and budget > 0:
            o = q[0]
            if o.startswith("BR"):
                if brk[0] and budget < 10 ** 5:
                    brk[0] = False
                    return
                q.pop(0)
                i = int(o[3:])
                p.I(f"s_cbranch_vccnz L_A_stub{i}")
                p.label(f"L_A_back{i}")
                if i == 0:
                    p.I(f"s_mov_b32 s{S_FIRST}, 0")
                stubs.append(i)
            else:
                q.pop(0)
                budget -= cost(o)
                p.I(o)
                if o.startswith("v_cmp"):
                    brk[0] = budget > 0

    q += max_ops(0) + ["BR 0"] + exp_ops(0)
    run_valu(12)
    for m, e in enumerate(seq):
        kind, j, x = e
        if m == nseq - 8:
            p.I(f"s_cmp_eq_u32 s{S_HEADCNT}, 1")
            p.I("s_cbranch_scc1 L_A_tail")
            epi = epi_ops()
            if SPREAD:
                epi = []
                for f in range(8):
                    a = V_O + 8 * f
                    for i in range(8):
                        epi.append(f"v_mul_f32 v{a+i}, v{V_M}, v{a+i}")
                    for i in range(4):
                        epi.append(f"v_cvt_pk_bf16_f32 v{V_QB+4*f+i}, v{a+2*i}, v{a+2*i+1}")
            if os.environ.get("NOST"):
                epi = [o for o in epi if not o.startswith("buffer_store")]
        if kind == "v" and x == 0 and cur == j:
            run_valu(10 ** 6)
        if m % 2 == 0:
            p.touch([ring.reg(m + 1) + k for k in range(4)])
        if kind == "k":
            S = vr(V_S[j % 2], 16)
            p.I(f"v_mfma_f32_32x32x16_bf16 {S}, {vr(ring.reg(m), 4)}, {vr(V_Q + 4 * x, 4)}, {S if x else '0'}")
        else:
            h, mb = x // 4, x % 4
            acc = vr(V_O + 16 * mb, 16)
            p.I(f"v_mfma_f32_32x32x16_bf16 {acc}, {vr(ring.reg(m), 4)}, {vr(V_S[j % 2] + 4 * h, 4)}, {'0' if (j == 0 and h == 0) else acc}")
        if q and q[0].startswith("BR"):
            run_valu(1)
        ring.fill(m, maxn=2)
        for i, s0 in start_at.items():
            if s0 == m:
                assert not q
                q += max_ops(i) + [f"BR {i}"] + exp_ops(i)
                cur = i
        if q:
            slots = max(1, end_at[cur] - m)
            tot = sum(cost(o) for o in q if not o.startswith("BR"))
            run_valu(-(-tot // slots))
        if SPREAD and kind == "k" and SP0 <= j < SP0 + 8 and x == 3:
            f = j - SP0
            if f % 4 == 0:
                p.I(f"s_sub_u32 s{S_T2}, s{S_OBASE}, {4*32768 - (f // 4) * 16384}")
            p.I(f"buffer_store_dwordx4 {vr(V_QB + 4*f, 4)}, v{V_ST}, {sr(SRD_X,4)}, s{S_T2} offen offset:{(f % 4)*1024} {STFLAGS}")
        if kind == "k" and j == PUBJ and x == 1:
            p.I(f"s_cmp_eq_u32 s{S_HEADCNT}, 0")
            p.I("s_cbranch_scc1 L_A_nopub")
            t_keep = p.t
            p.raw("  s_waitcnt vmcnt(0)")
            p.I(f"s_add_u32 s{S_T0}, s{S_PUB}, 512")
            flag_store(p, S_T0)
            p.label("L_A_nopub")
            p.t = t_keep
        if kind == "v" and j == 15 and x == 1:
            p.I(f"v_add_f32 v{V_L}, v{V_L}, v{V_L+1}")
            p.I(f"v_mov_b32 v{V_T}, v{V_L}")
            p.I(f"v_permlane32_swap_b32 v{V_T}, v{V_L}")
            p.I(f"v_add_f32 v{V_L}, v{V_L}, v{V_T}")
            p.I(f"v_rcp_f32 v{V_M}, v{V_L}")
        if kind == "v" and j == 15 and x >= 2:
            for k in range(6):
                r = (x - 2) * 6 + k
                if r < 32:
                    p.I(f"v_mov_b32 v{V_Q+r}, v{V_QB+r}")
        if epi is not None and m >= nseq - 7:
            for _ in range(16):
                if epi:
                    p.I(epi.pop(0))
        if m in (119, 247):
            stamp(p, 3 if m == 119 else 4)
    ring.fill(nseq - 1, maxn=6, cap=99)
    while epi:
        p.I(epi.pop(0))
    assert ring.regs[nseq:nseq + 6] == entry_regs
    assert (ak.hi, av.hi) == ent, ((ak.hi, av.hi), ent)
    p.I(f"s_xor_b32 s{S_OBASE}, s{S_OBASE}, {HX*32768}")
    p.I(f"s_mov_b32 s{S_HEADCNT}, 1")
    p.I(f"s_mov_b32 s{SRD_X+2}, s{SRD_WS+2}")
    p.I(f"s_mov_b32 s{S_SEG}, {scheds[0].at}")
    for c in range(1, NCLS):
        p.I(f"s_cmp_eq_u32 s{S_CLS}, {c}")
        p.I(f"s_cselect_b32 s{S_SEG}, {scheds[c].at}, s{S_SEG}")
    loader_setup(p, A_R, "o")
    p.wait(lgkm=0)
    if STAMP in (1, 2):
        for i in range(4):
            p.I(f"s_mov_b32 s{S_STAMP+10+i}, s{S_STAMP+6+i}")
    p.flush_hazards()
    p.I("s_branch L_A_head")
    for c, sc in enumerate(scheds):
        if sc.at < 16:
            assert sum(1 for x in scheds if x.at == sc.at) == 1
            p.label(f"L_A_seg{sc.at}")
            p.reset_state()
            p.I(f"s_mov_b64 {sr(S_SRET,2)}, vcc")
            ld = Loader(p, A_R, f"a1c{c}")
            for s in range(sc.seg, sc.seg_end):
                ld.wait_for(s)
                p.I("s_barrier")
                ld.issue_at(sc, "A", s)
            p.I(f"s_mov_b64 vcc, {sr(S_SRET,2)}")
            p.flush_hazards()
            p.I(f"s_branch L_A_segb{sc.at}")
    p.label("L_A_tail")
    p.reset_state()
    p.nop(12)
    for o in epi_ops():
        p.I(o)
    for c in range(1, NCLS):
        p.I(f"s_cmp_eq_u32 s{S_CLS}, {c}")
        p.I(f"s_cbranch_scc1 L_A_s2c{c}")
    for c, sc in enumerate(scheds):
        if c:
            p.label(f"L_A_s2c{c}")
        p.reset_state()
        p.nop(2)
        ld = Loader(p, A_R, f"a2c{c}")

        def pub():
            p.wait(vm=ld.cnt)
            p.I(f"s_add_u32 s{S_T0}, s{S_PUB}, {3*512}")
            flag_store(p, S_T0, ld.I)
            stamp(p, 7)
        early = any(e.gate == 3 and e.at <= sc.tail0 + 1 for e in sc.issued)
        if early:
            pub()
        if sc.pre_tail:
            for e in sc.pre_tail:
                ld.issue(e)
        for s in range(sc.tail0, sc.n):
            ld.wait_for(s)
            p.I("s_barrier")
            if s == sc.tail0 + PUBD and PUBD and not early:
                pub()
            ld.issue_at(sc, "A", s)
            if s == sc.tail0 and not PUBD and not early:
                pub()
        if STAMP in (1, 2):
            p.I(f"s_cmp_lg_u32 s{S_WAVE}, 0")
            p.I("s_cbranch_scc1 L_exit")
            stamp_store(p, 8, 1)
        p.I("s_endpgm")

    for i in stubs:
        p.label(f"L_A_stub{i}")
        p.raw(f"  s_call_b64 {sr(S_RET,2)}, L_A_fix{i % 2}")
        p.raw(f"  s_branch L_A_back{i}")
    for par in range(2):
        S, Pp = V_S[par], V_S[1 - par]
        p.label(f"L_A_fix{par}")
        p.reset_state()
        p.nop(16)
        p.I(f"s_mov_b32 s{S_THR}, 0xff800000")
        for k in range(16):
            p.I(f"v_sub_f32 v{S+k}, v{S+k}, v{V_M}")
        p.I(f"v_max3_f32 v{V_MX}, v{S}, v{S+1}, v{S+2}")
        for k in range(3, 15, 2):
            p.I(f"v_max3_f32 v{V_MX}, v{V_MX}, v{S+k}, v{S+k+1}")
        p.I(f"v_max_f32 v{V_MX}, v{V_MX}, v{S+15}")
        p.I(f"v_mov_b32 v{V_T}, v{V_MX}")
        p.I(f"v_permlane32_swap_b32 v{V_T}, v{V_MX}")
        p.I(f"v_max_f32 v{V_MX}, v{V_MX}, v{V_T}")
        p.I(f"v_ceil_f32 v{V_MX}, v{V_MX}")
        p.I(f"s_cmp_eq_u32 s{S_FIRST}, 1")
        p.I(f"s_cbranch_scc1 L_A_fixa{par}")
        p.I(f"v_max_f32 v{V_MX}, 0, v{V_MX}")
        p.label(f"L_A_fixa{par}")
        p.nop(2)
        for k in range(16):
            p.I(f"v_sub_f32 v{S+k}, v{S+k}, v{V_MX}")
        p.I(f"v_add_f32 v{V_M}, v{V_M}, v{V_MX}")
        p.I(f"s_cbranch_scc1 L_A_fixd{par}")
        p.I(f"v_exp_f32 v{V_MX}, -v{V_MX}")
        for k in range(2):
            p.I(f"v_mul_f32 v{V_L+k}, v{V_L+k}, v{V_MX}")
        for k in range(64):
            p.I(f"v_mul_f32 v{V_O+k}, v{V_O+k}, v{V_MX}")
        for k in range(8):
            r = Pp + k
            p.I(f"v_lshlrev_b32 v{V_T}, 16, v{r}")
            p.I(f"v_and_b32 v{r}, 0xffff0000, v{r}")
            p.I(f"v_mul_f32 v{V_T}, v{V_T}, v{V_MX}")
            p.I(f"v_mul_f32 v{r}, v{r}, v{V_MX}")
            p.I(f"v_cvt_pk_bf16_f32 v{r}, v{V_T}, v{r}")
        p.label(f"L_A_fixd{par}")
        p.nop(4)
        p.raw(f"  s_setpc_b64 {sr(S_RET,2)}")


def epi_ops():
    ops = []
    for f in range(8):
        a = V_O + 8 * f
        for i in range(8):
            ops.append(f"v_mul_f32 v{a+i}, v{V_M}, v{a+i}")
        for i in range(4):
            ops.append(f"v_cvt_pk_bf16_f32 v{a+i}, v{a+2*i}, v{a+2*i+1}")
        if f % 4 == 0:
            ops.append(f"s_add_u32 s{S_T0}, s{S_OBASE}, {(f // 4) * 16384}")
        ops.append(f"buffer_store_dwordx4 {vr(a,4)}, v{V_ST}, {sr(SRD_WS,4)}, s{S_T0} offen offset:{(f % 4)*1024} {STFLAGS}")
    return ops


G_R = 8
G_AX = 1
G_AW = 5
G_AWO = 7
G_AO = G_R + LT + 7
G_ACC = 64
G_XF = 128
G_B = 128
G_W = [128, 144]
G_FR = 40
G_FR2 = 160


def gen_G_setup2(p):
    loader_setup(p, G_R, "o")
    scalars2(p)
    tr_lane_base(p, 40, 41, 42)
    add_pi(p, 40, 40, 42)
    p.I("v_lshrrev_b32 v43, 5, v0")
    p.I(f"v_lshl_add_u32 v{G_AWO}, v43, 10, v40")
    p.I(f"s_and_b32 s{S_T0}, s{S_G}, 1")
    p.I(f"s_lshl_b32 s{S_T0}, s{S_T0}, 6")
    p.I(f"v_xor_b32 v{G_AWO}, s{S_T0}, v{G_AWO}")
    p.I(f"s_lshr_b32 s{S_T0}, s{S_G}, 1")
    p.I(f"s_lshl_b32 s{S_T0}, s{S_T0}, 9")
    p.I(f"v_add_u32 v{G_AWO}, s{S_T0}, v{G_AWO}")
    p.I(f"v_lshlrev_b32 v{G_AO}, 4, v0")
    p.I(f"v_lshl_add_u32 v{G_AW}, v43, 11, v40")
    p.I(f"v_xor_b32 v{G_AW+1}, 64, v{G_AW}")
    p.I(f"v_bfe_u32 v42, v0, 1, 3")
    p.I(f"v_xor_b32 v42, v42, v43")
    p.I(f"v_lshlrev_b32 v42, 4, v42")
    p.I(f"v_and_b32 v40, 31, v0")
    p.I(f"v_lshlrev_b32 v40, 7, v40")
    p.I(f"v_add3_u32 v{G_AX}, v40, v42, s{S_M0B}")
    for i in range(1, 4):
        p.I(f"v_xor_b32 v{G_AX+i}, {i*32}, v{G_AX}")


def gen_reset(p, tag):
    p.I(f"s_cmp_lg_u32 s{S_WAVE}, 4")
    p.I(f"s_cbranch_scc1 L_G_norst{tag}")
    p.I(f"s_lshl_b32 s{S_T0}, s{S_B}, 2")
    p.I(f"s_add_u32 s{S_T0}, s{S_T0}, s{S_HG}")
    p.I(f"s_lshl_b32 s{S_T0}, s{S_T0}, 11")
    p.I(f"s_lshl_b32 s{S_T1}, s{S_P}, 2")
    p.I(f"s_add_u32 s{S_T0}, s{S_T0}, s{S_T1}")
    p.I(f"s_add_u32 s{S_T0}, s{S_T0}, {WS_F1}")
    p.I(f"v_lshlrev_b32 v48, 7, v0")
    p.I(f"v_add_u32 v48, s{S_T0}, v48")
    p.I(f"s_lshl_b32 s{S_T0}, s{S_B}, 2")
    p.I(f"s_add_u32 s{S_T0}, s{S_T0}, s{S_P}")
    p.I(f"s_lshl_b32 s{S_T0}, s{S_T0}, 11")
    p.I(f"s_lshl_b32 s{S_T1}, s{S_HG}, 2")
    p.I(f"s_add_u32 s{S_T0}, s{S_T0}, s{S_T1}")
    p.I(f"s_add_u32 s{S_T0}, s{S_T0}, {WS_F2 - 16*128}")
    p.I(f"v_lshlrev_b32 v49, 7, v0")
    p.I(f"v_add_u32 v49, s{S_T0}, v49")
    p.I("v_cmp_gt_u32 vcc, 16, v0")
    p.I("v_cndmask_b32 v48, v49, v48, vcc")
    p.I("v_mov_b32 v49, 0")
    p.I(f"s_mov_b64 {sr(S_EX,2)}, exec")
    p.I("s_mov_b32 exec_hi, 0")
    p.raw(f"  buffer_store_dword v49, v48, {sr(SRD_WS,4)}, 0 offen sc1")
    p.I(f"s_mov_b64 exec, {sr(S_EX,2)}")
    p.label(f"L_G_norst{tag}")


def gen_reset_done(p, tag):
    p.I(f"s_cmp_lg_u32 s{S_WAVE}, 4")
    p.I(f"s_cbranch_scc1 L_G_nord{tag}")
    p.I("v_mov_b32 v49, 1")
    p.I(f"s_lshl_b32 s{S_T0}, s{S_B}, 4")
    p.I(f"v_mov_b32 v48, s{S_T0}")
    p.I(f"s_mov_b64 {sr(S_EX,2)}, exec")
    p.I("s_mov_b64 exec, 1")
    p.raw(f"  buffer_atomic_add v49, v48, {sr(SRD_DBG,4)}, 0 offen sc1")
    p.I(f"s_mov_b64 exec, {sr(S_EX,2)}")
    p.label(f"L_G_nord{tag}")


def gen_G_class(p, c, sc):
    tag = f"c{c}"
    ld = Loader(p, G_R, f"g{tag}")
    awo, ao = AddrSet(p, [G_AWO]), AddrSet(p, [G_AO])
    aw, ax = AddrSet(p, [G_AW, G_AW + 1]), AddrSet(p, [G_AX + i for i in range(4)])
    by = {(e.kind, e.idx): e for e in sc.ents}

    def issue_at(s):
        ld.issue_at(sc, "G", s)

    def handoff():
        p.I(f"s_lshl_b32 s{S_T0}, s{S_G}, 13")
        p.I(f"s_add_u32 s{S_T0}, s{S_T0}, {HSLOT*16384}")
        p.I(f"v_add_u32 v48, s{S_T0}, v{G_R+LOV}")
        for mb in range(4):
            for h in range(2):
                p.I(f"ds_write_b128 v48, {vr(G_ACC + 16*mb + 4*h, 4)} offset:{(2*mb+h)*1024}")

    wbuf = {u: 128 + 16 * i for i, u in enumerate(PRE)}
    for u in range(16):
        if u not in wbuf:
            used = {wbuf[v] for v in wbuf if v >= u - 1}
            wbuf[u] = [b for b in range(128, 256, 16) if b not in used][0]

    def read_w(e):
        off = awo.to(e.slot)
        for s4 in range(4):
            r = wbuf[e.idx] + 4 * s4
            p.I(f"ds_read_b64_tr_b16 {vr(r,2)}, v{G_AWO} offset:{off + s4*4096}")
            p.I(f"ds_read_b64_tr_b16 {vr(r+2,2)}, v{G_AWO} offset:{off + s4*4096 + 2048}")

    stamp(p, 0)
    issue_at(-1)
    srds(p, "kvoudw")
    scalars1(p)
    gen_reset(p, tag)
    loader_setup(p, G_R, "kv")
    gen_G_setup2(p)
    if PRIO_G:
        p.I(f"s_setprio {PRIO_G}")
    nm = [1]

    def mark():
        if nm[0] < 10:
            stamp(p, nm[0])
            nm[0] += 1

    s = 0
    first_o = True
    while s < sc.n:
        name, idx = sc.steps[s]
        if name in ("QA", "K"):
            ld.wait_for(s, **({"lgkm": 0} if p.lgkm else {}))
            p.I("s_barrier")
            if (name == "QA" and idx == 0) or (name == "K" and idx % 8 == 0):
                mark()
            for e in sc.ents:
                if e.kind == "wp" and e.need == s:
                    read_w(e)
                if hasattr(e, "reg") and e.wat == s:
                    p.I(f"s_add_u32 s{S_T0}, s{S_M0B}, {e.slot * 16384}")
                    p.I(f"v_add_u32 v48, s{S_T0}, v{G_R+LOV}")
                    for j in range(4):
                        p.I(f"ds_write_b128 v48, {vr(e.reg + 4*j, 4)} offset:{j*1024}")
            if s == 4:
                gen_reset_done(p, tag)
            if s == sc.ka0 + 4:
                p.I(f"s_lshl_b32 s{S_T0}, s{S_B}, 4")
                p.I(f"v_mov_b32 v48, 0")
                ld.I(f"buffer_load_dword v{G_R+LDPOLL}, v48, {sr(SRD_DBG,4)}, s{S_T0} offen sc1")
            if s == sc.ka0 + 14:
                p.I(f"v_cmp_gt_u32 vcc, 16, v{G_R+LDPOLL}")
                p.I(f"s_cbranch_vccz L_dok{tag}")
                t_keep, saved, ck = p.t, list(p.vm), ld.cnt
                ld.spin("d", 0)
                p.label(f"L_dok{tag}")
                p.t, p.vm, ld.cnt = t_keep, saved, ck
            issue_at(s)
            if name == "K" and WPF >= 0 and WPF <= idx < WPF + 128 // WPN:
                if idx == WPF:
                    p.I(f"s_lshr_b32 s{S_T2}, s2, 3")
                    p.I(f"s_lshl_b32 s{S_T2}, s{S_T2}, 15")
                    p.I(f"s_lshl_b32 s{S_T0}, s{S_HG}, 20")
                    p.I(f"s_add_u32 s{S_T2}, s{S_T2}, s{S_T0}")
                    p.I(f"s_lshl_b32 s{S_T0}, s{S_G}, 13")
                    p.I(f"s_add_u32 s{S_T2}, s{S_T2}, s{S_T0}")
                for k in range(WPN):
                    p.raw(f"  s_buffer_load_dword s101, {sr(SRD_WO,4)}, s{S_T2} offset:{((idx - WPF) * WPN + k) * 64}")
            s += 1
        else:
            s0 = s
            n = 0
            while s + n < sc.n and sc.steps[s + n][0] == "O":
                n += 1
            o0 = [e.idx for e in sc.ents if e.kind == "o" and e.need == s0][0]
            fz = first_o
            first_o = False

            def open_u(u):
                ld.wait_for(s0 + u, lgkm=0)
                p.I("s_barrier")
                if u == 0 or (o0 + u) in (8, 12):
                    mark()
                if ("wo", o0 + u) in by:
                    read_w(by[("wo", o0 + u)])

            def item(u, s4, mb):
                def f(reg):
                    off = ao.to(by[("o", o0 + u)].slot) + mb * 4096 + s4 * 1024
                    p.I(f"ds_read_b128 {vr(reg,4)}, v{G_AO} offset:{off}")
                return f

            def mf(u, s4, mb, reg):
                acc = vr(G_ACC + 16 * mb, 16)
                cin = "0" if (fz and u == 0 and s4 == 0) else acc
                p.I(f"v_mfma_f32_32x32x16_bf16 {acc}, {vr(wbuf[o0 + u] + 4*s4, 4)}, {vr(reg,4)}, {cin}")
            oring = [40 + 4 * i for i in range(6)] + ([8 + 4 * i for i in range(4)] if s0 + n == sc.n else [])

            class RG(FragRing):
                def reg(self, i):
                    return oring[i % len(oring)]
            gemm_phase(p, n, open_u, item, mf, 0, len(oring), cls=RG)
            s += n
    while nm[0] < 10:
        mark()
    p.flush_hazards()
    p.I("s_branch L_G_final")


def gen_G_final(p):
    p.label("L_G_final")
    p.reset_state()
    stamp(p, 10)
    SG = S_G
    OV, PA, POLL = G_R + LOV, G_R + LPA, G_R + LPOLL
    p.I(f"s_lshl_b32 s{S_T0}, s{S_B}, 2")
    p.I(f"s_add_u32 s{S_T2}, s{S_T0}, s{S_P}")
    p.I(f"s_lshl_b32 s{S_T3}, s{S_T2}, 18")
    p.I(f"s_add_u32 s{S_T3}, s{S_T3}, {WS_PART}")
    p.I(f"s_add_u32 s{S_T3}, s{S_T3}, s{S_M0B}")
    p.I(f"s_lshl_b32 s{S_T2}, s{S_T2}, 11")
    p.I(f"s_add_u32 s{S_T2}, s{S_T2}, {WS_F2}")
    p.I(f"s_lshl_b32 s{S_T0}, s{SG}, 7")
    p.I(f"s_add_u32 s{S_T2}, s{S_T2}, s{S_T0}")
    p.I(f"s_lshl_b32 s{S_T1}, s{S_HG}, 14")
    p.I(f"s_add_u32 s{S_DS}, s{S_T3}, s{S_T1}")
    for d in range(4):
        p.I(f"s_cmp_eq_u32 s{S_HG}, {d}")
        p.I(f"s_cbranch_scc1 L_G_own{d}")
        for j in range(4):
            p.I(f"buffer_store_dwordx4 {vr(G_ACC + 16*d + 4*j, 4)}, v{OV}, {sr(SRD_WS,4)}, s{S_DS} offen offset:{j*1024} {STFLAGS}")
        p.I(f"s_branch L_G_nx{d}")
        p.label(f"L_G_own{d}")
        for k in range(16):
            p.I(f"v_mov_b32 v{G_B+k}, v{G_ACC+16*d+k}")
        p.label(f"L_G_nx{d}")
        if d < 3:
            p.I(f"s_add_u32 s{S_DS}, s{S_DS}, 65536")
    p.I(f"v_lshlrev_b32 v49, 7, v{PA}")
    p.I(f"s_lshl_b32 s{S_T1}, s{S_HG}, 2")
    p.I(f"s_add_u32 s{S_T0}, s{S_T2}, s{S_T1}")
    p.I("v_mov_b32 v48, 1")
    p.I(f"s_mov_b64 {sr(S_EX,2)}, exec")
    p.I("s_mov_b64 exec, 15")
    p.wait(vm=0)
    p.I(f"buffer_store_dword v48, v49, {sr(SRD_WS,4)}, s{S_T0} offen sc1")
    p.I(f"s_mov_b64 exec, {sr(S_EX,2)}")
    stamp(p, 11)
    p.I(f"s_lshl_b32 s{S_T0}, s{S_HG}, 9")
    p.I(f"s_add_u32 s{S_T2}, s{S_T2}, s{S_T0}")
    p.I(f"v_cmp_ne_u32 {sr(S_EX,2)}, s{S_T1}, v{PA}")
    p.I(f"s_mov_b32 s{S_SPIN}, {SPIN}")
    p.label("L_G_sp2")
    p.I(f"buffer_load_dword v{POLL}, v{PA}, {sr(SRD_WS,4)}, s{S_T2} offen sc1")
    p.I(f"v_cmp_ne_u32 vcc, 1, v{POLL}")
    p.I(f"s_and_b64 vcc, vcc, {sr(S_EX,2)}")
    p.I("s_cbranch_vccz L_G_ok2")
    if int(os.environ.get("FSL", "0")):
        p.I(f"s_sleep {os.environ['FSL']}")
    p.I(f"s_sub_u32 s{S_SPIN}, s{S_SPIN}, 1")
    p.I(f"s_cmp_lg_u32 s{S_SPIN}, 0")
    p.I("s_cbranch_scc1 L_G_sp2")
    p.label("L_G_ok2")
    stamp(p, 12)
    p.I(f"s_lshl_b32 s{S_T0}, s{S_HG}, 16")
    p.I(f"s_add_u32 s{S_T3}, s{S_T3}, s{S_T0}")
    for i in range(3):
        p.I(f"s_add_u32 s{S_T0}, s{S_HG}, {i+1}")
        p.I(f"s_and_b32 s{S_T0}, s{S_T0}, 3")
        p.I(f"s_lshl_b32 s{S_T0}, s{S_T0}, 14")
        p.I(f"s_add_u32 s{S_T0}, s{S_T0}, s{S_T3}")
        for j in range(4):
            p.I(f"buffer_load_dwordx4 {vr(G_B + 16*(i+1) + 4*j, 4)}, v{OV}, {sr(SRD_WS,4)}, s{S_T0} offen offset:{j*1024} sc1")
    p.I("v_and_b32 v48, 31, v0")
    p.I("v_lshlrev_b32 v48, 10, v48")
    p.I("v_lshrrev_b32 v49, 5, v0")
    p.I("v_lshl_add_u32 v48, v49, 4, v48")
    p.I(f"s_lshl_b32 s{S_T0}, s{S_B}, 17")
    p.I(f"s_lshl_b32 s{S_T1}, s{S_HG}, 15")
    p.I(f"s_add_u32 s{S_T0}, s{S_T0}, s{S_T1}")
    p.I(f"s_lshl_b32 s{S_T1}, s{S_P}, 8")
    p.I(f"s_add_u32 s{S_T0}, s{S_T0}, s{S_T1}")
    p.I(f"s_lshl_b32 s{S_T1}, s{SG}, 6")
    p.I(f"s_add_u32 s{S_T0}, s{S_T0}, s{S_T1}")
    for i in range(3):
        for k in range(16):
            p.I(f"v_add_f32 v{G_B+k}, v{G_B+k}, v{G_B+16*(i+1)+k}")
    for k in range(8):
        p.I(f"v_cvt_pk_bf16_f32 v{G_B+k}, v{G_B+2*k}, v{G_B+2*k+1}")
    p.I(f"buffer_store_dwordx4 {vr(G_B,4)}, v48, {sr(SRD_OUT,4)}, s{S_T0} offen {OUTF}")
    p.I(f"buffer_store_dwordx4 {vr(G_B+4,4)}, v48, {sr(SRD_OUT,4)}, s{S_T0} offen offset:32 {OUTF}")
    if STAMP in (1, 2):
        p.wait(vm=0)
        stamp(p, 13)
        p.I(f"s_cmp_lg_u32 s{S_WAVE}, 4")
        p.I("s_cbranch_scc1 L_exit")
        if os.environ.get("DBGOUT"):
            p.raw("  s_waitcnt lgkmcnt(0)")
            p.I("s_mov_b64 exec, 1")
            words = [1, 2, 3, 5, 6, 7, 9, 10, 11, 13, 14, 15]
            p.I(f"s_not_b32 s{S_T0}, s{S_STAMP}")
            p.I(f"v_mov_b32 v32, s{S_T0}")
            p.I(f"v_mov_b32 v30, {4*words[0]}")
            p.I(f"buffer_atomic_umax v32, v30, {sr(SRD_DBG,4)}, 0 offen sc1")
            for w, i in zip(words[1:], [0, 1, 2, 3, 4, 5, 6, 7, 10, 12, 13]):
                p.nop(2)
                p.I(f"v_mov_b32 v32, s{S_STAMP+2*i}")
                p.I(f"v_mov_b32 v30, {4*w}")
                p.I(f"buffer_atomic_umax v32, v30, {sr(SRD_DBG,4)}, 0 offen sc1")
        else:
            stamp_store(p, 14, 0)
    p.I("s_endpgm")


def main():
    out = sys.argv[1]
    scheds = [Sched(c) for c in CLASSES]
    if os.environ.get("SHOW"):
        for sc in scheds:
            print(" ".join(f"{e.kind}{e.idx}@{e.at}{e.who}>{e.need}[{e.slot}]" for e in sc.issued))
    p = Prog()
    prologue(p, 256)
    p.I(f"s_cmp_lt_u32 s{S_WAVE}, 4")
    p.I("s_cbranch_scc1 L_A")
    assert NCLS == 1
    loader_setup(p, G_R, "xw")
    p.raw("  s_waitcnt lgkmcnt(0)")
    srds(p, "xq")
    for c in range(NCLS):
        if c:
            p.label(f"L_G_cls{c}")
        p.reset_state()
        p.nop(2)
        gen_G_class(p, c, scheds[c])
    gen_G_final(p)
    p.label("L_A")
    p.reset_state()
    gen_A(p, scheds)
    p.label("L_exit")
    p.I("s_endpgm")
    s = "; @launch grid=(256,1,1) block=(512,1,1) lds=163840\n"
    s += '.amdgcn_target "amdgcn-amd-amdhsa--gfx950"\n.text\n'
    s += kernel_header(KNAME) + p.text()
    s += '.section .rodata,"a"\n'
    s += kernel_desc(KNAME, 256, 102, 256)
    open(out, "w").write(s)
    print("nops inserted:", p.nops_inserted, "lines", len(p.lines))


main()
```
